```python
import torch

def _softmax(x, axis=-1):
    return torch.softmax(x, dim=axis)
def _gelu(x):
    return torch.nn.functional.gelu(x, approximate="tanh")
def _silu(x):
    return torch.nn.functional.silu(x)
def _sigmoid(x):
    return torch.sigmoid(x)
def _layernorm(x, axis=-1, eps=1e-5):
    m = x.mean(dim=axis, keepdim=True)
    v = x.var(dim=axis, keepdim=True, unbiased=False)
    return (x - m) / torch.sqrt(v + eps)
def _scatter_add(tgt, idx, src, axis=0):
    return tgt.clone().index_add_(axis, idx, src)
def _segment_sum(src, seg, n):
    out = torch.zeros((n,) + src.shape[1:], dtype=src.dtype)
    return out.index_add_(0, seg, src)
def _pad(x, pw):
    flat = tuple(v for pair in reversed(pw) for v in pair)
    return torch.nn.functional.pad(x, flat)

kernel_name = 'gated_mix__ssm_conv_s4__glu_gated_swiglu__prompt'

def setup_inputs():

    _w = (lambda a: (lambda t: t.to(torch.bfloat16) if t.is_floating_point() else t)(torch.as_tensor(a)))
    def _A_setup():
        B, L, D, N = 1, 2048, 512, 128
        A_re = -(lambda _x: torch.exp(torch.as_tensor(_x)))((lambda *s: torch.randn(*s, dtype=torch.bfloat16) * 3.2)(D, N))
        A_im = torch.pi * (lambda *s: torch.randn(*s, dtype=torch.bfloat16) * 0.05)(D, N)
        B_re = (lambda *s: torch.randn(*s, dtype=torch.bfloat16) * 0.1)(D, N)
        B_im = (lambda *s: torch.randn(*s, dtype=torch.bfloat16) * 0.1)(D, N)
        C_re = (lambda *s: torch.randn(*s, dtype=torch.bfloat16) * 0.1)(D, N)
        C_im = (lambda *s: torch.randn(*s, dtype=torch.bfloat16) * 0.1)(D, N)
        log_dt = (lambda *s: torch.randn(*s, dtype=torch.bfloat16) * 0.05)(D) * 0.5 - 4.0
        Dskip = (lambda *s: torch.randn(*s, dtype=torch.bfloat16) * 0.05)(D)
        return {
            "u": _w((lambda *s: torch.randn(*s, dtype=torch.bfloat16) * 0.05)(B, L, D)),
            "A_re": _w(A_re),
            "A_im": _w(A_im),
            "B_re": _w(B_re),
            "B_im": _w(B_im),
            "C_re": _w(C_re),
            "C_im": _w(C_im),
            "log_dt": _w(log_dt),
            "Dskip": _w(Dskip),
        }
    _A_in = _A_setup()

    def _B_setup():
        B, S, D, F = 1, 2048, 512, 1792
        return {
            "x": _w((lambda *s: torch.randn(*s, dtype=torch.bfloat16) * 0.05)(B, S, D)),
            "w1": _w((lambda *s: torch.randn(*s, dtype=torch.bfloat16) * 0.8)(D, F) * (2.0 / D) ** 0.5),
            "w3": _w((lambda *s: torch.randn(*s, dtype=torch.bfloat16) * 0.8)(D, F) * (2.0 / D) ** 0.5),
            "w2": _w((lambda *s: torch.randn(*s, dtype=torch.bfloat16) * 0.8)(F, D) * (2.0 / F) ** 0.5),
        }
    _B_in = _B_setup()

    return {
        "A_u": _A_in["u"],
        "A_A_re": _A_in["A_re"],
        "A_A_im": _A_in["A_im"],
        "A_B_re": _A_in["B_re"],
        "A_B_im": _A_in["B_im"],
        "A_C_re": _A_in["C_re"],
        "A_C_im": _A_in["C_im"],
        "A_log_dt": _A_in["log_dt"],
        "A_Dskip": _A_in["Dskip"],
        "B_x": _B_in["x"],
        "B_w1": _B_in["w1"],
        "B_w3": _B_in["w3"],
        "B_w2": _B_in["w2"],
        "gate_w": _w((lambda *s: torch.randn(*s, dtype=torch.bfloat16) * 0.05)(512) * 16.0),
    }

def reference(A_u, A_A_re, A_A_im, A_B_re, A_B_im, A_C_re, A_C_im, A_log_dt, A_Dskip, B_x, B_w1, B_w3, B_w2, gate_w):
    def _A_ref(u, A_re, A_im, B_re, B_im, C_re, C_im, log_dt, Dskip):
        Bsz, L, D = u.shape
        dt = torch.exp(log_dt)[:, None]
        A = A_re + 1j * A_im
        Bc = B_re + 1j * B_im
        Cc = C_re + 1j * C_im
        logdA = dt * A
        dB = dt * Bc
        l = (lambda x, dt: x.to(dt))(torch.arange(L), A_re.dtype)
        P = torch.exp(logdA[:, :, None] * l[None, None, :])
        K = torch.einsum("dn,dnl,dn->dl", Cc, P, dB).real
        L2 = 2 * L
        Kp = _pad(K, ((0, 0), (0, L)))
        up = (lambda x, *d: x.permute(*d))(u, 0, 2, 1)
        up = _pad(up, ((0, 0), (0, 0), (0, L)))
        Kf = (lambda x, axes=(-2,-1): torch.fft.rfft2(x.float(), dim=axes))(Kp[:, None, :], axes=(-2, -1))
        Uf = (lambda x, axes=(-2,-1): torch.fft.rfft2(x.float(), dim=axes))(up[:, :, None, :], axes=(-2, -1))
        Yf = Uf * Kf[None, :, :, :]
        y = (lambda x, s, axes=(-2,-1): torch.fft.irfft2(x, s=s, dim=axes).to(torch.bfloat16))(Yf, (1, L2), axes=(-2, -1))[:, :, 0, :L]
        y = (lambda x, *d: x.permute(*d))(y, 0, 2, 1) + u * Dskip[None, None, :]
        return y

    def _B_ref(x, w1, w3, w2):
        gate = torch.einsum("bsd,df->bsf", x, w1)
        up = torch.einsum("bsd,df->bsf", x, w3)
        h = _silu(gate) * up
        out = torch.einsum("bsf,fd->bsd", h, w2)
        return out

    x = A_u
    g = _sigmoid((x * gate_w).sum(-1, keepdims=True))
    a = _A_ref(x, A_A_re, A_A_im, A_B_re, A_B_im, A_C_re, A_C_im, A_log_dt, A_Dskip)
    b = _B_ref(x, B_w1, B_w3, B_w2)
    return g * a + (1 - g) * b
```

```python
class Cnt:
    def __init__(self, maxv):
        self.ops = []; self.done = 0; self.maxv = maxv
    def issue(self, tag): self.ops.append(tag)
    def need(self, pred):
        last = -1
        for i in range(len(self.ops) - 1, self.done - 1, -1):
            if pred(self.ops[i]):
                last = i; break
        if last < 0: return None
        n = len(self.ops) - 1 - last
        if n > self.maxv:
            n = self.maxv
            last = len(self.ops) - 1 - n
        self.done = last + 1
        return n
    def all_done(self): self.done = len(self.ops)
    def outstanding(self): return len(self.ops) - self.done

class Asm:
    def __init__(self):
        self.out = []
        self.vm = Cnt(63); self.lg = Cnt(15)
    def __call__(self, s): self.out.append("    " + s)
    def label(self, l): self.out.append(l + ":")
    def c(self, s): self.out.append("    ; " + s)
    def reset_counters(self):
        self.vm = Cnt(63); self.lg = Cnt(15)
    def vmem(self, s, tag=None):
        assert self.vm.outstanding() < 63, "vmcnt overflow"
        self(s); self.vm.issue(tag)
    def lds(self, s, tag=None):
        self(s); self.lg.issue(tag)
    def wait_vm(self, pred):
        if not callable(pred):
            t = pred; pred = lambda x: x == t
        n = self.vm.need(pred)
        if n is not None: self(f"s_waitcnt vmcnt({n})")
    def wait_lg(self, pred):
        if not callable(pred):
            t = pred; pred = lambda x: x == t
        n = self.lg.need(pred)
        if n is not None: self(f"s_waitcnt lgkmcnt({n})")
    def wait_both(self, pv, pl):
        if pv is not None and not callable(pv):
            t = pv; pv = lambda x: x == t
        if pl is not None and not callable(pl):
            t2 = pl; pl = lambda x: x == t2
        nv = self.vm.need(pv) if pv is not None else None
        nl = self.lg.need(pl) if pl is not None else None
        parts = []
        if nv is not None: parts.append(f"vmcnt({nv})")
        if nl is not None: parts.append(f"lgkmcnt({nl})")
        if parts: self("s_waitcnt " + " ".join(parts))
    def wait_all_vm(self):
        self("s_waitcnt vmcnt(0)"); self.vm.all_done()
    def wait_all_lg(self):
        self("s_waitcnt lgkmcnt(0)"); self.lg.all_done()
    def nop(self, n):
        while n > 0:
            k = min(n, 16); self(f"s_nop {k-1}"); n -= k
    def srd(self, sd, sp, nbytes, add=0):
        if add:
            self(f"s_add_u32 s{sd}, s{sp}, {add:#x}")
            self(f"s_addc_u32 s{sd+1}, s{sp+1}, 0")
        else:
            self(f"s_mov_b32 s{sd}, s{sp}")
            self(f"s_mov_b32 s{sd+1}, s{sp+1}")
        self(f"s_mov_b32 s{sd+2}, {nbytes:#x}")
        self(f"s_mov_b32 s{sd+3}, 0x20000")
    def text(self): return "\n".join(self.out) + "\n"

def vr(b, n=1, f="v"):
    return f"{f}{b}" if n == 1 else f"{f}[{b}:{b+n-1}]"
def sr(b, n=1):
    return f"s{b}" if n == 1 else f"s[{b}:{b+n-1}]"

def kernel_header(name):
    return f".globl {name}\n.p2align 8\n.type {name},@function\n{name}:\n"
def kernel_desc(name, vgpr, sgpr, accum):
    return f""".p2align 6
.amdhsa_kernel {name}
  .amdhsa_next_free_vgpr {vgpr}
  .amdhsa_next_free_sgpr {sgpr}
  .amdhsa_accum_offset {accum}
  .amdhsa_group_segment_fixed_size 0
  .amdhsa_kernarg_size 136
  .amdhsa_user_sgpr_count 2
  .amdhsa_user_sgpr_kernarg_segment_ptr 1
  .amdhsa_system_sgpr_workgroup_id_x 1
.end_amdhsa_kernel
"""
```

```python
import sys
from asmlib import *
import layout as LY
KA = dict(u=0, Are=8, Aim=16, Bre=24, Bim=32, Cre=40, Cim=48, ldt=56, Dsk=64, w1=80, w3=88, w2=96, gw=104, out=112, dbg=120, ws=128)
LOG2E = 0x3fb8aa3b
DEBUG_K = "--dbgk" in sys.argv

def lane_wave(k, swave):
    k("v_and_b32 v1, 63, v0")
    k("v_lshrrev_b32 v2, 6, v0")
    k("s_nop 0")
    k(f"v_readfirstlane_b32 s{swave}, v2")

def rbf(k, v):
    k(f"v_cvt_pk_bf16_f32 v{v}, v{v}, v{v}")
    k(f"v_and_b32 v{v}, 0xffff0000, v{v}")

def gen_aux():
    k = Asm()
    k("s_cmp_ge_u32 s2, 32"); k("s_cbranch_scc1 L_aux_end")
    k(f"s_load_dwordx2 s[4:5], s[0:1], {KA['u']}")
    k(f"s_load_dwordx2 s[6:7], s[0:1], {KA['gw']}")
    k(f"s_load_dwordx2 s[8:9], s[0:1], {KA['ws']}")
    lane_wave(k, 28)
    k("s_waitcnt lgkmcnt(0)")
    k.srd(12, 4, 2048*1024); k.srd(16, 6, 1024); k.srd(20, 8, 2 << 20, LY.WS_UT); k.srd(24, 8, 8192, LY.WS_G)
    k("v_bfe_u32 v3, v1, 1, 2"); k("v_lshlrev_b32 v3, 10, v3")
    k("v_lshrrev_b32 v4, 3, v1"); k("v_lshl_add_u32 v3, v4, 5, v3")
    k("v_and_b32 v4, 1, v1"); k("v_lshl_add_u32 v3, v4, 4, v3")
    k("s_lshl_b32 s29, s28, 8"); k("v_add_u32 v3, s29, v3")
    k("s_lshl_b32 s30, s2, 16")
    k("s_mul_i32 s31, s28, 17408")
    for tq in range(16):
        k(f"s_add_u32 m0, s31, {tq*1024 + (tq>>1)*128}")
        k(f"s_add_u32 s32, s30, {tq*4096}")
        k.vmem("buffer_load_dwordx4 v3, s[12:15], s32 offen lds", "dma")
    k("v_and_b32 v5, 15, v1"); k("v_lshrrev_b32 v6, 4, v1")
    k("v_lshlrev_b32 v7, 4, v6")
    k("v_lshl_add_u32 v8, v5, 10, v7")
    k("s_lshl_b32 s33, s28, 14"); k("s_add_u32 s33, s33, s30")
    for s in range(16):
        k.vmem(f"buffer_load_dwordx4 {vr(32+4*s,4)}, v8, s[12:15], s33 offen offset:{64*s}", "gx")
    for s in range(16):
        k.vmem(f"buffer_load_dwordx4 {vr(96+4*s,4)}, v7, s[16:19], 0 offen offset:{64*s}", "gw")
    k("v_mul_u32_u24 v9, 2176, v6")
    k("v_lshl_add_u32 v9, v5, 3, v9")
    k("v_add_u32 v9, s31, v9")
    k("s_lshl_b32 s34, s28, 7")
    k("v_add_u32 v10, s34, v5"); k("v_lshlrev_b32 v10, 12, v10")
    k("v_add_u32 v10, v10, v7")
    k("s_lshl_b32 s35, s2, 7")
    k.wait_vm("dma")
    for cb in range(8):
        for a in range(2):
            base = 160 + ((cb*2+a) % 8) * 4
            for s in range(2):
                k.lds(f"ds_read_b64_tr_b16 {vr(base+2*s,2)}, v9 offset:{a*8704 + s*1024 + cb*128}", ("t", cb, a))
            k.wait_lg(("t", cb, a))
            k(f"s_add_u32 s36, s35, {cb*65536}")
            k.vmem(f"buffer_store_dwordx4 {vr(base,4)}, v10, s[20:23], s36 offen offset:{64*a}", "st")
        if cb % 4 == 3: k.wait_vm("st")
    for i in range(4): k(f"v_mov_b32 v{12+i}, 0x3f803f80")
    k.wait_vm("gw")
    for s in range(16):
        for j in range(4):
            x = 32+4*s+j; w = 96+4*s+j
            k(f"v_lshlrev_b32 v16, 16, v{x}"); k(f"v_and_b32 v17, 0xffff0000, v{x}")
            k(f"v_lshlrev_b32 v18, 16, v{w}"); k(f"v_and_b32 v19, 0xffff0000, v{w}")
            k("v_mul_f32 v16, v16, v18"); k("v_mul_f32 v17, v17, v19")
            k(f"v_cvt_pk_bf16_f32 v{x}, v16, v17")
        k.nop(2)
        k(f"v_mfma_f32_16x16x32_bf16 v[20:23], v[12:15], {vr(32+4*s,4)}, {'0' if s==0 else 'v[20:23]'}")
    k.nop(10)
    rbf(k, 20)
    k(f"v_mul_f32 v21, {LOG2E:#x}, v20")
    k("v_exp_f32 v21, -v21"); k("s_nop 0")
    k("v_add_f32 v21, 1.0, v21"); k("v_rcp_f32 v21, v21"); k("s_nop 0")
    rbf(k, 21)
    k("s_lshl_b32 s37, s2, 8"); k("s_lshl_b32 s38, s28, 6"); k("s_add_u32 s37, s37, s38")
    k("v_lshlrev_b32 v22, 2, v5")
    k.vmem("buffer_store_dword v21, v22, s[24:27], s37 offen")
    k.label("L_aux_end")
    k("s_endpgm")
    return k.text(), dict(vgpr=192, sgpr=48, accum=192, grid=32, lds=4*17408)

G_NB = 5; G_STAGE = 16640; G_DELTA = 8192 + 128
def gen_g1():
    k = Asm()
    k("s_lshr_b32 s3, s2, 3")
    k("s_cmp_ge_u32 s3, 28"); k("s_cbranch_scc1 L_g1_end")
    k(f"s_load_dwordx2 s[4:5], s[0:1], {KA['u']}")
    k(f"s_load_dwordx4 s[8:11], s[0:1], {KA['w1']}")
    k(f"s_load_dwordx2 s[6:7], s[0:1], {KA['ws']}")
    lane_wave(k, 28)
    k("s_and_b32 s29, s2, 7")
    k("s_mul_i32 s30, s3, 37"); k("s_lshr_b32 s30, s30, 8")
    k("s_mul_i32 s31, s30, 7"); k("s_sub_u32 s31, s3, s31")
    k("s_lshr_b32 s32, s29, 1"); k("s_lshl_b32 s32, s32, 2"); k("s_add_u32 s30, s30, s32")
    k("s_and_b32 s32, s29, 1"); k("s_mul_i32 s32, s32, 7"); k("s_add_u32 s31, s31, s32")
    k("s_waitcnt lgkmcnt(0)")
    k.srd(12, 4, 2048*1024); k.srd(16, 8, 512*3584); k.srd(20, 10, 512*3584); k.srd(24, 6, 64*112*1024, LY.WS_H)
    k("v_bfe_u32 v3, v1, 1, 2"); k("v_mul_u32_u24 v3, 3584, v3")
    k("v_lshrrev_b32 v4, 3, v1"); k("v_lshl_add_u32 v3, v4, 5, v3")
    k("v_and_b32 v4, 1, v1"); k("v_lshl_add_u32 v3, v4, 4, v3")
    k("s_lshl_b32 s33, s31, 8"); k(f"s_mul_i32 s34, s28, {8*3584}"); k("s_add_u32 s33, s33, s34")
    k("v_add_u32 v3, s33, v3")
    k("s_lshl_b32 s35, s28, 11")
    k("v_and_b32 v5, 31, v1"); k("s_lshl_b32 s36, s30, 2"); k("s_add_u32 s36, s36, s28")
    k("s_lshl_b32 s37, s36, 5"); k("v_add_u32 v5, s37, v5"); k("v_lshlrev_b32 v5, 10, v5")
    k("v_lshrrev_b32 v6, 5, v1"); k("v_lshl_add_u32 v5, v6, 4, v5")
    k("v_bfe_u32 v7, v1, 4, 1"); k(f"v_mul_u32_u24 v7, {G_DELTA}, v7")
    k("v_lshl_add_u32 v7, v6, 11, v7")
    k("v_and_b32 v9, 15, v1"); k("v_lshl_add_u32 v7, v9, 3, v7")
    k(f"v_add_u32 v8, {3*G_STAGE}, v7")
    def dma(st):
        buf = (st % G_NB) * G_STAGE
        for m in range(2):
            for q in range(2):
                k(f"s_add_u32 m0, s35, {buf + m*G_DELTA + q*1024}")
                k(f"s_mov_b32 s38, {st*32*3584 + q*4*3584}")
                k.vmem(f"buffer_load_dwordx4 v3, {sr(16+4*m,4)}, s38 offen lds", ("w", st))
    def xload(kk):
        k.vmem(f"buffer_load_dwordx4 {vr(4*kk,4,'a')}, v5, s[12:15], 0 offen offset:{32*kk}", ("x", kk))
    dma(0)
    for kk in range(8): xload(kk)
    for st in range(1, G_NB): dma(st)
    for kk in range(8, 32): xload(kk)
    ACC = 64; AF = 32
    def aread(kk, t):
        st = kk >> 1; e = kk & 1; b = st % G_NB
        addr = "v7" if b < 3 else "v8"; off = (b if b < 3 else b - 3) * G_STAGE
        for s2 in range(2):
            k.lds(f"ds_read_b64_tr_b16 {vr(AF+4*t+2*s2,2)}, {addr} offset:{off + e*4096 + s2*1024 + t*128}", ("a", kk, t))
    k.wait_vm(("w", 0)); k("s_barrier")
    for t in range(8): aread(0, t)
    for kk in range(32):
        st = kk >> 1
        if (kk & 1) and st + 1 < 16:
            k.wait_vm(("w", st + 1)); k("s_barrier")
            if st >= 1 and st - 1 + G_NB < 16: dma(st - 1 + G_NB)
        for t in range(8):
            k.wait_both(("x", kk) if t == 0 else None, ("a", kk, t))
            c = "0" if kk == 0 else vr(ACC+16*t, 16)
            k(f"v_mfma_f32_32x32x16_bf16 {vr(ACC+16*t,16)}, {vr(AF+4*t,4)}, {vr(4*kk,4,'a')}, {c}")
            if kk + 1 < 32: aread(kk + 1, t)
    k.nop(16)
    k("v_lshlrev_b32 v10, 4, v1")
    k("s_mul_i32 s39, s36, 112"); k("s_lshl_b32 s40, s31, 3"); k("s_add_u32 s39, s39, s40"); k("s_lshl_b32 s39, s39, 10")
    for t in range(8):
        A = ACC + 16*t
        for r in range(8):
            k(f"v_mul_f32 v{12+r}, {LOG2E:#x}, v{A+r}")
        for r in range(8):
            k(f"v_exp_f32 v{12+r}, -v{12+r}")
        for r in range(8):
            k(f"v_mul_f32 v{A+r}, v{A+r}, v{A+8+r}")
        for r in range(8):
            k(f"v_add_f32 v{12+r}, 1.0, v{12+r}")
        for r in range(8):
            k(f"v_rcp_f32 v{12+r}, v{12+r}")
        k("s_nop 0")
        for r in range(8):
            k(f"v_mul_f32 v{A+r}, v{A+r}, v{12+r}")
        for j in range(4):
            k(f"v_cvt_pk_bf16_f32 v{A+8+j}, v{A+2*j}, v{A+2*j+1}")
        if t % 4 == 0 and t: k(f"s_add_u32 s39, s39, 4096")
        k.vmem(f"buffer_store_dwordx4 {vr(A+8,4)}, v10, s[24:27], s39 offen offset:{(t%4)*1024}")
    k.label("L_g1_end")
    k("s_endpgm")
    return k.text(), dict(vgpr=192+128, sgpr=48, accum=192, grid=256, lds=G_NB*G_STAGE)

ROWB = 544
ROWS = {}
def _mk_rows():
    r = 0
    for beta in range(16):
        if beta < 2: rh = list(range(9))
        elif beta < 4: rh = [0, 2, 4, 6, 8]
        elif beta < 8: rh = [0, 4, 8]
        else: rh = [0, 8]
        for x in rh:
            ROWS[(beta, x)] = r; r += 1
    return r
NU = _mk_rows()
VROW0 = NU
TAB = (NU + 16) * ROWB
RND2 = [0, 0, 2, 4, 4, 4, 6, 8, 8]
CPY = 4160
PL = 1536
C_TAB = 0
C_K = 1024
C_U = 2*TAB
C_X = C_K + 8*CPY
C_LDS = C_U + 8*PL

def gen_conv():
    k = Asm()
    k("s_cmp_ge_u32 s2, 256"); k("s_cbranch_scc1 L_cv_end")
    k(f"s_load_dwordx16 s[4:19], s[0:1], {KA['Are']}")
    k(f"s_load_dwordx2 s[20:21], s[0:1], {KA['ws']}")
    lane_wave(k, 22)
    k("s_lshr_b32 s23, s22, 1")
    k("s_and_b32 s24, s22, 1")
    k("s_lshl_b32 s25, s2, 1"); k("s_add_u32 s25, s25, s23")
    k("s_waitcnt lgkmcnt(0)")
    for i in range(6): k.srd(28+4*i, 4+2*i, 512*256)
    k.srd(52, 16, 1024); k.srd(56, 18, 1024)
    k.srd(60, 20, 2 << 20, LY.WS_UT); k.srd(64, 20, 2 << 20, LY.WS_AT)
    if DEBUG_K: k.srd(68, 20, 512*4*CPY, LY.WS_DBG)
    k("s_lshl_b32 s26, s25, 8"); k("s_lshl_b32 s27, s24, 7"); k("s_add_u32 s26, s26, s27")
    k("v_lshlrev_b32 v2, 1, v1")
    for i in range(8): k(f"v_mov_b32 v{8+i}, 0")
    for i in range(6):
        k.vmem(f"buffer_load_short_d16_hi v{8+i}, v2, {sr(28+4*i,4)}, s26 offen", "p")
    k("s_lshl_b32 s27, s25, 1"); k("v_mov_b32 v3, 0")
    k.vmem("buffer_load_short_d16_hi v14, v3, s[52:55], s27 offen", "p")
    k.vmem("buffer_load_short_d16_hi v15, v3, s[56:59], s27 offen", "p")
    k("v_lshlrev_b32 v4, 6, v1")
    k("s_lshl_b32 s72, s25, 12"); k("s_lshl_b32 s73, s24, 5"); k("s_add_u32 s72, s72, s73")
    k(f"s_mul_i32 s74, s22, {2*PL}"); k(f"s_add_u32 s74, s74, {C_U + 512}")
    for pp in range(2):
        k(f"s_add_u32 m0, s74, {pp*PL}")
        k(f"s_add_u32 s75, s72, {pp*16}")
        k.vmem("buffer_load_dwordx4 v4, s[60:63], s75 offen lds", "u")
    k("v_lshrrev_b32 v5, 5, v1"); k(f"v_mul_u32_u24 v5, {PL}, v5")
    k("v_and_b32 v6, 31, v1"); k("v_lshl_add_u32 v5, v6, 4, v5")
    k("s_sub_u32 s75, s74, 512"); k("v_add_u32 v5, s75, v5")
    for i in range(4): k(f"v_mov_b32 v{16+i}, 0")
    k.lds("ds_write_b128 v5, v[16:19]")
    k(f"s_mul_i32 s76, s23, {TAB}"); k("s_lshl_b32 s77, s24, 8"); k("s_add_u32 s77, s77, s76")
    k("v_lshlrev_b32 v7, 2, v1"); k("v_add_u32 v7, s77, v7")
    k.wait_vm("p")
    Are, Aim, Bre, Bim, Cre, Cim, LDT, DSK = range(8, 16)
    k(f"s_mov_b32 s78, {LOG2E:#x}"); k("s_mov_b32 s79, 0x32a57060")
    k(f"v_mul_f32 v16, s78, v{LDT}")
    k(f"v_fma_f32 v17, v{LDT}, s78, -v16")
    k(f"v_fma_f32 v17, v{LDT}, s79, v17")
    k("v_exp_f32 v16, v16")
    k("v_mul_f32 v17, 0x3f317218, v17")
    k("v_fma_f32 v16, v16, v17, v16")
    rbf(k, 16)
    k(f"v_mul_f32 v{Are}, v16, v{Are}"); k(f"v_mul_f32 v{Aim}, v16, v{Aim}")
    k(f"v_mul_f32 v{Bre}, v16, v{Bre}"); k(f"v_mul_f32 v{Bim}, v16, v{Bim}")
    def cmul(d, x, y):
        assert d != x and d != y
        k(f"v_mul_f32 v{d}, v{x}, v{y}"); k(f"v_mul_f32 v{d+1}, v{x}, v{y+1}")
        k(f"v_fma_f32 v{d}, -v{x+1}, v{y+1}, v{d}"); k(f"v_fma_f32 v{d+1}, v{x+1}, v{y}, v{d+1}")
    W0, W1 = 20, 22
    cmul(W0, Cre, Bre)
    k(f"v_mul_f32 v{Are}, s78, v{Are}")
    k(f"v_mul_f32 v{Aim}, 0.15915494, v{Aim}")
    def direct(d, e):
        k(f"v_mul_f32 v16, {float(e)}, v{Are}") if e in (1, 2, 4) else k(f"v_mul_f32 v16, {f2h(e)}, v{Are}")
        k(f"v_mul_f32 v17, {float(e)}, v{Aim}") if e in (1, 2, 4) else k(f"v_mul_f32 v17, {f2h(e)}, v{Aim}")
        k("v_exp_f32 v16, v16"); k("v_fract_f32 v17, v17")
        k(f"v_cos_f32 v{d}, v17"); k(f"v_sin_f32 v{d+1}, v17"); k("s_nop 0")
        k(f"v_mul_f32 v{d}, v16, v{d}"); k(f"v_mul_f32 v{d+1}, v16, v{d+1}")
    E = {i: 24 + 2*(i-1) for i in range(1, 9)}
    E128 = 40; T = 42; VA, VB = 44, 46; PK = 48
    direct(E[1], 1); direct(E[8], 8); direct(E128, 128)
    cmul(E[2], E[1], E[1]); cmul(E[3], E[2], E[1]); cmul(E[4], E[2], E[2]); cmul(E[5], E[4], E[1]); cmul(E[6], E[4], E[2]); cmul(E[7], E[4], E[3])
    pkc = [0]
    def put(row, v, neg):
        p = PK + (pkc[0] % 4); pkc[0] += 1
        k(f"v_cvt_pk_bf16_f32 v{p}, v{v}, {'-' if neg else ''}v{v+1}")
        k.lds(f"ds_write_b32 v7, v{p} offset:{row*ROWB}")
    k(f"v_mov_b32 v{PK}, 0x3f80"); k.lds(f"ds_write_b32 v7, v{PK} offset:{VROW0*ROWB}"); pkc[0] += 1
    put(VROW0 + 1, E[8], False)
    cur = E[8]
    for j in range(2, 16):
        d = VA if j % 2 == 0 else VB
        cmul(d, cur, E[8]); put(VROW0 + j, d, False); cur = d
    w = W0
    for beta in range(16):
        if beta:
            nw = W1 if w == W0 else W0
            cmul(nw, w, E128); w = nw
        for (b2, x), row in ROWS.items():
            if b2 != beta: continue
            if x == 0: put(row, w, True)
            else:
                cmul(T, w, E[x]); put(row, T, True)
    k.wait_all_lg(); k("s_barrier")
    k("v_and_b32 v16, 15, v1"); k("v_lshrrev_b32 v17, 4, v1")
    k(f"v_mul_u32_u24 v18, {ROWB}, v16"); k("v_lshl_add_u32 v18, v17, 4, v18"); k("v_add_u32 v18, s76, v18")
    VF = 64
    for s in range(8):
        k.lds(f"ds_read_b128 {vr(VF+4*s,4)}, v18 offset:{VROW0*ROWB + 64*s}", "vf")
    k(f"s_mul_i32 s80, s23, {4*CPY}"); k(f"s_add_u32 s80, s80, {C_K}")
    k("v_lshlrev_b32 v19, 4, v16"); k(f"v_sub_u32 v19, {4080 - 16}, v19"); k("v_add_u32 v19, s80, v19")
    AFR = 96; D = 128
    k("s_cmp_eq_u32 s24, 0"); k("s_cbranch_scc0 L_cv_partB")
    sv = k.lg; import copy
    lgA = copy.deepcopy(k.lg)
    for tau in range(3):
        lut = []
        for rr in range(16):
            g = rr >> 2; i = rr & 3; sg = 4*tau + i
            if sg < 9: row = ROWS[(g, sg if g < 2 else RND2[sg])]
            else: row = ROWS[(4 + g, 4*(sg - 9))]
            lut.append(row)
        lo = sum(lut[i] << (8*i) for i in range(8)); hi = sum(lut[8+i] << (8*i) for i in range(8))
        k(f"s_mov_b32 s82, {lo & 0xffffffff:#x}"); k(f"s_mov_b32 s83, {lo >> 32:#x}")
        k(f"s_mov_b32 s84, {hi & 0xffffffff:#x}"); k(f"s_mov_b32 s85, {hi >> 32:#x}")
        k("v_and_b32 v20, 7, v16"); k("v_lshlrev_b32 v20, 3, v20")
        k("v_lshrrev_b64 v[22:23], v20, s[82:83]"); k("v_lshrrev_b64 v[24:25], v20, s[84:85]")
        k("v_cmp_gt_u32 vcc, 8, v16"); k("s_nop 1")
        k("v_cndmask_b32 v22, v24, v22, vcc"); k("v_and_b32 v22, 0xff, v22")
        k(f"v_mul_u32_u24 v22, {ROWB}, v22"); k("v_lshl_add_u32 v22, v17, 4, v22"); k("v_add_u32 v22, s76, v22")
        for s in range(8):
            k.lds(f"ds_read_b128 {vr(AFR+4*s,4)}, v22 offset:{64*s}", ("af", s))
        for s in range(8):
            k.wait_lg(("af", s))
            k(f"v_mfma_f32_16x16x32_bf16 {vr(D+4*tau,4)}, {vr(AFR+4*s,4)}, {vr(VF+4*s,4)}, {'0' if s==0 else vr(D+4*tau,4)}")
    k.wait_all_lg(); k("s_barrier")
    k.nop(8)
    def write_block(e, addr):
        P = 144
        for j, (lo, hi) in enumerate([(7,6),(5,4),(3,2),(1,0)]): k(f"v_cvt_pk_bf16_f32 v{P+j}, v{e[lo]}, v{e[hi]}")
        for j, (lo, hi) in enumerate([(8,7),(6,5),(4,3),(2,1)]): k(f"v_cvt_pk_bf16_f32 v{P+4+j}, v{e[lo]}, v{e[hi]}")
        k.lds(f"ds_write_b128 v{addr}, {vr(P,4)} offset:16")
        for j in range(4): k.lds(f"ds_write_b32 v{addr}, v{P+j} offset:{2*CPY + 12 + 4*j}")
        for j in range(4): k.lds(f"ds_write_b32 v{addr}, v{P+4+j} offset:{CPY + 12 + 4*j}")
        k.lds(f"ds_write_b64 v{addr}, {vr(P+4,2)} offset:{3*CPY + 8}")
        k.lds(f"ds_write_b64 v{addr}, {vr(P+6,2)} offset:{3*CPY + 16}")
        k.wait_all_lg()
    k(f"v_mul_u32_u24 v20, {CPY}, v17"); k("v_lshl_add_u32 v20, v16, 2, v20"); k("v_add_u32 v20, s80, v20")
    k("v_mov_b32 v21, 0")
    k.lds(f"ds_write_b32 v20, v21 offset:{2*2044}")
    k("v_lshlrev_b32 v20, 8, v17"); k("v_sub_u32 v20, v19, v20")
    write_block([D+i for i in range(9)], 20)
    k(f"v_cvt_pk_bf16_f32 v21, v{D}, v{D}"); k("v_mov_b32 v22, s80")
    k("s_mov_b64 exec, 1")
    k.lds(f"ds_write_b16 v22, v21 offset:{CPY + 2*2046}")
    k.lds(f"ds_write_b16 v22, v21 offset:{3*CPY + 2*2044}")
    k("s_mov_b64 exec, -1")
    k("v_subrev_u32 v20, 1024, v20")
    v0_, v4_, v8_ = D+9, D+10, D+11
    write_block([v0_,v0_,v0_,v4_,v4_,v4_,v8_,v8_,v8_], 20)
    k("s_branch L_cv_join")
    k.label("L_cv_partB")
    k.lg = lgA
    R4 = ROWS[(8, 0)]
    for s in range(8):
        k.lds(f"ds_read_b128 {vr(AFR+4*s,4)}, v18 offset:{R4*ROWB + 64*s}", ("af", s))
    for s in range(8):
        k.wait_lg(("af", s))
        k(f"v_mfma_f32_16x16x32_bf16 {vr(D,4)}, {vr(AFR+4*s,4)}, {vr(VF+4*s,4)}, {'0' if s==0 else vr(D,4)}")
    k.wait_all_lg(); k("s_barrier")
    k.nop(8)
    k("v_and_b32 v21, 1, v16"); k("v_cmp_eq_u32 vcc, 0, v21"); k("s_nop 1")
    k(f"v_cndmask_b32 v{D+4}, v{D+1}, v{D}, vcc"); k(f"v_cndmask_b32 v{D+5}, v{D+3}, v{D+2}, vcc")
    k("v_lshlrev_b32 v20, 9, v17"); k("v_sub_u32 v20, v19, v20"); k("v_subrev_u32 v20, 2048, v20")
    write_block([D,D,D,D,D+4,D+1,D+1,D+1,D+1], 20)
    k("v_subrev_u32 v20, 256, v20")
    write_block([D+2,D+2,D+2,D+2,D+5,D+3,D+3,D+3,D+3], 20)
    k.label("L_cv_join")
    k.reset_counters()
    k("s_waitcnt vmcnt(0) lgkmcnt(0)"); k("s_barrier")
    if DEBUG_K:
        k(f"s_mul_i32 s82, s24, {2*CPY}"); k("s_add_u32 s83, s82, s80")
        k(f"s_mul_i32 s84, s25, {4*CPY}"); k("s_add_u32 s84, s84, s82")
        k("v_lshlrev_b32 v20, 2, v1"); k("v_add_u32 v21, s83, v20")
        for i in range(33):
            k(f"ds_read_b32 v22, v21 offset:{256*i}"); k("s_waitcnt lgkmcnt(0)")
            if i == 32: k("v_cmp_gt_u32 vcc, 32, v1"); k("s_and_saveexec_b64 s[86:87], vcc")
            k(f"buffer_store_dword v22, v20, s[68:71], s84 offen"); k("s_add_u32 s84, s84, 256"); k("s_waitcnt vmcnt(0)")
        k("s_mov_b64 exec, -1")
    k("v_and_b32 v16, 31, v1"); k("v_lshrrev_b32 v17, 5, v1")
    k("v_sub_u32 v18, 3, v16"); k("v_and_b32 v18, 3, v18")
    k(f"v_mul_u32_u24 v20, {CPY - 2}, v18")
    k("v_sub_u32 v19, 31, v16"); k("v_lshl_add_u32 v19, v17, 3, v19"); k("v_lshl_add_u32 v20, v19, 1, v20")
    k("s_lshl_b32 s82, s24, 10"); k("s_sub_u32 s82, s80, s82"); k("v_add_u32 v20, s82, v20")
    k(f"v_mul_u32_u24 v21, {PL}, v17"); k("v_lshl_add_u32 v21, v16, 4, v21")
    k(f"s_mul_i32 s83, s23, {4*PL}"); k(f"s_add_u32 s83, s83, {C_U}"); k("v_add_u32 v24, s83, v21")
    k("s_lshl_b32 s84, s24, 8"); k("v_subrev_u32 v21, s84, v24")
    AC0, AC1 = 32, 48; FR = 64
    steps = [(dl, kh) for dl in range(16) for kh in range(2)]
    def rd(i):
        dl, kh = steps[i]; b = FR + (i % 3) * 16
        o1 = 2*(2016 - 32*dl + 16*kh); o2 = o1 - 2048
        k.lds(f"ds_read_b64 {vr(b,2)}, v20 offset:{o1}", i); k.lds(f"ds_read_b64 {vr(b+2,2)}, v20 offset:{o1+8}", i)
        k.lds(f"ds_read_b128 {vr(b+8,4)}, v21 offset:{2*kh*PL + (32-dl)*16}", i)
        k.lds(f"ds_read_b128 {vr(b+12,4)}, v21 offset:{2*kh*PL + (64-dl)*16}", i)
        k.lds(f"ds_read_b64 {vr(b+4,2)}, v20 offset:{o2}", i); k.lds(f"ds_read_b64 {vr(b+6,2)}, v20 offset:{o2+8}", i)
    rd(0); rd(1)
    for i in range(32):
        b = FR + (i % 3) * 16
        k.wait_lg(i)
        if i + 2 < 32: rd(i + 2)
        k(f"v_mfma_f32_32x32x16_bf16 {vr(AC0,16)}, {vr(b,4)}, {vr(b+8,4)}, {'0' if i==0 else vr(AC0,16)}")
        k(f"v_mfma_f32_32x32x16_bf16 {vr(AC1,16)}, {vr(b,4)}, {vr(b+12,4)}, {'0' if i==0 else vr(AC1,16)}")
        k(f"v_mfma_f32_32x32x16_bf16 {vr(AC1,16)}, {vr(b+4,4)}, {vr(b+8,4)}, {vr(AC1,16)}")
    k.nop(16)
    k("s_cmp_eq_u32 s24, 0"); k("s_cbranch_scc1 L_cv_noswap")
    for i in range(16): k(f"v_swap_b32 v{AC0+i}, v{AC1+i}")
    k.label("L_cv_noswap")
    k("v_lshlrev_b32 v22, 4, v1")
    k("s_lshl_b32 s85, s22, 12"); k(f"s_add_u32 s85, s85, {C_X}"); k("v_add_u32 v23, s85, v22")
    k("s_xor_b32 s86, s22, 1"); k("s_lshl_b32 s86, s86, 12"); k(f"s_add_u32 s86, s86, {C_X}"); k("v_add_u32 v25, s86, v22")
    k("s_barrier")
    for q in range(4): k.lds(f"ds_write_b128 v23, {vr(AC1+4*q,4)} offset:{1024*q}")
    k.wait_all_lg(); k("s_barrier")
    for q in range(4): k.lds(f"ds_read_b128 {vr(AC1+4*q,4)}, v25 offset:{1024*q}", "x")
    k("v_lshlrev_b32 v26, 4, v16"); k("v_lshl_add_u32 v26, v17, 3, v26")
    k("s_lshl_b32 s84, s24, 9"); k("s_add_u32 s84, s84, s83"); k("v_add_u32 v26, s84, v26")
    for q in range(4): k.lds(f"ds_read_b64 {vr(FR+2*q,2)}, v26 offset:{q*PL + 512}", "uu")
    k.wait_all_lg()
    for r in range(16): k(f"v_add_f32 v{AC0+r}, v{AC0+r}, v{AC1+r}")
    for j in range(8):
        y0, y1 = AC0+2*j, AC0+2*j+1
        k(f"v_cvt_pk_bf16_f32 v{y0}, v{y0}, v{y1}")
        k(f"v_and_b32 v{y1}, 0xffff0000, v{y0}"); k(f"v_lshlrev_b32 v{y0}, 16, v{y0}")
        k(f"v_lshlrev_b32 v27, 16, v{FR+j}"); k(f"v_and_b32 v28, 0xffff0000, v{FR+j}")
        k(f"v_mul_f32 v27, v{DSK}, v27"); k(f"v_mul_f32 v28, v{DSK}, v28")
        k("v_cvt_pk_bf16_f32 v27, v27, v28")
        k("v_and_b32 v28, 0xffff0000, v27"); k("v_lshlrev_b32 v27, 16, v27")
        k(f"v_add_f32 v{y0}, v{y0}, v27"); k(f"v_add_f32 v{y1}, v{y1}, v28")
        k(f"v_cvt_pk_bf16_f32 v{AC1+j}, v{y0}, v{y1}")
    k("s_barrier")
    k("v_lshlrev_b32 v26, 6, v16"); k("v_lshl_add_u32 v26, v17, 3, v26"); k("v_add_u32 v26, s85, v26")
    for q in range(4): k.lds(f"ds_write_b64 v26, {vr(AC1+2*q,2)} offset:{16*q}")
    k.wait_all_lg()
    for j in range(2): k.lds(f"ds_read_b128 {vr(FR+4*j,4)}, v23 offset:{1024*j}")
    k.wait_all_lg()
    k("s_lshl_b32 s84, s25, 12"); k("s_lshl_b32 s86, s24, 11"); k("s_add_u32 s84, s84, s86")
    for j in range(2): k.vmem(f"buffer_store_dwordx4 {vr(FR+4*j,4)}, v22, s[64:67], s84 offen offset:{1024*j}")
    k.label("L_cv_end")
    k("s_endpgm")
    return k.text(), dict(vgpr=160, sgpr=96, accum=160, grid=256, lds=C_LDS)

import struct
def f2h(x): return "0x%08x" % struct.unpack("<I", struct.pack("<f", float(x)))[0]

def gen_g2():
    k = Asm()
    k("s_cmp_ge_u32 s2, 256"); k("s_cbranch_scc1 L_g2_end")
    k(f"s_load_dwordx2 s[4:5], s[0:1], {KA['w2']}")
    k(f"s_load_dwordx2 s[6:7], s[0:1], {KA['out']}")
    k(f"s_load_dwordx2 s[8:9], s[0:1], {KA['ws']}")
    lane_wave(k, 28)
    k("s_and_b32 s29, s2, 7"); k("s_lshr_b32 s30, s2, 3")
    k("s_lshl_b32 s31, s29, 2"); k("s_lshr_b32 s32, s30, 3"); k("s_add_u32 s31, s31, s32")
    k("s_and_b32 s32, s30, 7")
    k("s_waitcnt lgkmcnt(0)")
    k.srd(12, 4, 1792*1024); k.srd(16, 6, 2048*1024); k.srd(20, 8, 64*112*1024, LY.WS_H)
    k.srd(24, 8, 2 << 20, LY.WS_AT); k.srd(36, 8, 8192, LY.WS_G)
    k("v_bfe_u32 v3, v1, 1, 2"); k("v_lshrrev_b32 v4, 5, v1"); k("v_lshl_add_u32 v3, v4, 2, v3"); k("v_lshlrev_b32 v3, 10, v3")
    k("v_bfe_u32 v4, v1, 3, 2"); k("v_lshl_add_u32 v3, v4, 5, v3")
    k("v_and_b32 v4, 1, v1"); k("v_lshl_add_u32 v3, v4, 4, v3")
    k("s_lshl_b32 s33, s32, 7"); k(f"s_mul_i32 s34, s28, {448*1024}"); k("s_add_u32 s33, s33, s34"); k("v_add_u32 v3, s33, v3")
    RING = 8
    k(f"s_mul_i32 s35, s28, {RING*2048}")
    k("v_bfe_u32 v5, v1, 4, 1"); k("v_lshlrev_b32 v5, 7, v5"); k("v_lshrrev_b32 v6, 5, v1"); k("v_lshl_add_u32 v5, v6, 9, v5")
    k("v_and_b32 v7, 15, v1"); k("v_lshl_add_u32 v5, v7, 3, v5"); k("v_add_u32 v5, s35, v5")
    k("v_lshlrev_b32 v8, 4, v1")
    k("s_mul_i32 s40, s31, 224"); k("s_mul_i32 s41, s28, 28"); k("s_add_u32 s40, s40, s41"); k("s_lshl_b32 s40, s40, 10")
    k(f"s_add_u32 s41, s40, {112*1024}")
    ACC = 64; HB = 128; WF = 32
    def issue(i):
        sl = i % RING
        for q in range(2):
            k(f"s_add_u32 m0, s35, {sl*2048 + q*1024}")
            k(f"s_mov_b32 s42, {(16*i + 8*q)*1024}")
            k.vmem("buffer_load_dwordx4 v3, s[12:15], s42 offen lds", ("w", i))
        for tk in range(2):
            k(f"s_add_u32 s42, s{40+tk}, {i*1024}")
            k.vmem(f"buffer_load_dwordx4 {vr(HB+8*sl+4*tk,4)}, v8, s[20:23], s42 offen", ("h", i))
    def wread(i):
        sl = i % RING; b = WF + (i % 2) * 8
        for dt in range(2):
            for s2 in range(2):
                k.lds(f"ds_read_b64_tr_b16 {vr(b+4*dt+2*s2,2)}, v5 offset:{sl*2048 + s2*1024 + dt*256}", ("wf", i))
    for i in range(RING - 1): issue(i)
    k.wait_vm(("w", 0)); wread(0)
    for i in range(28):
        if i + 1 < 28:
            k.wait_vm(("w", i + 1)); wread(i + 1)
        k.wait_both(("h", i), ("wf", i))
        b = WF + (i % 2) * 8; sl = i % RING
        for dt in range(2):
            for tk in range(2):
                a = ACC + 16*(2*dt+tk)
                k(f"v_mfma_f32_32x32x16_bf16 {vr(a,16)}, {vr(b+4*dt,4)}, {vr(HB+8*sl+4*tk,4)}, {'0' if i==0 else vr(a,16)}")
        if i + RING - 1 < 28: issue(i + RING - 1)
    k("s_lshr_b32 s43, s28, 1"); k("s_and_b32 s44, s28, 1")
    k("v_and_b32 v9, 31, v1")
    k("s_lshl_b32 s45, s31, 6"); k("s_lshl_b32 s46, s44, 5"); k("s_add_u32 s45, s45, s46")
    k("s_lshl_b32 s46, s32, 6"); k("s_lshl_b32 s47, s43, 5"); k("s_add_u32 s46, s46, s47")
    k("v_add_u32 v10, s45, v9")
    k("v_lshlrev_b32 v11, 2, v10")
    k.vmem("buffer_load_dword v12, v11, s[36:39], 0 offen", "g")
    k("v_lshlrev_b32 v11, 1, v10"); k("v_lshl_add_u32 v11, v6, 14, v11")
    k("s_lshl_b32 s47, s46, 12")
    AV = 192
    for r in range(16): k(f"v_mov_b32 v{AV+r}, 0")
    for r in range(16):
        q, i = r >> 2, r & 3
        k(f"s_add_u32 s48, s47, {(8*q+i)*4096}")
        k.vmem(f"buffer_load_short_d16_hi v{AV+r}, v11, s[24:27], s48 offen", "a")
    k.nop(8)
    k("s_barrier")
    for tile in range(4):
        k(f"s_cmp_eq_u32 s28, {tile}"); k(f"s_cbranch_scc1 L_g2_skip{tile}")
        k(f"s_sub_u32 s48, s28, {tile}"); k("s_and_b32 s48, s48, 3"); k(f"s_add_u32 s48, s48, {3*tile - 1}"); k("s_lshl_b32 s48, s48, 12")
        k("v_add_u32 v13, s48, v8")
        for q in range(4): k(f"ds_write_b128 v13, {vr(ACC+16*tile+4*q,4)} offset:{1024*q}")
        k.label(f"L_g2_skip{tile}")
    for tile in range(4):
        k(f"s_cmp_lg_u32 s28, {tile}"); k(f"s_cbranch_scc1 L_g2_mv{tile}")
        for r in range(16): k(f"v_mov_b32 v{32+r}, v{ACC+16*tile+r}")
        k.label(f"L_g2_mv{tile}")
    k("s_waitcnt lgkmcnt(0)"); k("s_barrier")
    k("s_mul_i32 s48, s28, 12288"); k("v_add_u32 v13, s48, v8")
    for j in range(12): k(f"ds_read_b128 {vr(64+4*j,4)}, v13 offset:{1024*j}")
    k("s_waitcnt lgkmcnt(0)")
    for src in range(3):
        for r in range(16): k(f"v_add_f32 v{32+r}, v{32+r}, v{64+16*src+r}")
    k.wait_all_vm()
    k("v_sub_f32 v14, 1.0, v12"); rbf(k, 14)
    for j in range(8):
        b0, b1 = 32+2*j, 33+2*j
        k(f"v_cvt_pk_bf16_f32 v{b0}, v{b0}, v{b1}")
        k(f"v_and_b32 v{b1}, 0xffff0000, v{b0}"); k(f"v_lshlrev_b32 v{b0}, 16, v{b0}")
        k(f"v_mul_f32 v{b0}, v14, v{b0}"); k(f"v_mul_f32 v{b1}, v14, v{b1}")
        k(f"v_cvt_pk_bf16_f32 v{b0}, v{b0}, v{b1}")
        k(f"v_and_b32 v{b1}, 0xffff0000, v{b0}"); k(f"v_lshlrev_b32 v{b0}, 16, v{b0}")
        a0, a1 = AV+2*j, AV+2*j+1
        k(f"v_mul_f32 v{a0}, v12, v{a0}"); k(f"v_mul_f32 v{a1}, v12, v{a1}")
        k(f"v_cvt_pk_bf16_f32 v{a0}, v{a0}, v{a1}")
        k(f"v_and_b32 v{a1}, 0xffff0000, v{a0}"); k(f"v_lshlrev_b32 v{a0}, 16, v{a0}")
        k(f"v_add_f32 v{b0}, v{b0}, v{a0}"); k(f"v_add_f32 v{b1}, v{b1}, v{a1}")
        k(f"v_cvt_pk_bf16_f32 v{48+j}, v{b0}, v{b1}")
    k("v_lshlrev_b32 v15, 10, v10"); k("v_lshl_add_u32 v15, v6, 3, v15"); k("s_lshl_b32 s47, s46, 1")
    for q in range(4):
        k.vmem(f"buffer_store_dwordx2 {vr(48+2*q,2)}, v15, s[16:19], s47 offen offset:{16*q}")
    k.label("L_g2_end")
    k("s_endpgm")
    return k.text(), dict(vgpr=208, sgpr=56, accum=208, grid=256, lds=65536)

def main():
    ks = [("aux_kernel", gen_aux), ("g1_kernel", gen_g1), ("conv_kernel", gen_conv), ("g2_kernel", gen_g2)]
    hdr = open("gated_mix__ssm_conv_s4__glu_gated_swiglu__prompt.s.ref").read().split("; Override")[0]
    body = ""; desc = ""; lines = ""
    for name, f in ks:
        t, d = f()
        lines += f"; @launch kernel={name} grid=({d['grid']},1,1) block=(256,1,1) lds={d['lds']}\n"
        body += kernel_header(name) + t
        desc += kernel_desc(name, d['vgpr'], d['sgpr'], d['accum'])
    s = hdr + lines + '.amdgcn_target "amdgcn-amd-amdhsa--gfx950"\n.text\n' + body + '.section .rodata,"a"\n' + desc
    out = sys.argv[1]
    open(out, "w").write(s)
main()
```

```python
class Cnt:
    def __init__(self, maxv):
        self.ops = []; self.done = 0; self.maxv = maxv
    def issue(self, tag): self.ops.append(tag)
    def need(self, pred):
        last = -1
        for i in range(len(self.ops) - 1, self.done - 1, -1):
            if pred(self.ops[i]):
                last = i; break
        if last < 0: return None
        n = len(self.ops) - 1 - last
        if n > self.maxv:
            n = self.maxv
            last = len(self.ops) - 1 - n
        self.done = last + 1
        return n
    def all_done(self): self.done = len(self.ops)
    def outstanding(self): return len(self.ops) - self.done

class Asm:
    def __init__(self):
        self.out = []
        self.vm = Cnt(63); self.lg = Cnt(15)
    def __call__(self, s): self.out.append("    " + s)
    def label(self, l): self.out.append(l + ":")
    def c(self, s): self.out.append("    ; " + s)
    def reset_counters(self):
        self.vm = Cnt(63); self.lg = Cnt(15)
    def vmem(self, s, tag=None):
        assert self.vm.outstanding() < 63, "vmcnt overflow"
        self(s); self.vm.issue(tag)
    def lds(self, s, tag=None):
        self(s); self.lg.issue(tag)
    def wait_vm(self, pred):
        if not callable(pred):
            t = pred; pred = lambda x: x == t
        n = self.vm.need(pred)
        if n is not None: self(f"s_waitcnt vmcnt({n})")
    def wait_lg(self, pred):
        if not callable(pred):
            t = pred; pred = lambda x: x == t
        n = self.lg.need(pred)
        if n is not None: self(f"s_waitcnt lgkmcnt({n})")
    def wait_both(self, pv, pl):
        if pv is not None and not callable(pv):
            t = pv; pv = lambda x: x == t
        if pl is not None and not callable(pl):
            t2 = pl; pl = lambda x: x == t2
        nv = self.vm.need(pv) if pv is not None else None
        nl = self.lg.need(pl) if pl is not None else None
        parts = []
        if nv is not None: parts.append(f"vmcnt({nv})")
        if nl is not None: parts.append(f"lgkmcnt({nl})")
        if parts: self("s_waitcnt " + " ".join(parts))
    def wait_all_vm(self):
        self("s_waitcnt vmcnt(0)"); self.vm.all_done()
    def wait_all_lg(self):
        self("s_waitcnt lgkmcnt(0)"); self.lg.all_done()
    def nop(self, n):
        while n > 0:
            k = min(n, 16); self(f"s_nop {k-1}"); n -= k
    def srd(self, sd, sp, nbytes, add=0):
        if add:
            self(f"s_add_u32 s{sd}, s{sp}, {add:#x}")
            self(f"s_addc_u32 s{sd+1}, s{sp+1}, 0")
        else:
            self(f"s_mov_b32 s{sd}, s{sp}")
            self(f"s_mov_b32 s{sd+1}, s{sp+1}")
        self(f"s_mov_b32 s{sd+2}, {nbytes:#x}")
        self(f"s_mov_b32 s{sd+3}, 0x20000")
    def text(self): return "\n".join(self.out) + "\n"

def vr(b, n=1, f="v"):
    return f"{f}{b}" if n == 1 else f"{f}[{b}:{b+n-1}]"
def sr(b, n=1):
    return f"s{b}" if n == 1 else f"s[{b}:{b+n-1}]"

def kernel_header(name):
    return f".globl {name}\n.p2align 8\n.type {name},@function\n{name}:\n"
def kernel_desc(name, vgpr, sgpr, accum):
    return f""".p2align 6
.amdhsa_kernel {name}
  .amdhsa_next_free_vgpr {vgpr}
  .amdhsa_next_free_sgpr {sgpr}
  .amdhsa_accum_offset {accum}
  .amdhsa_group_segment_fixed_size 0
  .amdhsa_kernarg_size 136
  .amdhsa_user_sgpr_count 2
  .amdhsa_user_sgpr_kernarg_segment_ptr 1
  .amdhsa_system_sgpr_workgroup_id_x 1
.end_amdhsa_kernel
"""

STAMP_V = 250
class Stamper:
    def __init__(self, k, enabled, vreg, launch_idx, stmp=98):
        self.k = k; self.on = enabled; self.v = vreg; self.n = 0; self.li = launch_idx; self.s = stmp
    def __call__(self):
        if not self.on: return
        k = self.k
        k(f"s_memtime s[{self.s}:{self.s+1}]"); k("s_waitcnt lgkmcnt(0)"); k.lg.all_done()
        k(f"v_writelane_b32 v{self.v}, s{self.s}, {self.n}")
        self.n += 1
    def flush(self, swave, ws_stamp, sws):
        if not self.on: return
        k = self.k; s = self.s
        k.srd(92, sws, 1 << 20, ws_stamp)
        k(f"s_lshl_b32 s{s}, s2, 8"); k(f"s_lshl_b32 s{s+1}, s{swave}, 6"); k(f"s_add_u32 s{s}, s{s}, s{s+1}")
        k(f"s_add_u32 s{s}, s{s}, {self.li*65536}")
        k(f"v_mbcnt_lo_u32_b32 v{self.v+1}, -1, 0"); k(f"v_mbcnt_hi_u32_b32 v{self.v+1}, -1, v{self.v+1}")
        k(f"v_lshlrev_b32 v{self.v+1}, 2, v{self.v+1}")
        k("s_mov_b64 exec, 0xffff")
        k(f"buffer_store_dword v{self.v}, v{self.v+1}, s[92:95], s{s} offen")
        k("s_mov_b64 exec, -1")
```

```python
WS_H   = 0
WS_UT  = 8 << 20
WS_AT  = 10 << 20
WS_G   = 12 << 20
WS_FH  = (12 << 20) + 65536
WS_FU  = WS_FH + 4096
WS_FG  = WS_FU + 512
WS_FA  = WS_FH + 8192
WS_STAMP = 13 << 20
WS_SIZE_USED = 14 << 20
WS_DBG = 16 << 20
```

```python
import sys, struct, copy
from asmlib import *
import layout as LY
LOG2E = 0x3fb8aa3b
STAMPS = "--stamps" in sys.argv
def opt(n, d):
    for a in sys.argv:
        if a.startswith(f"--{n}="): return int(a.split("=")[1])
    return d
HPRIO = opt("hprio", 3); MPRIO = opt("mprio", 2); CAPV = opt("cap", 30)
ADDTID = opt("addtid", 1); DORD = opt("dord", 0); PKM = opt("pk", 0); CAP0 = opt("cap0", 16); CAP2 = opt("cap2", 62); ULOAD_EPOCH = opt("uep", 15)
FINE = "--fine" in sys.argv; FINE0 = opt("fine0", 0)
NODMA = "--nodma" in sys.argv
NOKGEN = "--nokgen" in sys.argv
NOLDS = "--nolds" in sys.argv
def f2h(x): return "0x%08x" % struct.unpack("<I", struct.pack("<f", float(x)))[0]

S_U, S_ARE, S_AIM, S_BRE, S_BIM, S_CRE, S_CIM, S_LDT = 4, 6, 8, 10, 12, 14, 16, 18
S_DSK, S_W1, S_W3, S_W2, S_GW, S_OUT, S_DBG, S_WS = 20, 24, 26, 28, 30, 32, 34, 36
S_WAVE, S_XCD, S_IDX, S_MT, S_FT, S_TT, S_NT, S_RW = 38, 39, 40, 41, 42, 43, 44, 45
S_TAG = 46; S_CNT = 47
R_U, R_A, R_B, R_WS = 48, 52, 56, 60
NB = 5; STG = 24576
RB = 40960
L_FLAG = 0; L_TAB = 1024
ROWB = 272; TABW = 32 * ROWB
CPY = 4160; PL = 1536
L_X = RB + 24576; L_UP = L_X + 16384
W2SLOTS = 9; L_W2B = RB + 65536
LDS_TOTAL = RB + NB * STG
RND2 = [0, 0, 2, 4, 4, 4, 6, 8, 8]
SPIN_MAX = 40000

def rbf(k, v):
    k(f"v_cvt_pk_bf16_f32 v{v}, v{v}, v{v}")
    k(f"v_and_b32 v{v}, 0xffff0000, v{v}")

_lbl = [0]
def newlabel(p):
    _lbl[0] += 1; return f"L_{p}_{_lbl[0]}"

def get_tag(k, vt):
    L = newlabel("tag"); D = newlabel("tagd")
    k(f"v_mov_b32 v{vt+1}, 0"); k(f"s_mov_b32 s{S_CNT}, 0")
    k.label(L)
    k(f"global_load_dword v{vt}, v{vt+1}, {sr(S_DBG,2)} sc1")
    k("s_waitcnt vmcnt(0)"); k.vm.all_done()
    k(f"v_readfirstlane_b32 s{S_TAG}, v{vt}")
    k(f"s_add_u32 s{S_CNT}, s{S_CNT}, 1")
    k(f"s_cmp_lg_u32 s{S_TAG}, 0"); k(f"s_cbranch_scc1 {D}")
    k("s_sleep 2")
    k(f"s_cmp_lt_u32 s{S_CNT}, {SPIN_MAX}"); k(f"s_cbranch_scc1 {L}")
    k.label(D)

def poll(k, voff, soff, vt):
    L = newlabel("poll"); D = newlabel("polld")
    k(f"s_mov_b32 s{S_CNT}, 0")
    k.label(L)
    k(f"buffer_load_dword v{vt}, v{voff}, {sr(R_WS,4)}, s{soff} offen sc1")
    k("s_waitcnt vmcnt(0)"); k.vm.all_done()
    k(f"v_cmp_ne_u32 vcc, s{S_TAG}, v{vt}")
    k(f"s_add_u32 s{S_CNT}, s{S_CNT}, 1")
    k(f"s_cbranch_vccz {D}")
    k("s_sleep 1")
    k(f"s_cmp_lt_u32 s{S_CNT}, {SPIN_MAX}"); k(f"s_cbranch_scc1 {L}")
    k.label(D)

def tag_issue(k, vt):
    k(f"v_mov_b32 v{vt+1}, 0"); k.vmem(f"global_load_dword v{vt}, v{vt+1}, {sr(S_DBG,2)} sc1", "tag")
def tag_check(k, vt):
    Lg = newlabel("havetag")
    k.wait_vm("tag"); k(f"v_readfirstlane_b32 s{S_TAG}, v{vt}"); k(f"s_cmp_lg_u32 s{S_TAG}, 0"); k(f"s_cbranch_scc1 {Lg}")
    sv = copy.deepcopy(k.vm); get_tag(k, vt); k.vm = sv
    k.label(Lg)
def flag_issue(k, voff, soff, vt, name):
    k.vmem(f"buffer_load_dword v{vt}, v{voff}, {sr(R_WS,4)}, s{soff} offen sc1", name)
def flag_check(k, voff, soff, vt, name):
    Lg = newlabel("haveflag")
    k.wait_vm(name); k(f"v_cmp_ne_u32 vcc, s{S_TAG}, v{vt}"); k(f"s_cbranch_vccz {Lg}")
    sv = copy.deepcopy(k.vm); poll(k, voff, soff, vt); k.vm = sv
    k.label(Lg)

def publish(k, soff, vt):
    k(f"v_mov_b32 v{vt}, s{S_TAG}"); k(f"v_mov_b32 v{vt+1}, 0")
    k("s_mov_b64 exec, 1")
    k.vmem(f"buffer_store_dword v{vt}, v{vt+1}, {sr(R_WS,4)}, s{soff} offen sc1", "flag")
    k("s_mov_b64 exec, -1")

def gen_H(k, dma_on, st):
    k(f"s_lshr_b32 s64, s{S_RW}, 1"); k(f"s_and_b32 s65, s{S_RW}, 1")
    k("s_lshl_b32 s66, s2, 1"); k("s_add_u32 s66, s66, s64")
    k.srd(R_WS, S_WS, LY.WS_SIZE_USED)
    Lt = newlabel("notag")
    k("s_cmp_lg_u32 s2, 0"); k(f"s_cbranch_scc1 {Lt}"); k(f"s_cmp_lg_u32 s{S_RW}, 3"); k(f"s_cbranch_scc1 {Lt}")
    k("s_memrealtime s[74:75]"); k("s_waitcnt lgkmcnt(0)"); k("s_or_b32 s74, s74, 1")
    k("v_mov_b32 v16, s74"); k("v_mov_b32 v17, 0"); k("s_mov_b64 exec, 1")
    k(f"global_store_dword v17, v16, {sr(S_DBG,2)} sc1"); k("s_mov_b64 exec, -1")
    k.label(Lt)
    k("s_lshl_b32 s69, s66, 8"); k("s_lshl_b32 s70, s65, 7"); k("s_add_u32 s69, s69, s70")
    k("v_lshlrev_b32 v5, 1, v1"); k("v_add_u32 v5, s69, v5")
    for i in range(8): k(f"v_mov_b32 v{8+i}, 0")
    for i, sp in enumerate([S_ARE, S_AIM, S_BRE, S_BIM, S_CRE, S_CIM]):
        k.vmem(f"global_load_short_d16_hi v{8+i}, v5, {sr(sp,2)}", "p")
    k("s_lshl_b32 s70, s66, 1"); k("v_mov_b32 v6, s70")
    k.vmem(f"global_load_short_d16_hi v14, v6, {sr(S_LDT,2)}", "p")
    k.vmem(f"global_load_short_d16_hi v15, v6, {sr(S_DSK,2)}", "p")
    if dma_on:
        k.srd(R_U, S_U, 2048*1024); k.srd(R_A, S_W1, 512*3584); k.srd(R_B, S_W3, 512*3584)
        k("v_lshrrev_b32 v16, 4, v1"); k("v_bfe_u32 v17, v1, 1, 3"); k("v_xor_b32 v17, v17, v16")
        k("v_mul_u32_u24 v2, 3584, v16"); k("v_lshl_add_u32 v2, v17, 5, v2")
        k("v_and_b32 v17, 1, v1"); k("v_lshl_add_u32 v2, v17, 4, v2")
        k(f"s_lshl_b32 s70, s{S_FT}, 8"); k(f"s_mul_i32 s71, s{S_RW}, {8*3584}"); k("s_add_u32 s70, s70, s71")
        k("v_xor_b32 v3, 0x80, v2")
        k("v_add_u32 v2, s70, v2"); k("v_add_u32 v3, s70, v3")
        k("v_lshrrev_b32 v4, 2, v1"); k("v_lshlrev_b32 v4, 10, v4")
        k("v_and_b32 v17, 3, v1"); k("v_xor_b32 v17, v17, v16"); k("v_lshl_add_u32 v4, v17, 4, v4")
        k(f"s_lshl_b32 s70, s{S_MT}, 17"); k(f"s_lshl_b32 s71, s{S_RW}, 15"); k("s_add_u32 s70, s70, s71")
        k("v_add_u32 v4, s70, v4")
        k(f"s_lshl_b32 s72, s{S_RW}, 11")
    m0st = [None]
    def dma_list(sg):
        if not dma_on or sg >= 16 or (NODMA and sg >= NB): return []
        buf = RB + (sg % NB) * STG
        L = []
        def one(lo, so, v, srd):
            def f():
                k(f"s_add_u32 m0, s72, {lo}"); k(f"s_mov_b32 s73, {so}"); m0st[0] = 'dma'
                k.vmem(f"buffer_load_dwordx4 v{v}, {sr(srd,4)}, s73 offen lds", ("w", sg))
            return f
        for m in range(2):
            for q in range(2): L.append(one(buf + m*8192 + q*1024, sg*32*3584 + q*4*3584, 2+m, R_A+4*m))
        for q in range(2): L.append(one(buf + 16384 + q*1024, sg*64 + q*16*1024, 4, R_U))
        return L
    for sg in range(2):
        for f in dma_list(sg): f()
    k(f"s_mul_i32 s67, s{S_RW}, {TABW}"); k(f"s_add_u32 s67, s67, {L_TAB}")
    k(f"s_mul_i32 s68, s64, {2*TABW}"); k(f"s_add_u32 s68, s68, {L_TAB}")
    k("v_lshlrev_b32 v7, 2, v1"); k("v_add_u32 v7, s67, v7")
    k("v_and_b32 v16, 15, v1"); k("v_lshrrev_b32 v17, 4, v1")
    k(f"v_mul_u32_u24 v18, {ROWB}, v16"); k("v_lshl_add_u32 v18, v17, 4, v18"); k("v_add_u32 v18, s67, v18")
    k(f"s_lshl_b32 s70, s{S_RW}, 4"); k(f"s_add_u32 s70, s70, {L_FLAG}"); k("v_mov_b32 v29, s70"); k("v_xor_b32 v30, 16, v29")
    for i in range(4): k(f"v_mov_b32 v{176+i}, 0")
    k.lds("ds_write_b128 v29, v[176:179]")
    k("v_lshlrev_b32 v22, 4, v1")
    k(f"s_lshl_b32 s78, s{S_RW}, 12"); k(f"s_add_u32 s78, s78, {L_X}"); k("v_add_u32 v24, s78, v22"); k("v_xor_b32 v25, 0x1000, v24")
    k(f"s_mul_i32 s71, s{S_RW}, {4*PL}"); k(f"s_add_u32 s71, s71, {L_UP}"); k("v_add_u32 v23, s71, v22")
    def hs_set(i):
        k.wait_all_lg(); k("v_mov_b32 v31, 1"); k.lds(f"ds_write_b32 v29, v31 offset:{4*i}")
    def hs_wait(i):
        Lh = newlabel("hs"); Lhd = newlabel("hsd")
        k(f"s_mov_b32 s{S_CNT}, 0")
        k.label(Lh)
        k(f"ds_read_b32 v31, v30 offset:{4*i}"); k("s_waitcnt lgkmcnt(0)"); k.lg.all_done(); k("v_readfirstlane_b32 s70, v31")
        k(f"s_add_u32 s{S_CNT}, s{S_CNT}, 1"); k("s_cmp_eq_u32 s70, 1"); k(f"s_cbranch_scc1 {Lhd}")
        k(f"s_cmp_lt_u32 s{S_CNT}, 0x100000"); k(f"s_cbranch_scc1 {Lh}")
        k.label(Lhd)

    atoms = []
    def A(w, fn): atoms.append((w, fn))
    Are, Aim, Bre, Bim, Cre, Cim, LDT, DSK = range(8, 16)
    W = {0: 120, 1: 122, 2: 124, 3: 126}
    E = {i: 32 + 2*(i-1) for i in range(1, 9)}; E128 = 48; E512 = 50; PKB = [56, 228, 56, 228, 56]
    cur = [0]
    TP = [180 + 2*i for i in range(8)]
    VQ = [196 + 2*i for i in range(8)]
    WQ = [212 + 2*i for i in range(8)]
    VF, AFR, D, P = 72, 88, 128, 148; DX = 104
    def cmulb(lst):
        for d, x, y in lst: assert d != x and d != y
        def f():
            if PKM:
                for d, x, y in lst: k(f"v_pk_mul_f32 {vr(d,2)}, {vr(x,2)}, {vr(y,2)} op_sel:[0,0] op_sel_hi:[0,1]")
                for d, x, y in lst: k(f"v_pk_fma_f32 {vr(d,2)}, {vr(x,2)}, {vr(y,2)}, {vr(d,2)} op_sel:[1,1,0] op_sel_hi:[1,0,1] neg_lo:[1,0,0]")
                return
            for d, x, y in lst: k(f"v_mul_f32 v{d}, v{x}, v{y}"); k(f"v_mul_f32 v{d+1}, v{x}, v{y+1}")
            for d, x, y in lst: k(f"v_fma_f32 v{d}, -v{x+1}, v{y+1}, v{d}"); k(f"v_fma_f32 v{d+1}, v{x+1}, v{y}, v{d+1}")
        A((2 if PKM else 4)*len(lst), f)
    def setup():
        k.wait_vm("p")
        k(f"s_mov_b32 s76, {LOG2E:#x}"); k("s_mov_b32 s77, 0x32a57060")
        k(f"v_mul_f32 v16, s76, v{LDT}"); k(f"v_fma_f32 v17, v{LDT}, s76, -v16"); k(f"v_fma_f32 v17, v{LDT}, s77, v17")
        k("v_exp_f32 v16, v16"); k("v_mul_f32 v17, 0x3f317218, v17"); k("v_fma_f32 v16, v16, v17, v16")
        rbf(k, 16)
        for r in (Are, Aim, Bre, Bim): k(f"v_mul_f32 v{r}, v16, v{r}")
        k(f"v_mul_f32 v{Are}, s76, v{Are}"); k(f"v_mul_f32 v{Aim}, 0.15915494, v{Aim}")
    A(16, setup)
    def directb(lst):
        def f():
            for i, (d, e) in enumerate(lst):
                k(f"v_mul_f32 v{TP[i]}, {f2h(e)}, v{Are}"); k(f"v_mul_f32 v{TP[i]+1}, {f2h(e)}, v{Aim}")
            for i, (d, e) in enumerate(lst):
                k(f"v_exp_f32 v{TP[i]}, v{TP[i]}"); k(f"v_fract_f32 v{TP[i]+1}, v{TP[i]+1}")
            for i, (d, e) in enumerate(lst):
                k(f"v_cos_f32 v{d}, v{TP[i]+1}"); k(f"v_sin_f32 v{d+1}, v{TP[i]+1}")
            k("s_nop 0")
            for i, (d, e) in enumerate(lst):
                k(f"v_mul_f32 v{d}, v{TP[i]}, v{d}"); k(f"v_mul_f32 v{d+1}, v{TP[i]}, v{d+1}")
        A(11*len(lst), f)
    def packb(lst):
        def f():
            for slot, v, neg in lst: k(f"v_cvt_pk_bf16_f32 v{PK+slot}, v{v}, {'-' if neg else ''}v{v+1}")
        PK = PKB[cur[0]]
        A(len(lst), f)
    def wr(row, reg):
        def f():
            if not ADDTID: return k.lds(f"ds_write_b32 v7, v{reg} offset:{row*ROWB}")
            if m0st[0] != 'tab': k("s_mov_b32 m0, s67"); k("s_nop 0"); m0st[0] = 'tab'
            k.lds(f"ds_write_addtid_b32 v{reg} offset:{row*ROWB}")
        return (1, f)
    V32 = 52
    directb([(E[1], 1), (E[8], 8), (E128, 128), (E512, 512), (E[4], 4), (V32, 32)])
    cmulb([(W[0], Cre, Bre), (E[2], E[1], E[1]), (VQ[2], E[8], E[8]), (E[5], E[4], E[1])])
    cmulb([(W[1], W[0], E128), (E[3], E[2], E[1]), (VQ[3], VQ[2], E[8]), (E[6], E[4], E[2]), (TP[0], E128, E128)])
    cmulb([(W[2], W[0], TP[0]), (W[3], W[1], TP[0]), (E[7], E[4], E[3]), (VQ[5], E[8], V32), (VQ[6], VQ[2], V32), (VQ[7], VQ[3], V32)])
    A(1, lambda: k(f"v_mov_b32 v{PKB[0]}, 0x3f80"))
    packb([(1, E[8], 0), (2, VQ[2], 0), (3, VQ[3], 0), (4, V32, 0), (5, VQ[5], 0), (6, VQ[6], 0), (7, VQ[7], 0)])
    cmulb([(VQ[0], V32, V32), (VQ[1], VQ[5], V32), (VQ[2], VQ[6], V32), (VQ[3], VQ[7], V32)])
    cmulb([(VQ[4+i], VQ[i], V32) for i in range(4)])
    packb([(8+i, VQ[i], 0) for i in range(8)])
    pend = [wr(j, PKB[0]+j) for j in range(16)] + [(4, lambda: [k.lds(f"ds_read_b128 {vr(VF+4*s,4)}, v18 offset:{64*s}") for s in range(4)])]
    def prods(items):
        direct_p = [(s_, w, True) for slots, w, x in items if x == 0 for s_ in slots]
        pr = [(slots, w, x) for slots, w, x in items if x]
        if direct_p: packb(direct_p)
        for i in range(0, len(pr), 8):
            b = pr[i:i+8]
            for h in range(0, len(b), 4):
                cmulb([(TP[h+j], w, E[x]) for j, (slots, w, x) in enumerate(b[h:h+4])])
            packb([(s_, TP[j], True) for j, (slots, w, x) in enumerate(b) for s_ in slots])
    def tile_compute(tau):
        items = []
        if tau < 2:
            for g in range(4):
                xs = [(4*tau + i) if g < 2 else RND2[4*tau + i] for i in range(4)]
                for x in sorted(set(xs)): items.append(([4*g + i for i in range(4) if xs[i] == x], W[g], x))
        elif tau == 2:
            cmulb([(WQ[g], W[g], E512) for g in range(4)])
            for g in range(4):
                items.append(([4*g], W[g], 8))
                for i, x in enumerate([0, 4, 8]): items.append(([4*g + 1 + i], WQ[g], x))
        else:
            cmulb([(WQ[4+g], WQ[g], E512) for g in range(4)])
            cmulb([(WQ[g], WQ[4+g], E512) for g in range(4)])
            for b in range(8):
                w = WQ[4+b] if b < 4 else WQ[b-4]
                items.append(([2*b], w, 0)); items.append(([2*b+1], w, 8))
        prods(items)
    def tile_mfma(tau):
        def f1():
            for s in range(4): k.lds(f"ds_read_b128 {vr(AFR+4*s,4)}, v18 offset:{16*ROWB + 64*s}", ("af", tau, s))
        def f2():
            dd = D + 4*tau
            for s in range(4):
                k.wait_lg(("af", tau, s))
                k(f"v_mfma_f32_16x16x32_bf16 {vr(dd,4)}, {vr(AFR+4*s,4)}, {vr(VF+4*s,4)}, {'0' if s==0 else vr(dd,4)}")
        return [(4, f1), (16, f2)]
    def merge(a, b):
        ta = max(1, sum(x[0] for x in a)); tb = max(1, sum(x[0] for x in b)); out = []; i = j = 0; wa = wb = 0
        while i < len(a) or j < len(b):
            if j >= len(b) or (i < len(a) and wa / ta <= wb / tb): out.append(a[i]); wa += a[i][0]; i += 1
            else: out.append(b[j]); wb += b[j][0]; j += 1
        return out
    for tau in range(4):
        cur[0] = tau + 1
        n0 = len(atoms); tile_compute(tau); c_ = atoms[n0:]; del atoms[n0:]
        atoms.extend(merge(c_, pend))
        pend = [wr(16+j, PKB[tau+1]+j) for j in range(16)] + tile_mfma(tau)
    atoms.extend(pend)
    def xwrite():
        k.nop(8)
        for q in range(4): k.lds(f"ds_write_b128 v24, {vr(D+4*q,4)} offset:{1024*q}")
        hs_set(0)
    atoms.append((0, ('epoch', 13))); A(24, xwrite)
    def xread():
        hs_wait(0)
        for q in range(4): k.lds(f"ds_read_b128 {vr(DX+4*q,4)}, v25 offset:{1024*q}")
        k.wait_all_lg()
        for r in range(16): k(f"v_add_f32 v{D+r}, v{D+r}, v{DX+r}")
    atoms.append((0, 'break')); A(40, xread)
    def write_block(e, addr):
        for j, (lo, hi) in enumerate([(7,6),(5,4),(3,2),(1,0)]): k(f"v_cvt_pk_bf16_f32 v{P+j}, v{e[lo]}, v{e[hi]}")
        for j, (lo, hi) in enumerate([(8,7),(6,5),(4,3),(2,1)]): k(f"v_cvt_pk_bf16_f32 v{P+4+j}, v{e[lo]}, v{e[hi]}")
        k(f"ds_write_b128 v{addr}, {vr(P,4)} offset:16")
        k(f"ds_write_b32 v{addr}, v{P} offset:{2*CPY + 12}"); k(f"ds_write_b32 v{addr}, v{P+3} offset:{2*CPY + 24}")
        k(f"ds_write_b32 v{addr}, v{P+4} offset:{CPY + 12}"); k(f"ds_write_b32 v{addr}, v{P+7} offset:{CPY + 24}")
        k(f"ds_write_b64 v{addr}, {vr(P+4,2)} offset:{3*CPY + 8}")
        k(f"ds_write_b64 v{addr}, {vr(P+6,2)} offset:{3*CPY + 16}")
        k(f"v_mov_b32 v{P+8}, v{P+1}"); k(f"v_mov_b32 v{P+9}, v{P+2}"); k(f"v_mov_b32 v{P+10}, v{P+5}"); k(f"v_mov_b32 v{P+11}, v{P+6}")
        k(f"ds_write_b64 v{addr}, {vr(P+8,2)} offset:{2*CPY + 16}")
        k(f"ds_write_b64 v{addr}, {vr(P+10,2)} offset:{CPY + 16}")
    def expand(part):
        def f():
            LB = newlabel("exB"); LJ = newlabel("exJ")
            if part == 0:
                k("v_and_b32 v16, 15, v1"); k("v_lshrrev_b32 v17, 4, v1")
                k("v_lshlrev_b32 v19, 4, v16"); k(f"v_sub_u32 v19, {4080 - 16}, v19"); k("v_add_u32 v19, s68, v19")
            k("s_cmp_eq_u32 s65, 0"); k(f"s_cbranch_scc0 {LB}")
            if part == 0:
                k(f"v_mul_u32_u24 v20, {CPY}, v17"); k("v_lshl_add_u32 v20, v16, 2, v20"); k("v_add_u32 v20, s68, v20")
                k("v_mov_b32 v21, 0"); k(f"ds_write_b32 v20, v21 offset:{2*2044}")
                k("v_lshlrev_b32 v20, 8, v17"); k("v_sub_u32 v20, v19, v20")
                write_block([D+i for i in range(9)], 20)
                k(f"v_cvt_pk_bf16_f32 v21, v{D}, v{D}"); k("v_mov_b32 v31, s68")
                k("s_mov_b64 exec, 1")
                k(f"ds_write_b16 v31, v21 offset:{CPY + 2*2046}"); k(f"ds_write_b16 v31, v21 offset:{3*CPY + 2*2044}")
                k("s_mov_b64 exec, -1")
            else:
                k("v_subrev_u32 v20, 1024, v20")
                a, b, c = D+9, D+10, D+11
                write_block([a,a,a,b,b,b,c,c,c], 20)
            k(f"s_branch {LJ}")
            k.label(LB)
            if part == 0:
                k("v_and_b32 v21, 1, v16"); k("v_cmp_eq_u32 vcc, 0, v21"); k("s_nop 1")
                k(f"v_cndmask_b32 v{D+16}, v{D+13}, v{D+12}, vcc"); k(f"v_cndmask_b32 v{D+17}, v{D+15}, v{D+14}, vcc")
                k("v_lshlrev_b32 v20, 9, v17"); k("v_sub_u32 v20, v19, v20"); k("v_subrev_u32 v20, 2048, v20")
                write_block([D+12]*4 + [D+16] + [D+13]*4, 20)
            else:
                k("v_subrev_u32 v20, 256, v20")
                write_block([D+14]*4 + [D+17] + [D+15]*4, 20)
            k.label(LJ)
            k.lg.issue("x")
        return [(60, f)]
    atoms.extend(expand(0)); atoms.extend(expand(1)); A(8, lambda: hs_set(1))
    def u_flag():
        tag_check(k, 244)
        k("v_and_b32 v246, 31, v1"); k("v_lshlrev_b32 v246, 2, v246")
        k("s_lshr_b32 s79, s66, 7"); k("s_lshl_b32 s79, s79, 7"); k(f"s_add_u32 s79, s79, {LY.WS_FU}")
        flag_issue(k, 246, 79, 247, "fu")
    def uload():
        flag_check(k, 246, 79, 247, "fu")
        k("v_lshlrev_b32 v246, 6, v1")
        k("s_lshl_b32 s70, s66, 12"); k(f"s_add_u32 s70, s70, {LY.WS_UT}")
        for p in range(4):
            k.vmem(f"buffer_load_dwordx4 {vr(160+4*p,4)}, v246, {sr(R_WS,4)}, s70 offen offset:{16*p} sc1", "ut")

    if HPRIO: k(f"s_setprio {HPRIO}")
    ai = 0; nxt_dma = [2]
    if not FINE: st()
    for s in range(17):
        if FINE and FINE0 <= s < FINE0 + 5: st()
        k.wait_vm(("w", s))
        if FINE and FINE0 <= s < FINE0 + 5: st()
        k("s_barrier")
        if (FINE and FINE0 <= s < FINE0 + 5) or (not FINE and s in (0, 8, 16)): st()
        if FINE and s == FINE0 + 4: st.on = False
        dl = []
        while nxt_dma[0] < min(16, s - 1 + NB if s >= 2 else NB) and len(dl) < 12:
            dl += dma_list(nxt_dma[0]); nxt_dma[0] += 1
        cap = 100000 if s == 16 else (CAPV if len(dl) == 6 else (CAP0 if dl else CAP2))
        if s == ULOAD_EPOCH - 5: tag_issue(k, 244)
        if s == ULOAD_EPOCH - 2: u_flag(); cap -= 8
        if s == ULOAD_EPOCH: uload(); cap -= 20
        cl_ = []; wc = 0
        while ai < len(atoms):
            a = atoms[ai]
            if a[0] == 0:
                if a[1] == 'break':
                    ai += 1
                    if s < 16: break
                    continue
                if s < a[1][1]: break
                ai += 1; continue
            if wc + a[0] > cap and cl_: break
            cl_.append(a); wc += a[0]; ai += 1
        if dma_on and '--verbose' in sys.argv: print('epoch', s, 'dma', len(dl), 'C', wc)
        if NOKGEN: cl_ = []
        dla = [(1, f) for f in dl]
        seq = merge(dla, cl_) if DORD == 0 else (dla + cl_ if DORD == 1 else cl_ + dla)
        for a in seq: a[1]()
    if HPRIO: k("s_setprio 0")
    st()
    k("v_and_b32 v16, 31, v1"); k("v_lshrrev_b32 v17, 5, v1")
    k(f"v_mul_u32_u24 v21, {PL}, v17"); k("v_lshl_add_u32 v21, v16, 4, v21"); k("v_add_u32 v21, s71, v21")
    k.lds("ds_write_b128 v21, v[176:179]"); k.lds(f"ds_write_b128 v21, v[176:179] offset:{2*PL}")
    k.wait_vm("ut")
    for p in range(4): k.lds(f"ds_write_b128 v23, {vr(160+4*p,4)} offset:{p*PL + 512}")
    k("v_sub_u32 v18, 3, v16"); k("v_and_b32 v18, 3, v18")
    k(f"v_mul_u32_u24 v20, {CPY - 2}, v18")
    k("v_sub_u32 v19, 31, v16"); k("v_lshl_add_u32 v19, v17, 3, v19"); k("v_lshl_add_u32 v20, v19, 1, v20")
    k("s_lshl_b32 s70, s65, 10"); k("s_sub_u32 s70, s68, s70"); k("v_add_u32 v20, s70, v20")
    k("s_lshl_b32 s70, s65, 8"); k("s_sub_u32 s70, 256, s70"); k("v_add_u32 v21, s70, v21")
    if not NOKGEN: hs_wait(1)
    AC0, AC1, FR = 32, 48, 64
    steps = [(dl, kh) for dl in range(16) for kh in range(2)]
    def rd(i):
        dl, kh = steps[i]; b = FR + (i % 3) * 16
        o1 = 2*(2016 - 32*dl + 16*kh); o2 = o1 - 2048
        k.lds(f"ds_read_b64 {vr(b,2)}, v20 offset:{o1}", i); k.lds(f"ds_read_b64 {vr(b+2,2)}, v20 offset:{o1+8}", i)
        k.lds(f"ds_read_b128 {vr(b+8,4)}, v21 offset:{2*kh*PL + (16-dl)*16}", i)
        k.lds(f"ds_read_b128 {vr(b+12,4)}, v21 offset:{2*kh*PL + (48-dl)*16}", i)
        k.lds(f"ds_read_b64 {vr(b+4,2)}, v20 offset:{o2}", i); k.lds(f"ds_read_b64 {vr(b+6,2)}, v20 offset:{o2+8}", i)
    rd(0); rd(1)
    for i in range(32):
        b = FR + (i % 3) * 16
        k.wait_lg(i)
        if i + 2 < 32: rd(i + 2)
        k(f"v_mfma_f32_32x32x16_bf16 {vr(AC0,16)}, {vr(b,4)}, {vr(b+8,4)}, {'0' if i==0 else vr(AC0,16)}")
        k(f"v_mfma_f32_32x32x16_bf16 {vr(AC1,16)}, {vr(b,4)}, {vr(b+12,4)}, {'0' if i==0 else vr(AC1,16)}")
        k(f"v_mfma_f32_32x32x16_bf16 {vr(AC1,16)}, {vr(b+4,4)}, {vr(b+8,4)}, {vr(AC1,16)}")
    k("v_lshlrev_b32 v26, 4, v16"); k("v_lshl_add_u32 v26, v17, 3, v26")
    k("s_lshl_b32 s70, s65, 9"); k("s_add_u32 s70, s70, s71"); k("v_add_u32 v26, s70, v26")
    for q in range(4): k.lds(f"ds_read_b64 {vr(FR+2*q,2)}, v26 offset:{q*PL + 512}", "uu")
    k.nop(8)
    st()
    L = newlabel("nosw")
    k("s_cmp_eq_u32 s65, 0"); k(f"s_cbranch_scc1 {L}")
    for i in range(16): k(f"v_swap_b32 v{AC0+i}, v{AC1+i}")
    k.label(L)
    for q in range(4): k.lds(f"ds_write_b128 v24, {vr(AC1+4*q,4)} offset:{1024*q}")
    hs_set(2); hs_wait(2)
    st()
    for q in range(4): k.lds(f"ds_read_b128 {vr(AC1+4*q,4)}, v25 offset:{1024*q}", "x")
    k.wait_all_lg()
    for r in range(16): k(f"v_add_f32 v{AC0+r}, v{AC0+r}, v{AC1+r}")
    for j in range(8):
        y0, y1 = AC0+2*j, AC0+2*j+1
        k(f"v_cvt_pk_bf16_f32 v{y0}, v{y0}, v{y1}")
        k(f"v_and_b32 v{y1}, 0xffff0000, v{y0}"); k(f"v_lshlrev_b32 v{y0}, 16, v{y0}")
        k(f"v_lshlrev_b32 v27, 16, v{FR+j}"); k(f"v_and_b32 v28, 0xffff0000, v{FR+j}")
        k(f"v_mul_f32 v27, v{DSK}, v27"); k(f"v_mul_f32 v28, v{DSK}, v28")
        k("v_cvt_pk_bf16_f32 v27, v27, v28")
        k("v_and_b32 v28, 0xffff0000, v27"); k("v_lshlrev_b32 v27, 16, v27")
        k(f"v_add_f32 v{y0}, v{y0}, v27"); k(f"v_add_f32 v{y1}, v{y1}, v28")
        k(f"v_cvt_pk_bf16_f32 v{AC1+j}, v{y0}, v{y1}")
    k("v_lshlrev_b32 v26, 6, v16"); k("v_lshl_add_u32 v26, v17, 3, v26"); k("v_add_u32 v26, s71, v26")
    for q in range(4): k.lds(f"ds_write_b64 v26, {vr(AC1+2*q,2)} offset:{16*q}")
    k.wait_all_lg()
    for j in range(2): k.lds(f"ds_read_b128 {vr(FR+4*j,4)}, v23 offset:{1024*j}")
    k.wait_all_lg()
    k("s_lshl_b32 s70, s66, 12"); k("s_lshl_b32 s73, s65, 11"); k("s_add_u32 s70, s70, s73"); k(f"s_add_u32 s70, s70, {LY.WS_AT}")
    for j in range(2): k.vmem(f"buffer_store_dwordx4 {vr(FR+4*j,4)}, v22, {sr(R_WS,4)}, s70 offen offset:{1024*j} sc1")
    k("s_lshr_b32 s70, s66, 6"); k("s_lshl_b32 s70, s70, 9"); k("s_lshl_b32 s73, s65, 8"); k("s_add_u32 s70, s70, s73")
    k("s_and_b32 s73, s66, 63"); k("s_lshl_b32 s73, s73, 2"); k("s_add_u32 s70, s70, s73"); k(f"s_add_u32 s70, s70, {LY.WS_FA}")
    st()
    k.wait_all_vm()
    publish(k, 70, 16)
    st()
    st.on = STAMPS
    st.flush(S_RW, LY.WS_STAMP, S_WS)
    k("s_endpgm")

def g2_setup(k):
    k.srd(R_A, S_W2, 1792*1024); k.srd(R_B, S_OUT, 2048*1024)
    k("v_lshrrev_b32 v4, 3, v1"); k("v_lshlrev_b32 v2, 10, v4")
    k("v_and_b32 v4, 2, v4"); k("v_bfe_u32 v5, v1, 1, 2"); k("v_xor_b32 v4, v4, v5"); k("v_lshl_add_u32 v2, v4, 5, v2")
    k("v_and_b32 v4, 1, v1"); k("v_lshl_add_u32 v2, v4, 4, v2")
    k(f"s_lshl_b32 s64, s{S_NT}, 7"); k(f"s_mul_i32 s65, s{S_RW}, {448*1024}"); k("s_add_u32 s64, s64, s65"); k("v_add_u32 v2, s64, v2")
    k(f"s_mul_i32 s66, s{S_RW}, {W2SLOTS*2048}"); k(f"s_add_u32 s66, s66, {L_W2B - W2SLOTS*2048}")
    k(f"s_cmp_eq_u32 s{S_RW}, 0"); k(f"s_cselect_b32 s66, {RB}, s66")
    k("v_bfe_u32 v4, v1, 2, 2"); k("v_lshrrev_b32 v5, 5, v1"); k("v_lshl_add_u32 v5, v5, 2, v4"); k("v_lshlrev_b32 v6, 7, v5")
    k("v_and_b32 v4, 2, v4"); k("v_bfe_u32 v5, v1, 4, 1"); k("v_xor_b32 v4, v4, v5"); k("v_lshl_add_u32 v6, v4, 5, v6")
    k("v_and_b32 v4, 3, v1"); k("v_lshl_add_u32 v6, v4, 3, v6")
    k("v_xor_b32 v7, 64, v6"); k("v_add_u32 v6, s66, v6"); k("v_add_u32 v7, s66, v7")
    k("v_lshlrev_b32 v8, 4, v1")

def w2dma(k, i):
    sl = i % W2SLOTS
    for q in range(2):
        k(f"s_add_u32 m0, s66, {sl*2048 + q*1024}")
        k(f"s_mov_b32 s67, {(16*i + 8*q)*1024}")
        k.vmem(f"buffer_load_dwordx4 v2, {sr(R_A,4)}, s67 offen lds", ("w2", i))

def gen_G2(k, st, ndma):
    ACC = 24
    pool = list(range(88, 256, 8))
    NWR = 11
    wreg = {}; hreg = {}
    nd = [ndma]; nr = [0]
    def wread():
        i = nr[0]; b = pool.pop(0); wreg[i] = b; sl = i % W2SLOTS
        k.wait_vm(("w2", i))
        for dt in range(2):
            for s2 in range(2):
                k.lds(f"ds_read_b64_tr_b16 {vr(b+4*dt+2*s2,2)}, v{6+dt} offset:{sl*2048 + s2*1024}", ("wf", i))
        nr[0] += 1
    def more_dma():
        while nd[0] < 28 and nd[0] - W2SLOTS < nr[0] - 1:
            k.wait_lg(("wf", nd[0] - W2SLOTS)) if nd[0] >= W2SLOTS else None
            w2dma(k, nd[0]); nd[0] += 1
    while nd[0] < W2SLOTS: w2dma(k, nd[0]); nd[0] += 1
    for _ in range(NWR):
        wread(); more_dma()
    st()
    k("v_min_u32 v9, 6, v1"); k("v_lshlrev_b32 v9, 2, v9")
    k(f"s_lshl_b32 s68, s{S_TT}, 7"); k(f"s_mul_i32 s69, s{S_RW}, 28"); k("s_add_u32 s68, s68, s69"); k(f"s_add_u32 s68, s68, {LY.WS_FH}")
    poll(k, 9, 68, 10)
    st()
    k(f"s_mul_i32 s68, s{S_TT}, 224"); k("s_add_u32 s68, s68, s69"); k("s_lshl_b32 s68, s68, 10")
    k(f"s_add_u32 s69, s68, {112*1024}")
    nh = [0]
    def hload():
        i = nh[0]; b = pool.pop(0); hreg[i] = b
        for tk in range(2):
            if i % 4 == 0 and i: k(f"s_add_u32 s{68+tk}, s{68+tk}, 4096")
            k.vmem(f"buffer_load_dwordx4 {vr(b+4*tk,4)}, v8, {sr(R_WS,4)}, s{68+tk} offen offset:{(i%4)*1024} sc1", ("h", i))
        nh[0] += 1
    while pool: hload()
    for i in range(28):
        if i == 20:
            pass
        k.wait_both(("h", i), ("wf", i))
        for dt in range(2):
            for tk in range(2):
                a = ACC + 16*(2*dt+tk)
                k(f"v_mfma_f32_32x32x16_bf16 {vr(a,16)}, {vr(wreg[i]+4*dt,4)}, {vr(hreg[i]+4*tk,4)}, {'0' if i==0 else vr(a,16)}")
        pool.append(wreg[i]); pool.append(hreg[i])
        if nh[0] < 28: hload()
        if nr[0] < 28: wread(); more_dma()
        elif nh[0] < 28: hload()
    st()
    k(f"s_lshr_b32 s70, s{S_RW}, 1"); k(f"s_and_b32 s71, s{S_RW}, 1")
    k("v_and_b32 v9, 31, v1"); k("v_lshrrev_b32 v11, 5, v1")
    k(f"s_lshl_b32 s72, s{S_NT}, 9"); k(f"s_lshr_b32 s73, s{S_TT}, 4"); k("s_lshl_b32 s73, s73, 8"); k("s_add_u32 s72, s72, s73")
    k("s_lshl_b32 s73, s70, 7"); k("s_add_u32 s72, s72, s73"); k(f"s_add_u32 s72, s72, {LY.WS_FA - LY.WS_FH}")
    k("v_lshlrev_b32 v12, 2, v9"); k("v_add_u32 v12, s72, v12")
    k(f"s_lshl_b32 s72, s{S_TT}, 4"); k(f"s_add_u32 s72, s72, {LY.WS_FG - LY.WS_FH}")
    k("v_and_b32 v13, 3, v1"); k("v_lshlrev_b32 v13, 2, v13"); k("v_add_u32 v13, s72, v13")
    k("v_cmp_gt_u32 vcc, 32, v1"); k("s_nop 1"); k("v_cndmask_b32 v12, v13, v12, vcc")
    k(f"s_mov_b32 s72, {LY.WS_FH}")
    poll(k, 12, 72, 13)
    k(f"s_lshl_b32 s72, s{S_TT}, 6"); k("s_lshl_b32 s73, s71, 5"); k("s_add_u32 s72, s72, s73")
    k(f"s_lshl_b32 s74, s{S_NT}, 6"); k("s_lshl_b32 s73, s70, 5"); k("s_add_u32 s74, s74, s73")
    k("v_add_u32 v10, s72, v9")
    k("v_lshlrev_b32 v12, 2, v10"); k(f"s_mov_b32 s73, {LY.WS_G}")
    k.vmem(f"buffer_load_dword v14, v12, {sr(R_WS,4)}, s73 offen sc1", "g")
    k("v_lshlrev_b32 v12, 1, v10"); k("v_lshl_add_u32 v12, v11, 14, v12")
    k("s_lshl_b32 s75, s74, 12"); k(f"s_add_u32 s75, s75, {LY.WS_AT}")
    AV = 200
    for r in range(16): k(f"v_mov_b32 v{AV+r}, 0")
    for r in range(16):
        q, i = r >> 2, r & 3
        k(f"s_add_u32 s73, s75, {(8*q+i)*4096}")
        k.vmem(f"buffer_load_short_d16_hi v{AV+r}, v12, {sr(R_WS,4)}, s73 offen sc1", "a")
    st()
    OWN = 96
    k("v_add_u32 v13, s66, v8")
    for tile in range(4):
        Ls = newlabel("rs"); Le = newlabel("re")
        k(f"s_cmp_eq_u32 s{S_RW}, {tile}"); k(f"s_cbranch_scc1 {Ls}")
        for q in range(4): k(f"ds_write_b128 v13, {vr(ACC+16*tile+4*q,4)} offset:{4096*tile + 1024*q}")
        k(f"s_branch {Le}")
        k.label(Ls)
        for r in range(16): k(f"v_mov_b32 v{OWN+r}, v{ACC+16*tile+r}")
        k.label(Le)
    k("s_waitcnt lgkmcnt(0)"); k("s_barrier")
    k(f"s_lshl_b32 s73, s{S_RW}, 12")
    for src in range(1, 4):
        k(f"s_add_u32 s72, s{S_RW}, {src}"); k("s_and_b32 s72, s72, 3")
        k(f"s_mul_i32 s75, s72, {W2SLOTS*2048}"); k(f"s_add_u32 s75, s75, {L_W2B - W2SLOTS*2048}")
        k("s_cmp_eq_u32 s72, 0"); k(f"s_cselect_b32 s75, {RB}, s75"); k("s_add_u32 s75, s75, s73")
        k("v_add_u32 v13, s75, v8")
        for q in range(4): k(f"ds_read_b128 {vr(112+16*(src-1)+4*q,4)}, v13 offset:{1024*q}")
    k("s_waitcnt lgkmcnt(0)")
    for src in range(3):
        for r in range(16): k(f"v_add_f32 v{OWN+r}, v{OWN+r}, v{112+16*src+r}")
    st()
    k.wait_all_vm()
    k("v_sub_f32 v15, 1.0, v14"); rbf(k, 15)
    for j in range(8):
        b0, b1 = OWN+2*j, OWN+2*j+1
        k(f"v_cvt_pk_bf16_f32 v{b0}, v{b0}, v{b1}")
        k(f"v_and_b32 v{b1}, 0xffff0000, v{b0}"); k(f"v_lshlrev_b32 v{b0}, 16, v{b0}")
        k(f"v_mul_f32 v{b0}, v15, v{b0}"); k(f"v_mul_f32 v{b1}, v15, v{b1}")
        k(f"v_cvt_pk_bf16_f32 v{b0}, v{b0}, v{b1}")
        k(f"v_and_b32 v{b1}, 0xffff0000, v{b0}"); k(f"v_lshlrev_b32 v{b0}, 16, v{b0}")
        a0, a1 = AV+2*j, AV+2*j+1
        k(f"v_mul_f32 v{a0}, v14, v{a0}"); k(f"v_mul_f32 v{a1}, v14, v{a1}")
        k(f"v_cvt_pk_bf16_f32 v{a0}, v{a0}, v{a1}")
        k(f"v_and_b32 v{a1}, 0xffff0000, v{a0}"); k(f"v_lshlrev_b32 v{a0}, 16, v{a0}")
        k(f"v_add_f32 v{b0}, v{b0}, v{a0}"); k(f"v_add_f32 v{b1}, v{b1}, v{a1}")
        k(f"v_cvt_pk_bf16_f32 v{112+j}, v{b0}, v{b1}")
    k("v_lshlrev_b32 v16, 10, v10"); k("v_lshl_add_u32 v16, v11, 3, v16"); k("s_lshl_b32 s73, s74, 1")
    for q in range(4):
        k.vmem(f"buffer_store_dwordx2 {vr(112+2*q,2)}, v16, {sr(R_B,4)}, s73 offen offset:{16*q}")
    st()
    st.flush(S_RW, LY.WS_STAMP, S_WS)
    k("s_endpgm")

def gen_M(k, st):
    k.srd(R_WS, S_WS, LY.WS_SIZE_USED)
    g2_setup(k)
    k(f"s_lshr_b32 s76, s{S_RW}, 1"); k(f"s_and_b32 s77, s{S_RW}, 1")
    k("v_bfe_u32 v22, v1, 4, 1"); k("v_lshrrev_b32 v23, 5, v1"); k("v_bfe_u32 v24, v1, 2, 2")
    k("v_lshlrev_b32 v25, 13, v22"); k("v_lshl_add_u32 v25, v23, 11, v25"); k("v_lshl_add_u32 v25, v24, 8, v25")
    k("v_lshl_add_u32 v26, v22, 2, v24"); k("v_lshl_add_u32 v25, v26, 5, v25")
    k("v_and_b32 v26, 3, v1"); k("v_lshl_add_u32 v25, v26, 3, v25")
    k("s_lshl_b32 s78, s77, 7"); k("v_xor_b32 v25, s78, v25"); k(f"v_add_u32 v25, {RB}, v25")
    for t in range(4):
        k(f"v_xor_b32 v{10+t}, {32*t}, v25"); k(f"v_add_u32 v{14+t}, {3*STG}, v{10+t}")
    k("v_and_b32 v25, 31, v1"); k("v_bfe_u32 v26, v1, 2, 2"); k("v_xor_b32 v26, v26, v23")
    k("v_lshlrev_b32 v25, 6, v25"); k("v_lshl_add_u32 v25, v26, 4, v25")
    k("s_lshl_b32 s78, s76, 12"); k(f"s_add_u32 s78, s78, {RB + 16384}")
    k("v_xor_b32 v19, 32, v25"); k("v_add_u32 v18, s78, v25"); k("v_add_u32 v19, s78, v19")
    k(f"v_add_u32 v20, {3*STG}, v18"); k(f"v_add_u32 v21, {3*STG}, v19")
    ACC, AF, BF = 64, 32, 48
    def aread(kk, t):
        sg = kk >> 1; e = kk & 1; b = sg % NB
        reg = (10 if b < 3 else 14) + t; off = (b if b < 3 else b - 3) * STG
        for s2 in range(2):
            k.lds(f"ds_read_b64_tr_b16 {vr(AF+4*t+2*s2,2)}, v{reg} offset:{off + e*4096 + s2*1024}", ("a", kk, t))
    def bread(kk):
        sg = kk >> 1; e = kk & 1; b = sg % NB
        reg = (18 if b < 3 else 20) + e; off = (b if b < 3 else b - 3) * STG
        for tk in range(2):
            k.lds(f"ds_read_b128 {vr(BF+8*(kk&1)+4*tk,4)}, v{reg} offset:{off + tk*2048}", ("b", kk))
    st()
    k("s_barrier")
    st()
    bread(0)
    for t in range(4): aread(0, t)
    for kk in range(32):
        if (kk & 1) and kk < 31: k("s_barrier")
        if kk == 16: st()
        if kk == 24: tag_issue(k, 30)
        if kk + 1 < 32 and not NOLDS: bread(kk + 1)
        for t in range(4):
            k.wait_lg(lambda x: x == ("a", kk, t) or x == ("b", kk))
            for tk in range(2):
                a = ACC + 16*(2*t+tk)
                if "--nomfma" in sys.argv and kk: k("s_nop 7"); continue
                k(f"v_mfma_f32_32x32x16_bf16 {vr(a,16)}, {vr(AF+4*t,4)}, {vr(BF+8*(kk&1)+4*tk,4)}, {'0' if kk==0 else vr(a,16)}")
            if kk + 1 < 32 and not NOLDS: aread(kk + 1, t)
    k("s_barrier")
    if MPRIO: k(f"s_setprio {MPRIO}")
    st()
    tag_check(k, 30)
    k(f"s_lshl_b32 s78, s{S_MT}, 2"); k("s_lshl_b32 s79, s76, 1"); k("s_add_u32 s78, s78, s79"); k("s_mul_i32 s78, s78, 112")
    k(f"s_lshl_b32 s79, s{S_FT}, 3"); k("s_add_u32 s78, s78, s79"); k("s_lshl_b32 s79, s77, 2"); k("s_add_u32 s78, s78, s79"); k("s_lshl_b32 s78, s78, 10")
    k(f"s_add_u32 s79, s78, {112*1024}")
    nd = 0
    TMP = 32
    for t in range(4):
        for tk in range(2):
            A = ACC + 16*(2*t+tk)
            for r in range(8): k(f"v_mul_f32 v{TMP+r}, {LOG2E:#x}, v{A+r}")
            for r in range(8): k(f"v_exp_f32 v{TMP+r}, -v{TMP+r}")
            if nd < W2SLOTS: w2dma(k, nd); nd += 1
            for r in range(8): k(f"v_mul_f32 v{A+r}, v{A+r}, v{A+8+r}")
            for r in range(8): k(f"v_add_f32 v{TMP+r}, 1.0, v{TMP+r}")
            for r in range(8): k(f"v_rcp_f32 v{TMP+r}, v{TMP+r}")
            if nd < W2SLOTS: w2dma(k, nd); nd += 1
            for r in range(8): k(f"v_mul_f32 v{A+r}, v{A+r}, v{TMP+r}")
            for j in range(4): k(f"v_cvt_pk_bf16_f32 v{A+8+j}, v{A+2*j}, v{A+2*j+1}")
            k.vmem(f"buffer_store_dwordx4 {vr(A+8,4)}, v8, {sr(R_WS,4)}, s{78+tk} offen offset:{t*1024} sc1", "hst")
    k(f"s_lshl_b32 s78, s{S_MT}, 1"); k("s_add_u32 s78, s78, s76"); k("s_lshl_b32 s78, s78, 5")
    k(f"s_lshl_b32 s79, s{S_FT}, 1"); k("s_add_u32 s78, s78, s79"); k("s_add_u32 s78, s78, s77"); k("s_lshl_b32 s78, s78, 2")
    k(f"s_add_u32 s78, s78, {LY.WS_FH}")
    st()
    k.wait_vm("hst")
    publish(k, 78, 22)
    gen_G2(k, st, nd)

def gen_Maux(k, st):
    body = Asm()
    real = k
    k = body
    k.srd(R_WS, S_WS, LY.WS_SIZE_USED); k.srd(R_U, S_U, 2048*1024)
    k(f"s_lshl_b32 s76, s{S_XCD}, 2"); k(f"s_add_u32 s76, s76, s{S_IDX}"); k("s_sub_u32 s76, s76, 28")
    k("v_lshrrev_b32 v22, 4, v1"); k("v_bfe_u32 v23, v1, 1, 3"); k("v_xor_b32 v23, v23, v22")
    k("v_lshlrev_b32 v10, 10, v22"); k("v_lshl_add_u32 v10, v23, 5, v10"); k("v_and_b32 v23, 1, v1"); k("v_lshl_add_u32 v10, v23, 4, v10")
    k("v_xor_b32 v11, 0x80, v10")
    k(f"s_lshl_b32 s77, s{S_RW}, 8"); k("v_add_u32 v10, s77, v10"); k("v_add_u32 v11, s77, v11")
    k("s_lshl_b32 s77, s76, 16"); k(f"s_lshl_b32 s78, s{S_RW}, 14"); k(f"s_add_u32 s78, s78, {RB}")
    for tq in range(16):
        k(f"s_add_u32 m0, s78, {tq*1024}"); k(f"s_add_u32 s79, s77, {tq*4096}")
        k.vmem(f"buffer_load_dwordx4 v{10 + ((tq>>1)&1)}, {sr(R_U,4)}, s79 offen lds", "dma")
    k("v_lshlrev_b32 v12, 4, v22")
    for s in range(16):
        k.vmem(f"global_load_dwordx4 {vr(96+4*s,4)}, v12, {sr(S_GW,2)} offset:{64*s}", "gw")
    k("v_bfe_u32 v23, v1, 2, 2"); k("v_lshl_add_u32 v24, v22, 3, v23"); k("v_lshlrev_b32 v13, 8, v24")
    k("v_and_b32 v24, 1, v22"); k("v_lshl_add_u32 v24, v24, 2, v23"); k("v_lshl_add_u32 v13, v24, 5, v13")
    k("v_and_b32 v24, 3, v1"); k("v_lshl_add_u32 v13, v24, 3, v13"); k("v_add_u32 v13, s78, v13")
    k("v_and_b32 v25, 15, v1"); k(f"s_lshl_b32 s79, s{S_RW}, 7"); k("v_add_u32 v14, s79, v25"); k("v_lshlrev_b32 v14, 12, v14"); k("v_add_u32 v14, v14, v12")
    k("s_lshl_b32 s80, s76, 7"); k(f"s_add_u32 s80, s80, {LY.WS_UT}")
    k.wait_vm("dma")
    for cb in range(8):
        k(f"v_xor_b32 v15, {32*cb}, v13")
        for a in range(2):
            base = 160 + (cb*2+a) * 4
            for s in range(2):
                k.lds(f"ds_read_b64_tr_b16 {vr(base+2*s,2)}, v15 offset:{a*8192 + s*1024}", ("t", cb, a))
    for cb in range(8):
        for a in range(2):
            base = 160 + (cb*2+a) * 4
            k.wait_lg(("t", cb, a))
            k(f"s_add_u32 s81, s80, {cb*65536}")
            k.vmem(f"buffer_store_dwordx4 {vr(base,4)}, v14, {sr(R_WS,4)}, s81 offen offset:{64*a} sc1", "st")
    get_tag(k, 26)
    k(f"s_lshl_b32 s79, s{S_RW}, 7"); k("s_lshl_b32 s81, s76, 2"); k("s_add_u32 s79, s79, s81"); k(f"s_add_u32 s79, s79, {LY.WS_FU}")
    publish(k, 79, 26)
    k("MUSTBAR")
    k(f"s_lshl_b32 s79, s{S_RW}, 12"); k(f"s_add_u32 s79, s79, {RB}"); k("v_lshlrev_b32 v16, 8, v25"); k("v_add_u32 v16, s79, v16")
    k("v_and_b32 v23, 3, v25"); k("v_bfe_u32 v24, v25, 3, 1"); k("v_lshl_add_u32 v23, v24, 2, v23")
    k("v_lshrrev_b32 v24, 1, v22"); k("v_xor_b32 v23, v23, v24"); k("v_lshl_add_u32 v16, v23, 5, v16")
    k("v_and_b32 v24, 1, v22"); k("v_lshl_add_u32 v16, v24, 4, v16")
    for s3 in range(4):
        k(f"v_xor_b32 v17, {64*s3}, v16")
        for reg in range(4):
            s = 4*reg + s3
            k.lds(f"ds_read_b128 {vr(32+4*s,4)}, v17 offset:{reg*16384}", "gx")
    for i in range(4): k(f"v_mov_b32 v{28+i}, 0x3f803f80")
    k.wait_vm("gw"); k.wait_all_lg()
    for s in range(16):
        for j in range(4):
            x = 32+4*s+j; w = 96+4*s+j
            k(f"v_lshlrev_b32 v18, 16, v{x}"); k(f"v_and_b32 v19, 0xffff0000, v{x}")
            k(f"v_lshlrev_b32 v20, 16, v{w}"); k(f"v_and_b32 v21, 0xffff0000, v{w}")
            k("v_mul_f32 v18, v18, v20"); k("v_mul_f32 v19, v19, v21")
            k(f"v_cvt_pk_bf16_f32 v{x}, v18, v19")
        k.nop(2)
        k(f"v_mfma_f32_16x16x32_bf16 v[224:227], v[28:31], {vr(32+4*s,4)}, {'0' if s==0 else 'v[224:227]'}")
    k.nop(10)
    rbf(k, 224)
    k(f"v_mul_f32 v225, {LOG2E:#x}, v224"); k("v_exp_f32 v225, -v225"); k("s_nop 0")
    k("v_add_f32 v225, 1.0, v225"); k("v_rcp_f32 v225, v225"); k("s_nop 0")
    rbf(k, 225)
    k("s_lshl_b32 s79, s76, 8"); k(f"s_lshl_b32 s81, s{S_RW}, 6"); k("s_add_u32 s79, s79, s81"); k(f"s_add_u32 s79, s79, {LY.WS_G}")
    k("v_lshlrev_b32 v226, 2, v25")
    k.vmem(f"buffer_store_dword v225, v226, {sr(R_WS,4)}, s79 offen sc1", "st")
    lines = body.out
    mb = [i for i, l in enumerate(lines) if l.strip() == "MUSTBAR"][0]
    rest = len(lines) - mb - 1
    pos = set(mb + 1 + (rest * j) // 15 for j in range(1, 15))
    k = real
    st()
    nb = 0
    for i, l in enumerate(lines):
        if i == mb: st(); k("s_barrier"); nb += 1; continue
        if i in pos: k("s_barrier"); nb += 1
        k.out.append(l)
    k.vm = body.vm; k.lg = body.lg
    k.wait_all_vm()
    k("s_lshl_b32 s78, s76, 4"); k(f"s_lshl_b32 s79, s{S_RW}, 2"); k("s_add_u32 s78, s78, s79"); k(f"s_add_u32 s78, s78, {LY.WS_FG}")
    publish(k, 78, 22)
    st()
    while nb < 17: k("s_barrier"); nb += 1
    st(); st()
    g2_setup(k)
    gen_G2(k, st, 0)

def main():
    k = Asm()
    k("s_cmp_ge_u32 s2, 256"); k("s_cbranch_scc1 L_end")
    k("s_load_dwordx16 s[4:19], s[0:1], 0"); k("s_load_dwordx16 s[20:35], s[0:1], 64"); k("s_load_dwordx2 s[36:37], s[0:1], 128")
    k("v_and_b32 v1, 63, v0"); k("v_lshrrev_b32 v2, 6, v0"); k("s_nop 0"); k(f"v_readfirstlane_b32 s{S_WAVE}, v2")
    k(f"s_and_b32 s{S_XCD}, s2, 7"); k(f"s_lshr_b32 s{S_IDX}, s2, 3")
    k(f"s_mul_i32 s{S_MT}, s{S_IDX}, 37"); k(f"s_lshr_b32 s{S_MT}, s{S_MT}, 8")
    k(f"s_mul_i32 s64, s{S_MT}, 7"); k(f"s_sub_u32 s{S_FT}, s{S_IDX}, s64")
    k(f"s_lshr_b32 s64, s{S_XCD}, 1"); k("s_lshl_b32 s64, s64, 2"); k(f"s_add_u32 s{S_MT}, s{S_MT}, s64")
    k(f"s_and_b32 s64, s{S_XCD}, 1"); k("s_mul_i32 s64, s64, 7"); k(f"s_add_u32 s{S_FT}, s{S_FT}, s64")
    k(f"s_lshl_b32 s{S_TT}, s{S_XCD}, 2"); k(f"s_lshr_b32 s64, s{S_IDX}, 3"); k(f"s_add_u32 s{S_TT}, s{S_TT}, s64")
    k(f"s_and_b32 s{S_NT}, s{S_IDX}, 7")
    k(f"s_and_b32 s{S_RW}, s{S_WAVE}, 3")
    k("s_waitcnt lgkmcnt(0)")
    k(f"s_cmp_ge_u32 s{S_WAVE}, 4"); k("s_cbranch_scc0 L_H" if "--hfirst" in sys.argv else "s_cbranch_scc1 L_H")
    k(f"s_cmp_ge_u32 s{S_IDX}, 28"); k("s_cbranch_scc1 L_Maux")
    st = Stamper(k, STAMPS, 3, 0); st(); gen_M(k, st)
    k.label("L_Maux"); k.reset_counters()
    st = Stamper(k, STAMPS, 3, 0); st(); gen_Maux(k, st)
    k.label("L_H"); k.reset_counters()
    k(f"s_cmp_ge_u32 s{S_IDX}, 28"); k("s_cbranch_scc1 L_Haux")
    st = Stamper(k, STAMPS, 250, 1); st(); gen_H(k, True, st)
    k.label("L_Haux"); k.reset_counters()
    st = Stamper(k, STAMPS, 250, 1); st(); gen_H(k, False, st)
    k.label("L_end"); k("s_endpgm")
    name = "gated_mix__ssm_conv_s4__glu_gated_swiglu__prompt_kernel"
    hdr = open("gated_mix__ssm_conv_s4__glu_gated_swiglu__prompt.s.ref").read().split("; Override")[0]
    s = hdr + f"; @launch grid=(256,1,1) block=(512,1,1) lds={LDS_TOTAL}\n" + '.amdgcn_target "amdgcn-amd-amdhsa--gfx950"\n.text\n' + kernel_header(name) + k.text() + '.section .rodata,"a"\n' + kernel_desc(name, 256, 102, 256)
    open(sys.argv[1], "w").write(s)
main()
```

```python
class Cnt:
    def __init__(self, maxv):
        self.ops = []; self.done = 0; self.maxv = maxv
    def issue(self, tag): self.ops.append(tag)
    def need(self, pred):
        last = -1
        for i in range(len(self.ops) - 1, self.done - 1, -1):
            if pred(self.ops[i]):
                last = i; break
        if last < 0: return None
        n = len(self.ops) - 1 - last
        if n > self.maxv:
            n = self.maxv
            last = len(self.ops) - 1 - n
        self.done = last + 1
        return n
    def all_done(self): self.done = len(self.ops)
    def outstanding(self): return len(self.ops) - self.done

class Asm:
    def __init__(self):
        self.out = []
        self.vm = Cnt(63); self.lg = Cnt(15)
    def __call__(self, s): self.out.append("    " + s)
    def label(self, l): self.out.append(l + ":")
    def c(self, s): self.out.append("    ; " + s)
    def reset_counters(self):
        self.vm = Cnt(63); self.lg = Cnt(15)
    def vmem(self, s, tag=None):
        assert self.vm.outstanding() < 63, "vmcnt overflow"
        self(s); self.vm.issue(tag)
    def lds(self, s, tag=None):
        self(s); self.lg.issue(tag)
    def wait_vm(self, pred):
        if not callable(pred):
            t = pred; pred = lambda x: x == t
        n = self.vm.need(pred)
        if n is not None: self(f"s_waitcnt vmcnt({n})")
    def wait_lg(self, pred):
        if not callable(pred):
            t = pred; pred = lambda x: x == t
        n = self.lg.need(pred)
        if n is not None: self(f"s_waitcnt lgkmcnt({n})")
    def wait_both(self, pv, pl):
        if pv is not None and not callable(pv):
            t = pv; pv = lambda x: x == t
        if pl is not None and not callable(pl):
            t2 = pl; pl = lambda x: x == t2
        nv = self.vm.need(pv) if pv is not None else None
        nl = self.lg.need(pl) if pl is not None else None
        parts = []
        if nv is not None: parts.append(f"vmcnt({nv})")
        if nl is not None: parts.append(f"lgkmcnt({nl})")
        if parts: self("s_waitcnt " + " ".join(parts))
    def wait_all_vm(self):
        self("s_waitcnt vmcnt(0)"); self.vm.all_done()
    def wait_all_lg(self):
        self("s_waitcnt lgkmcnt(0)"); self.lg.all_done()
    def nop(self, n):
        while n > 0:
            k = min(n, 16); self(f"s_nop {k-1}"); n -= k
    def srd(self, sd, sp, nbytes, add=0):
        if add:
            self(f"s_add_u32 s{sd}, s{sp}, {add:#x}")
            self(f"s_addc_u32 s{sd+1}, s{sp+1}, 0")
        else:
            self(f"s_mov_b32 s{sd}, s{sp}")
            self(f"s_mov_b32 s{sd+1}, s{sp+1}")
        self(f"s_mov_b32 s{sd+2}, {nbytes:#x}")
        self(f"s_mov_b32 s{sd+3}, 0x20000")
    def text(self): return "\n".join(self.out) + "\n"

def vr(b, n=1, f="v"):
    return f"{f}{b}" if n == 1 else f"{f}[{b}:{b+n-1}]"
def sr(b, n=1):
    return f"s{b}" if n == 1 else f"s[{b}:{b+n-1}]"

def kernel_header(name):
    return f".globl {name}\n.p2align 8\n.type {name},@function\n{name}:\n"
def kernel_desc(name, vgpr, sgpr, accum):
    return f""".p2align 6
.amdhsa_kernel {name}
  .amdhsa_next_free_vgpr {vgpr}
  .amdhsa_next_free_sgpr {sgpr}
  .amdhsa_accum_offset {accum}
  .amdhsa_group_segment_fixed_size 0
  .amdhsa_kernarg_size 136
  .amdhsa_user_sgpr_count 2
  .amdhsa_user_sgpr_kernarg_segment_ptr 1
  .amdhsa_system_sgpr_workgroup_id_x 1
.end_amdhsa_kernel
"""

STAMP_V = 250
class Stamper:
    def __init__(self, k, enabled, vreg, launch_idx, stmp=98):
        self.k = k; self.on = enabled; self.v = vreg; self.n = 0; self.li = launch_idx; self.s = stmp
    def __call__(self):
        if not self.on: return
        k = self.k
        import sys
        ins = "s_memrealtime" if "--rt" in sys.argv else "s_memtime"
        k(f"{ins} s[{self.s}:{self.s+1}]"); k("s_waitcnt lgkmcnt(0)"); k.lg.all_done()
        k(f"v_writelane_b32 v{self.v}, s{self.s}, {self.n}")
        self.n += 1
    def real(self, lane):
        if not self.on: return
        k = self.k
        k(f"s_memrealtime s[{self.s}:{self.s+1}]"); k("s_waitcnt lgkmcnt(0)"); k.lg.all_done()
        k(f"v_writelane_b32 v{self.v}, s{self.s}, {lane}")
    def flush(self, swave, ws_stamp, sws):
        if not self.on: return
        k = self.k; s = self.s
        self.real(15)
        k.srd(92, sws, 1 << 20, ws_stamp)
        k(f"s_lshl_b32 s{s}, s2, 8"); k(f"s_lshl_b32 s{s+1}, s{swave}, 6"); k(f"s_add_u32 s{s}, s{s}, s{s+1}")
        k(f"s_add_u32 s{s}, s{s}, {self.li*65536}")
        k(f"v_mbcnt_lo_u32_b32 v{self.v+1}, -1, 0"); k(f"v_mbcnt_hi_u32_b32 v{self.v+1}, -1, v{self.v+1}")
        k(f"v_lshlrev_b32 v{self.v+1}, 2, v{self.v+1}")
        k("s_mov_b64 exec, 0xffff")
        k(f"buffer_store_dword v{self.v}, v{self.v+1}, s[92:95], s{s} offen")
        k("s_mov_b64 exec, -1")
```

```python
WS_H   = 0
WS_UT  = 8 << 20
WS_AT  = 10 << 20
WS_G   = 12 << 20
FS = 128
WS_FH  = (12 << 20) + 65536
WS_FU  = WS_FH + 2048 * FS
WS_FG  = WS_FU + 128 * FS
WS_FA  = WS_FG + 128 * FS
WS_STAMP = 13 << 20
WS_SIZE_USED = 14 << 20
WS_DBG = 16 << 20
```

```python
import sys, struct, copy
from asmlib import *
import layout as LY
LOG2E = 0x3fb8aa3b
def opt(n, d):
    for a in sys.argv:
        if a.startswith(f"--{n}="): return int(a.split("=")[1])
    return d
STAMPS = "--stamps" in sys.argv
MPRIO = opt("mprio", 2); HP2 = opt("hp2", 3); NWR = opt("nwr", 11); AGI = opt("agi", 20); FJ = opt("fj", 9)
ROTQ = opt("rotq", 4); PRE2 = opt("pre2", 4); DPE = opt("dpe", 2); TAGE = opt("tage", 11); UFE = opt("ufe", 13); UTE = opt("ute", 15)
OMOD = {0: "", 1: " sc1", 2: " nt", 3: " sc0 sc1"}[opt("omod", 0)]; PKE = opt("pke", 1); CDEL = opt("cdel", 0); CDA = opt("cda", 30); WFS = opt("wfs", 6); G2F = opt("g2f", 0); CODEL = 300
def f2h(x): return "0x%08x" % struct.unpack("<I", struct.pack("<f", float(x)))[0]

S_U, S_ARE, S_AIM, S_BRE, S_BIM, S_CRE, S_CIM, S_LDT = 4, 6, 8, 10, 12, 14, 16, 18
S_DSK, S_W1, S_W3, S_W2, S_GW, S_OUT, S_DBG, S_WS = 20, 24, 26, 28, 30, 32, 34, 36
S_WAVE, S_XCD, S_IDX, S_MT, S_FT, S_TT, S_NT, S_RW = 38, 39, 40, 41, 42, 43, 44, 45
S_TAG = 46; S_CNT = 47
R_U, R_A, R_B, R_WS = 48, 52, 56, 60
S_TABB = 80; S_CH, S_HALF, S_CHAN = 84, 85, 86
STG = 24576; RB = 40960
L_FLAG = 0; L_TAB = 1024; L_B5 = 1024
ROWB = 272; TABW = 32 * ROWB
CPY = 4160; PL = 1536
L_X = RB + 4 * STG; L_UP = RB; W2SLOTS = 9; L_W2 = RB + STG; L_AUX = RB + STG
LDS_TOTAL = RB + 5 * STG
RND2 = [0, 0, 2, 4, 4, 4, 6, 8, 8]
SPIN_MAX = 40000; LSPIN = 0x100000
def sbuf(sg): return [1, 2, 3, 4, 0, 5][sg % 6]
def bufaddr(b): return L_B5 if b == 5 else RB + b * STG
def slot_off(sl): return (sl // 3) * STG + (sl % 3) * 2048

def rbf(k, v):
    k(f"v_cvt_pk_bf16_f32 v{v}, v{v}, v{v}"); k(f"v_and_b32 v{v}, 0xffff0000, v{v}")
_lbl = [0]
def newlabel(p):
    _lbl[0] += 1; return f"L_{p}_{_lbl[0]}"
COLD = []
def cold(k, branch, fn):
    L = newlabel("cold"); B = newlabel("back")
    k(f"{branch} {L}"); k.label(B)
    c = Asm(); c.label(L); fn(c); c(f"s_branch {B}"); COLD.extend(c.out)

def spin_tail(k, L, ready_scc1, limit):
    k(f"s_cselect_b32 s{S_CNT}, {limit}, s{S_CNT}"); k(f"s_add_u32 s{S_CNT}, s{S_CNT}, 1")
    k(f"s_cmp_lt_u32 s{S_CNT}, {limit}"); k(f"s_cbranch_scc1 {L}")
def get_tag(k, vt):
    L = newlabel("tag")
    k(f"v_mov_b32 v{vt+1}, 0"); k(f"s_mov_b32 s{S_CNT}, 0")
    k.label(L)
    k(f"global_load_dword v{vt}, v{vt+1}, {sr(S_DBG,2)} sc1"); k("s_waitcnt vmcnt(0)")
    k(f"v_readfirstlane_b32 s{S_TAG}, v{vt}"); k(f"s_cmp_lg_u32 s{S_TAG}, 0")
    spin_tail(k, L, True, SPIN_MAX)
def poll(k, voff, soff, vt):
    L = newlabel("poll")
    k(f"s_mov_b32 s{S_CNT}, 0")
    k.label(L)
    k(f"buffer_load_dword v{vt}, v{voff}, {sr(R_WS,4)}, s{soff} offen sc1"); k("s_waitcnt vmcnt(0)"); k.vm.all_done()
    k(f"v_cmp_ne_u32 vcc, s{S_TAG}, v{vt}"); k("s_cmp_eq_u64 vcc, 0")
    spin_tail(k, L, True, SPIN_MAX)
def tag_issue(k, vt):
    k(f"v_mov_b32 v{vt+1}, 0"); k.vmem(f"global_load_dword v{vt}, v{vt+1}, {sr(S_DBG,2)} sc1", "tag")
def tag_check(k, vt):
    k.wait_vm("tag"); k(f"v_readfirstlane_b32 s{S_TAG}, v{vt}"); k(f"s_cmp_lg_u32 s{S_TAG}, 0")
    cold(k, "s_cbranch_scc0", lambda c: get_tag(c, vt))
def flag_issue(k, voff, soff, vt, name):
    k.vmem(f"buffer_load_dword v{vt}, v{voff}, {sr(R_WS,4)}, s{soff} offen sc1", name)
def flag_check(k, voff, soff, vt, name):
    k.wait_vm(name); k(f"v_cmp_ne_u32 vcc, s{S_TAG}, v{vt}")
    cold(k, "s_cbranch_vccnz", lambda c: poll(c, voff, soff, vt))
def publish(k, soff, vt):
    k(f"v_mov_b32 v{vt}, s{S_TAG}"); k(f"v_lshlrev_b32 v{vt+1}, 2, v1")
    k("s_mov_b32 exec_hi, 0")
    k.vmem(f"buffer_store_dword v{vt}, v{vt+1}, {sr(R_WS,4)}, s{soff} offen sc1", "flag")
    k("s_mov_b32 exec_hi, -1")
def lds_wait1(k, va, off, vt):
    L = newlabel("lw")
    k(f"s_mov_b32 s{S_CNT}, 0")
    k.label(L)
    k(f"ds_read_b32 v{vt}, v{va} offset:{off}"); k("s_waitcnt lgkmcnt(0)"); k.lg.all_done()
    k(f"v_readfirstlane_b32 s70, v{vt}"); k("s_cmp_eq_u32 s70, 1")
    spin_tail(k, L, True, LSPIN)
def mr_wait(k, va, vt):
    L = newlabel("mr")
    k(f"s_mov_b32 s{S_CNT}, 0")
    k.label(L)
    k(f"ds_read_b128 {vr(vt,4)}, v{va}"); k("s_waitcnt lgkmcnt(0)"); k.lg.all_done()
    k(f"v_and_b32 v{vt}, v{vt}, v{vt+1}"); k(f"v_and_b32 v{vt+2}, v{vt+2}, v{vt+3}"); k(f"v_and_b32 v{vt}, v{vt}, v{vt+2}"); k("s_nop 0")
    k(f"v_readfirstlane_b32 s70, v{vt}"); k("s_cmp_eq_u32 s70, 1")
    spin_tail(k, L, True, LSPIN)

def merge(a, b):
    ta = max(1, sum(x[0] for x in a)); tb = max(1, sum(x[0] for x in b)); out = []; i = j = 0; wa = wb = 0
    while i < len(a) or j < len(b):
        if j >= len(b) or (i < len(a) and wa / ta <= wb / tb): out.append(a[i]); wa += a[i][0]; i += 1
        else: out.append(b[j]); wb += b[j][0]; j += 1
    return out

PRM = 232; KD = 128
def param_loads(k):
    k(f"s_lshl_b32 s69, s{S_CHAN}, 8"); k(f"s_lshl_b32 s70, s{S_HALF}, 7"); k("s_add_u32 s69, s69, s70")
    k("v_lshlrev_b32 v240, 1, v1"); k("v_add_u32 v240, s69, v240")
    for i in range(8): k(f"v_mov_b32 v{PRM+i}, 0")
    for i, sp in enumerate([S_ARE, S_AIM, S_BRE, S_BIM, S_CRE, S_CIM]):
        k.vmem(f"global_load_short_d16_hi v{PRM+i}, v240, {sr(sp,2)}", "p")
    k(f"s_lshl_b32 s70, s{S_CHAN}, 1"); k("v_mov_b32 v241, s70")
    k.vmem(f"global_load_short_d16_hi v{PRM+6}, v241, {sr(S_LDT,2)}", "p")
    k.vmem(f"global_load_short_d16_hi v{PRM+7}, v241, {sr(S_DSK,2)}", "p")

def kgen(k):
    atoms = []
    def A(w, fn): atoms.append((w, fn))
    Are, Aim, Bre, Bim, Cre, Cim, LDT, DSK = range(PRM, PRM + 8)
    W = {0: 120, 1: 122, 2: 124, 3: 126}
    E = {i: 32 + 2*(i-1) for i in range(1, 9)}; E128 = 48; E512 = 50; V32 = 52; E256 = 54
    PKS = [56, 146]
    TP = [180 + 2*i for i in range(8)]; VQ = [196 + 2*i for i in range(8)]; WQ = [212 + 2*i for i in range(8)]
    VF, AFR, RA = 72, 88, 242
    k("v_and_b32 v243, 15, v1"); k("v_lshrrev_b32 v244, 4, v1")
    k(f"v_mul_u32_u24 v{RA}, {ROWB}, v243"); k(f"v_lshl_add_u32 v{RA}, v244, 4, v{RA}"); k(f"v_add_u32 v{RA}, s{S_TABB}, v{RA}")
    k(f"s_mov_b32 m0, s{S_TABB}")
    def cmulb(lst):
        for d, x, y in lst: assert d != x and d != y
        def f():
            for d, x, y in lst: k(f"v_pk_mul_f32 {vr(d,2)}, {vr(x,2)}, {vr(y,2)} op_sel:[0,0] op_sel_hi:[0,1]")
            for d, x, y in lst: k(f"v_pk_fma_f32 {vr(d,2)}, {vr(x,2)}, {vr(y,2)}, {vr(d,2)} op_sel:[1,1,0] op_sel_hi:[1,0,1] neg_lo:[1,0,0]")
        A(2*len(lst), f)
    k(f"s_mov_b32 s76, {LOG2E:#x}"); k("s_mov_b32 s77, 0x32a57060")
    k(f"v_mul_f32 v243, s76, v{LDT}"); k(f"v_fma_f32 v244, v{LDT}, s76, -v243"); k(f"v_fma_f32 v244, v{LDT}, s77, v244")
    k("v_exp_f32 v243, v243"); k("v_mul_f32 v244, 0x3f317218, v244"); k("v_fma_f32 v243, v243, v244, v243")
    rbf(k, 243)
    for r in (Are, Aim, Bre, Bim): k(f"v_mul_f32 v{r}, v243, v{r}")
    k(f"v_mul_f32 v{Are}, s76, v{Are}"); k(f"v_mul_f32 v{Aim}, 0.15915494, v{Aim}")
    dl = [(E[8], 8), (E128, 128), (E[4], 4), (V32, 32), (E[1], 1), (E512, 512)]
    for i, (d, e) in enumerate(dl): k(f"v_mul_f32 v{TP[i]}, {f2h(e)}, v{Are}"); k(f"v_mul_f32 v{TP[i]+1}, {f2h(e)}, v{Aim}")
    for i, (d, e) in enumerate(dl): k(f"v_exp_f32 v{TP[i]}, v{TP[i]}"); k(f"v_fract_f32 v{TP[i]+1}, v{TP[i]+1}")
    for i, (d, e) in enumerate(dl): k(f"v_cos_f32 v{d}, v{TP[i]+1}"); k(f"v_sin_f32 v{d+1}, v{TP[i]+1}")
    k("s_nop 0")
    for i, (d, e) in enumerate(dl): k(f"v_mul_f32 v{d}, v{TP[i]}, v{d}"); k(f"v_mul_f32 v{d+1}, v{TP[i]}, v{d+1}")
    cur = [0]
    def packb(lst):
        PK = PKS[cur[0] & 1]
        def f():
            for slot, v, neg in lst: k(f"v_cvt_pk_bf16_f32 v{PK+slot}, v{v}, {'-' if neg else ''}v{v+1}")
        A(len(lst), f)
    def wr(row, reg): return (2, lambda: k.lds(f"ds_write_addtid_b32 v{reg} offset:{row*ROWB}"))
    cmulb([(W[0], Cre, Bre), (VQ[2], E[8], E[8]), (E256, E128, E128), (VQ[5], E[8], V32), (E[2], E[1], E[1]), (E[5], E[4], E[1])])
    cmulb([(W[1], W[0], E128), (VQ[3], VQ[2], E[8]), (VQ[6], VQ[2], V32), (W[2], W[0], E256), (E[3], E[2], E[1]), (E[6], E[4], E[2])])
    cmulb([(W[3], W[1], E256), (VQ[7], VQ[3], V32), (VQ[0], V32, V32), (VQ[1], VQ[5], V32), (E[7], E[4], E[3])])
    A(1, lambda: k(f"v_mov_b32 v{PKS[0]}, 0x3f80"))
    packb([(1, E[8], 0), (2, VQ[2], 0), (3, VQ[3], 0), (4, V32, 0), (5, VQ[5], 0), (6, VQ[6], 0), (7, VQ[7], 0)])
    cmulb([(VQ[2], VQ[6], V32), (VQ[3], VQ[7], V32), (VQ[4], VQ[0], V32), (VQ[5], VQ[1], V32)])
    cmulb([(VQ[6], VQ[2], V32), (VQ[7], VQ[3], V32)])
    packb([(8+i, VQ[i], 0) for i in range(8)])
    pend = [wr(j, PKS[0]+j) for j in range(16)] + [(4, lambda: [k.lds(f"ds_read_b128 {vr(VF+4*s,4)}, v{RA} offset:{64*s}") for s in range(4)])]
    def prods(items):
        dp = [(s_, w, True) for slots, w, x in items if x == 0 for s_ in slots]
        pr = [(slots, w, x) for slots, w, x in items if x]
        if dp: packb(dp)
        for i in range(0, len(pr), 8):
            b = pr[i:i+8]
            for h in range(0, len(b), 4): cmulb([(TP[h+j], w, E[x]) for j, (slots, w, x) in enumerate(b[h:h+4])])
            packb([(s_, TP[j], True) for j, (slots, w, x) in enumerate(b) for s_ in slots])
    def tile_compute(tau):
        items = []
        if tau < 2:
            for g in range(4):
                xs = [(4*tau + i) if g < 2 else RND2[4*tau + i] for i in range(4)]
                for x in sorted(set(xs)): items.append(([4*g + i for i in range(4) if xs[i] == x], W[g], x))
        elif tau == 2:
            cmulb([(WQ[g], W[g], E512) for g in range(4)])
            for g in range(4):
                items.append(([4*g], W[g], 8))
                for i, x in enumerate([0, 4, 8]): items.append(([4*g + 1 + i], WQ[g], x))
        else:
            cmulb([(WQ[4+g], WQ[g], E512) for g in range(4)])
            cmulb([(WQ[g], WQ[4+g], E512) for g in range(4)])
            for b in range(8):
                w = WQ[4+b] if b < 4 else WQ[b-4]
                items.append(([2*b], w, 0)); items.append(([2*b+1], w, 8))
        prods(items)
    def tile_mfma(tau):
        def f1():
            for s in range(4): k.lds(f"ds_read_b128 {vr(AFR+4*s,4)}, v{RA} offset:{16*ROWB + 64*s}", ("af", tau, s))
        def f2():
            dd = KD + 4*tau
            for s in range(4):
                k.wait_lg(("af", tau, s))
                k(f"v_mfma_f32_16x16x32_bf16 {vr(dd,4)}, {vr(AFR+4*s,4)}, {vr(VF+4*s,4)}, {'0' if s==0 else vr(dd,4)}")
        return [(6, f1), (8, f2)]
    for tau in range(4):
        cur[0] += 1
        n0 = len(atoms); tile_compute(tau); c_ = atoms[n0:]; del atoms[n0:]
        atoms.extend(merge(c_, pend))
        pend = [wr(16+j, PKS[cur[0] & 1]+j) for j in range(16)] + tile_mfma(tau)
    atoms.extend(pend)
    for w, f in atoms: f()
    k("v_lshlrev_b32 v243, 4, v1"); k(f"v_add_u32 v243, s{S_TABB}, v243")
    k.nop(7)
    for q in range(4): k.lds(f"ds_write_b128 v243, {vr(KD+4*q,4)} offset:{1024*q}")

def w2_addr(k, v, t1, t2):
    k.srd(R_A, S_W2, 1792*1024)
    k(f"v_lshrrev_b32 v{t1}, 3, v1"); k(f"v_lshlrev_b32 v{v}, 10, v{t1}")
    k(f"v_and_b32 v{t1}, 2, v{t1}"); k(f"v_bfe_u32 v{t2}, v1, 1, 2"); k(f"v_xor_b32 v{t1}, v{t1}, v{t2}"); k(f"v_lshl_add_u32 v{v}, v{t1}, 5, v{v}")
    k(f"v_and_b32 v{t1}, 1, v1"); k(f"v_lshl_add_u32 v{v}, v{t1}, 4, v{v}")
    k(f"s_lshl_b32 s64, s{S_NT}, 7"); k(f"s_mul_i32 s65, s{S_RW}, {448*1024}"); k("s_add_u32 s64, s64, s65"); k(f"v_add_u32 v{v}, s64, v{v}")
    k(f"s_mul_i32 s66, s{S_RW}, 6144"); k(f"s_add_u32 s66, s66, {L_W2}")
def w2dma(k, i):
    so = slot_off(i % W2SLOTS)
    for q in range(2):
        k(f"s_add_u32 m0, s66, {so + q*1024}"); k(f"s_mov_b32 s67, {(16*i + 8*q)*1024}")
        k.vmem(f"buffer_load_dwordx4 v2, {sr(R_A,4)}, s67 offen lds", ("w2", i))

def gen_H(k, st, vm0):
    D = KD; DX = 104; P = 148; DSK = PRM + 7; EB = 184
    k.srd(R_WS, S_WS, LY.WS_SIZE_USED)
    def common_setup():
        k(f"s_mul_i32 s68, s{S_CH}, {2*TABW}"); k(f"s_add_u32 s68, s68, {L_TAB}")
        k(f"s_lshl_b32 s70, s{S_RW}, 4"); k(f"s_add_u32 s70, s70, {L_FLAG}"); k("v_mov_b32 v29, s70"); k("v_xor_b32 v30, 16, v29")
        for i in range(4): k(f"v_mov_b32 v{176+i}, 0")
        k.lds("ds_write_b128 v29, v[176:179]")
        k(f"v_mov_b32 v28, {L_FLAG + 64}")
        k("v_lshlrev_b32 v22, 4, v1")
        k(f"s_lshl_b32 s78, s{S_RW}, 12"); k(f"s_add_u32 s78, s78, {L_X}"); k("v_add_u32 v24, s78, v22"); k("v_xor_b32 v25, 0x1000, v24")
        k(f"s_mul_i32 s71, s{S_RW}, {4*PL}"); k(f"s_add_u32 s71, s71, {L_UP}"); k("v_add_u32 v23, s71, v22")
    def hs_set(i):
        k.wait_all_lg(); k("v_mov_b32 v31, 1"); k.lds(f"ds_write_b32 v29, v31 offset:{4*i}")
    def hs_wait(i): lds_wait1(k, 30, 4*i, 31)
    def dsum():
        k("v_add_u32 v16, s68, v22")
        for q in range(4): k.lds(f"ds_read_b128 {vr(D+4*q,4)}, v16 offset:{1024*q}")
        for q in range(4): k.lds(f"ds_read_b128 {vr(DX+4*q,4)}, v16 offset:{TABW + 1024*q}")
        k.wait_all_lg()
        for r in range(16): k(f"v_add_f32 v{D+r}, v{D+r}, v{DX+r}")
    def eprep():
        k("v_and_b32 v16, 15, v1"); k("v_lshrrev_b32 v17, 4, v1")
        k("v_and_b32 v18, 1, v16"); k("v_cmp_eq_u32 vcc, 0, v18"); k("s_nop 1")
        k(f"v_cndmask_b32 v{D+16}, v{D+13}, v{D+12}, vcc"); k(f"v_cndmask_b32 v{D+17}, v{D+15}, v{D+14}, vcc")
        k(f"s_cmp_eq_u32 s{S_HALF}, 0"); k("s_cselect_b64 vcc, -1, 0")
        A0 = [D+i for i in range(9)]; A1 = [D+9]*3 + [D+10]*3 + [D+11]*3
        B0 = [D+12]*4 + [D+16] + [D+13]*4; B1 = [D+14]*4 + [D+17] + [D+15]*4
        for i in range(9): k(f"v_cndmask_b32 v{EB+i}, v{B0[i]}, v{A0[i]}, vcc")
        for i in range(9): k(f"v_cndmask_b32 v{EB+9+i}, v{B1[i]}, v{A1[i]}, vcc")
        k("v_lshlrev_b32 v19, 4, v16"); k(f"v_sub_u32 v19, {4080 - 16}, v19"); k("v_add_u32 v19, s68, v19")
        k(f"s_add_u32 s70, s{S_HALF}, 8"); k("v_lshlrev_b32 v20, s70, v17"); k("v_sub_u32 v20, v19, v20")
        k(f"s_lshl_b32 s70, s{S_HALF}, 11"); k("v_subrev_u32 v20, s70, v20")
        k(f"s_cmp_eq_u32 s{S_HALF}, 0"); k("s_cselect_b32 s70, 4, 1"); k("s_lshl_b32 s70, s70, 8"); k("v_subrev_u32 v21, s70, v20")
        k(f"v_mul_u32_u24 v26, {CPY}, v17"); k("v_lshl_add_u32 v26, v16, 2, v26"); k("v_add_u32 v26, s68, v26")
    def write_block(e, addr, P):
        for j, (lo, hi) in enumerate([(7,6),(5,4),(3,2),(1,0)]): k(f"v_cvt_pk_bf16_f32 v{P+j}, v{e+lo}, v{e+hi}")
        for j, (lo, hi) in enumerate([(8,7),(6,5),(4,3),(2,1)]): k(f"v_cvt_pk_bf16_f32 v{P+4+j}, v{e+lo}, v{e+hi}")
        k(f"v_mov_b32 v{P+8}, v{P+1}"); k(f"v_mov_b32 v{P+9}, v{P+2}"); k(f"v_mov_b32 v{P+10}, v{P+5}"); k(f"v_mov_b32 v{P+11}, v{P+6}")
        return [f"ds_write_b128 v{addr}, {vr(P,4)} offset:16",
                f"ds_write_b32 v{addr}, v{P} offset:{2*CPY + 12}", f"ds_write_b32 v{addr}, v{P+3} offset:{2*CPY + 24}",
                f"ds_write_b64 v{addr}, {vr(P+8,2)} offset:{2*CPY + 16}",
                f"ds_write_b32 v{addr}, v{P+4} offset:{CPY + 12}", f"ds_write_b32 v{addr}, v{P+7} offset:{CPY + 24}",
                f"ds_write_b64 v{addr}, {vr(P+4,2)} offset:{3*CPY + 8}", f"ds_write_b64 v{addr}, {vr(P+6,2)} offset:{3*CPY + 16}",
                f"ds_write_b64 v{addr}, {vr(P+10,2)} offset:{CPY + 16}"]
    WL = []
    def epack():
        WL.extend(write_block(EB, 20, 204)); WL.extend(write_block(EB + 9, 21, 216))
        k(f"v_cvt_pk_bf16_f32 v27, v{D}, v{D}")
    def ewrite():
        k(f"s_cmp_eq_u32 s{S_HALF}, 0"); k("s_cselect_b64 exec, -1, 0")
        k.lds(f"ds_write_b32 v26, v176 offset:{2*2044}")
        k("s_mov_b64 exec, -1")
        for w in WL: k.lds(w)
        k("v_mov_b32 v31, s68"); k("s_cselect_b64 exec, 1, 0")
        k.lds(f"ds_write_b16 v31, v27 offset:{CPY + 2*2046}"); k.lds(f"ds_write_b16 v31, v27 offset:{3*CPY + 2*2044}")
        k("s_mov_b64 exec, -1")
    def u_flag():
        tag_check(k, 244)
        k(f"v_mov_b32 v245, {L_FLAG + 80}"); k(f"v_mov_b32 v244, s{S_TAG}"); k.lds("ds_write_b32 v245, v244")
        k("v_and_b32 v246, 31, v1"); k("v_lshlrev_b32 v246, 7, v246")
        k(f"s_lshr_b32 s79, s{S_CHAN}, 7"); k("s_lshl_b32 s79, s79, 12"); k(f"s_add_u32 s79, s79, {LY.WS_FU}")
        k(f"s_lshl_b32 s90, s{S_CHAN}, 12"); k(f"s_add_u32 s90, s90, {LY.WS_UT}")
        flag_issue(k, 246, 79, 247, "fu")
    def uload():
        flag_check(k, 246, 79, 247, "fu")
        for p in range(4): k.vmem(f"buffer_load_dwordx4 {vr(160+4*p,4)}, v22, {sr(R_WS,4)}, s90 offen offset:{1024*p} sc1", "ut")
    def caddr():
        k("v_and_b32 v16, 31, v1"); k("v_lshrrev_b32 v17, 5, v1")
        k(f"v_mul_u32_u24 v249, {PL}, v17"); k("v_lshl_add_u32 v249, v16, 4, v249"); k("v_add_u32 v249, s71, v249")
        k("v_sub_u32 v18, 3, v16"); k("v_and_b32 v18, 3, v18"); k(f"v_mul_u32_u24 v18, {CPY - 2}, v18")
        k("v_sub_u32 v19, 31, v16"); k("v_lshl_add_u32 v19, v17, 3, v19"); k("v_lshl_add_u32 v18, v19, 1, v18")
        k(f"s_lshl_b32 s70, s{S_HALF}, 10"); k("s_sub_u32 s70, s68, s70"); k("v_add_u32 v18, s70, v18")
        k(f"s_lshl_b32 s70, s{S_HALF}, 8"); k("s_sub_u32 s70, 256, s70"); k("v_add_u32 v19, s70, v249")
        k("v_and_b32 v248, 3, v1"); k(f"v_mul_u32_u24 v248, {PL}, v248"); k("v_lshrrev_b32 v5, 2, v1"); k("v_lshl_add_u32 v248, v5, 4, v248"); k("v_add_u32 v248, s71, v248")
    def ustage():
        k.lds("ds_write_b128 v249, v[176:179]"); k.lds(f"ds_write_b128 v249, v[176:179] offset:{2*PL}")
        k.wait_vm("ut")
        for p in range(4): k.lds(f"ds_write_b128 v248, {vr(160+4*p,4)} offset:{p*256 + 512}")

    k(f"s_cmp_lt_u32 s{S_IDX}, 4"); k("s_cbranch_scc1 L_Haux")
    k.srd(R_U, S_U, 2048*1024); k.srd(R_A, S_W1, 512*3584); k.srd(R_B, S_W3, 512*3584)
    k("v_lshrrev_b32 v16, 4, v1"); k("v_bfe_u32 v17, v1, 1, 3"); k("v_xor_b32 v17, v17, v16")
    k("v_mul_u32_u24 v2, 3584, v16"); k("v_lshl_add_u32 v2, v17, 5, v2")
    k("v_and_b32 v17, 1, v1"); k("v_lshl_add_u32 v2, v17, 4, v2")
    k(f"s_lshl_b32 s70, s{S_FT}, 8"); k(f"s_mul_i32 s71, s{S_RW}, {8*3584}"); k("s_add_u32 s70, s70, s71")
    k("v_xor_b32 v3, 0x80, v2")
    k("v_add_u32 v2, s70, v2"); k("v_add_u32 v3, s70, v3")
    k("v_lshrrev_b32 v4, 2, v1"); k("v_lshlrev_b32 v4, 10, v4")
    k("v_and_b32 v17, 3, v1"); k("v_xor_b32 v17, v17, v16"); k("v_lshl_add_u32 v4, v17, 4, v4")
    k(f"s_lshl_b32 s70, s{S_MT}, 17"); k(f"s_lshl_b32 s71, s{S_RW}, 15"); k("s_add_u32 s70, s70, s71")
    k("v_add_u32 v4, s70, v4")
    k(f"s_lshl_b32 s72, s{S_RW}, 11")
    k(f"s_lshr_b32 s87, s{S_XCD}, 1"); k(f"s_mul_i32 s87, s87, {ROTQ}")
    def dma(sg):
        buf = bufaddr(sbuf(sg))
        k(f"s_add_u32 s88, s87, {sg}"); k("s_and_b32 s88, s88, 15")
        k(f"s_mul_i32 s89, s88, {32*3584}"); k("s_lshl_b32 s88, s88, 6")
        def one(lo, sb, so, v, srd):
            k(f"s_add_u32 m0, s72, {lo}"); k(f"s_add_u32 s73, s{sb}, {so}")
            k.vmem(f"buffer_load_dwordx4 v{v}, {sr(srd,4)}, s73 offen lds", ("w", sg))
        for m in range(2):
            for q in range(2): one(buf + m*8192 + q*1024, 89, q*4*3584, 2+m, R_A+4*m)
        for q in range(2): one(buf + 16384 + q*1024, 88, q*16*1024, 4, R_U)
    dma(0)
    k("s_barrier")
    common_setup(); k.lds("ds_write_b128 v28, v[176:179]"); k.lds("ds_write_b128 v28, v[176:179] offset:32")
    st()
    for sg in range(1, PRE2): dma(sg)
    st()
    nxt = PRE2
    for s in range(16):
        k.wait_vm(("w", s))
        if k.lg.outstanding() and s in (0, 1, 15): k.wait_all_lg()
        k("s_barrier")
        if s in (0, 8): st()
        cnt = 0
        while nxt < 16 and nxt <= max(4, s + 4) and cnt < DPE:
            dma(nxt); nxt += 1; cnt += 1
        if s == 0: dsum()
        if s == TAGE: tag_issue(k, 244)
        if s == 12: eprep(); epack(); w2_addr(k, 2, 16, 17)
        if s == UFE: u_flag(); caddr()
        if s == UTE: uload()
        if s in (14, 15):
            for j in range(3): w2dma(k, 3*(s-14) + j)
    assert nxt == 16
    k.label("L_Hjoin")
    ewrite(); hs_set(1); ustage(); hs_wait(1)
    if CDEL:
        k.wait_all_vm(); k("v_mov_b32 v31, 1"); k.lds("ds_write_b32 v29, v31 offset:12")
    if CDEL == 1: mr_wait(k, 28, 180)
    if CDEL == 2:
        k(f"s_lshl_b32 s73, s{S_RW}, 2"); k("v_mov_b32 v180, s73"); lds_wait1(k, 180, L_FLAG + 96, 181)
    st()
    AC0, AC1, FR = 32, 48, 64
    steps = [(dl, kh) for dl in range(16) for kh in range(2)]
    def rd(i):
        dl, kh = steps[i]; b = FR + (i % 3) * 16
        o1 = 2*(2016 - 32*dl + 16*kh); o2 = o1 - 2048
        k.lds(f"ds_read_b64 {vr(b,2)}, v18 offset:{o1}", i); k.lds(f"ds_read_b64 {vr(b+2,2)}, v18 offset:{o1+8}", i)
        k.lds(f"ds_read_b128 {vr(b+8,4)}, v19 offset:{2*kh*PL + (16-dl)*16}", i)
        k.lds(f"ds_read_b128 {vr(b+12,4)}, v19 offset:{2*kh*PL + (48-dl)*16}", i)
        k.lds(f"ds_read_b64 {vr(b+4,2)}, v18 offset:{o2}", i); k.lds(f"ds_read_b64 {vr(b+6,2)}, v18 offset:{o2+8}", i)
    NCS = opt('ncs', 32)
    rd(0); rd(1)
    for i in range(NCS):
        b = FR + (i % 3) * 16
        k.wait_lg(i)
        if i == WFS and not CDEL:
            k.wait_all_vm(); k("v_mov_b32 v31, 1"); k.lds("ds_write_b32 v29, v31 offset:12")
        if i + 2 < NCS: rd(i + 2)
        k(f"v_mfma_f32_32x32x16_bf16 {vr(AC0,16)}, {vr(b,4)}, {vr(b+8,4)}, {'0' if i==0 else vr(AC0,16)}")
        k(f"v_mfma_f32_32x32x16_bf16 {vr(AC1,16)}, {vr(b,4)}, {vr(b+12,4)}, {'0' if i==0 else vr(AC1,16)}")
        k(f"v_mfma_f32_32x32x16_bf16 {vr(AC1,16)}, {vr(b+4,4)}, {vr(b+8,4)}, {vr(AC1,16)}")
    if HP2: k(f"s_setprio {HP2}")
    k("v_lshlrev_b32 v26, 4, v16"); k("v_lshl_add_u32 v26, v17, 3, v26")
    k(f"s_lshl_b32 s70, s{S_HALF}, 9"); k("s_add_u32 s70, s70, s71"); k("v_add_u32 v26, s70, v26")
    for q in range(4): k.lds(f"ds_read_b64 {vr(FR+2*q,2)}, v26 offset:{q*PL + 512}", "uu")
    st()
    mr_wait(k, 28, 180)
    k(f"s_cmp_eq_u32 s{S_HALF}, 1"); k("s_cselect_b64 exec, -1, 0")
    for i in range(16): k(f"v_swap_b32 v{AC0+i}, v{AC1+i}")
    k("s_mov_b64 exec, -1")
    for q in range(4): k.lds(f"ds_write_b128 v24, {vr(AC1+4*q,4)} offset:{1024*q}")
    hs_set(2)
    for j in range(8):
        k(f"v_lshlrev_b32 v{80+2*j}, 16, v{FR+j}"); k(f"v_and_b32 v{81+2*j}, 0xffff0000, v{FR+j}")
    for j in range(16): k(f"v_mul_f32 v{80+j}, v{DSK}, v{80+j}")
    for j in range(8): k(f"v_cvt_pk_bf16_f32 v{FR+j}, v{80+2*j}, v{81+2*j}")
    for j in range(8):
        k(f"v_lshlrev_b32 v{80+2*j}, 16, v{FR+j}"); k(f"v_and_b32 v{81+2*j}, 0xffff0000, v{FR+j}")
    k("v_lshlrev_b32 v26, 6, v16"); k("v_lshl_add_u32 v26, v17, 3, v26"); k("v_add_u32 v26, s71, v26")
    k(f"s_lshl_b32 s74, s{S_CHAN}, 12"); k(f"s_lshl_b32 s73, s{S_HALF}, 11"); k("s_add_u32 s74, s74, s73"); k(f"s_add_u32 s74, s74, {LY.WS_AT}")
    k(f"s_lshr_b32 s72, s{S_CHAN}, 6"); k("s_lshl_b32 s72, s72, 7"); k(f"s_lshl_b32 s73, s{S_HALF}, 6"); k("s_add_u32 s72, s72, s73")
    k(f"s_and_b32 s73, s{S_CHAN}, 63"); k("s_add_u32 s72, s72, s73"); k("s_lshl_b32 s72, s72, 7"); k(f"s_add_u32 s72, s72, {LY.WS_FA}")
    hs_wait(2)
    st()
    for q in range(4): k.lds(f"ds_read_b128 {vr(AC1+4*q,4)}, v25 offset:{1024*q}", "x")
    k.wait_all_lg()
    for r in range(16): k(f"v_add_f32 v{AC0+r}, v{AC0+r}, v{AC1+r}")
    for j in range(8): k(f"v_cvt_pk_bf16_f32 v{AC1+j}, v{AC0+2*j}, v{AC0+2*j+1}")
    for j in range(8):
        k(f"v_lshlrev_b32 v{AC0+2*j}, 16, v{AC1+j}"); k(f"v_and_b32 v{AC0+2*j+1}, 0xffff0000, v{AC1+j}")
    for r in range(16): k(f"v_add_f32 v{AC0+r}, v{AC0+r}, v{80+r}")
    for j in range(8): k(f"v_cvt_pk_bf16_f32 v{AC1+j}, v{AC0+2*j}, v{AC0+2*j+1}")
    for q in range(4): k.lds(f"ds_write_b64 v26, {vr(AC1+2*q,2)} offset:{16*q}")
    for j in range(2): k.lds(f"ds_read_b128 {vr(FR+4*j,4)}, v23 offset:{1024*j}")
    k.wait_all_lg()
    for j in range(2): k.vmem(f"buffer_store_dwordx4 {vr(FR+4*j,4)}, v22, {sr(R_WS,4)}, s74 offen offset:{1024*j} sc1")
    st()
    k.wait_all_vm()
    publish(k, 72, 16)
    st()
    st.flush(S_RW, LY.WS_STAMP, S_WS)
    k("s_endpgm")
    k.label("L_Haux"); k.reset_counters(); k.vm = copy.deepcopy(vm0); WL.clear()
    Lt = newlabel("notag")
    k("s_cmp_lg_u32 s2, 0"); k(f"s_cbranch_scc1 {Lt}"); k(f"s_cmp_lg_u32 s{S_RW}, 3"); k(f"s_cbranch_scc1 {Lt}")
    k("s_memrealtime s[74:75]"); k("s_waitcnt lgkmcnt(0)"); k("s_or_b32 s74, s74, 1")
    k("v_mov_b32 v16, s74"); k("v_mov_b32 v17, 0"); k("s_mov_b64 exec, 1")
    k(f"global_store_dword v17, v16, {sr(S_DBG,2)} sc1"); k("s_mov_b64 exec, -1")
    k.label(Lt)
    common_setup()
    for i in range(4): k(f"v_mov_b32 v{8+i}, 1")
    k.lds("ds_write_b128 v28, v[8:11] offset:32")
    k.lds("ds_write_b128 v28, v[8:11]")
    k("s_waitcnt vmcnt(0) lgkmcnt(0)"); k.vm.all_done(); k.lg.all_done()
    k("s_branch L_kgen"); k.label("L_Haux_ret")
    tag_issue(k, 244)
    k("s_waitcnt lgkmcnt(0)"); k("s_barrier")
    k(f"s_lshl_b32 s70, s{S_XCD}, 2"); k(f"s_add_u32 s70, s70, s{S_IDX}"); k("s_lshl_b32 s70, s70, 2"); k(f"s_add_u32 s70, s70, s{S_RW}"); k("s_mul_i32 s70, s70, 112")
    k("v_min_u32 v5, 55, v1"); k("v_add_u32 v5, s70, v5"); k("v_lshlrev_b32 v5, 7, v5")
    k.vmem(f"global_load_dword v252, v5, {sr(S_W2,2)}", "pf"); k(f"v_add_u32 v5, {56*128}, v5")
    k.vmem(f"global_load_dword v252, v5, {sr(S_W2,2)}", "pf")
    dsum(); hs_set(0)
    u_flag(); eprep(); epack(); caddr(); uload(); hs_wait(0)
    k.wait_all_vm()
    k("s_branch L_Hjoin")

def prefetch_g(k):
    k(f"s_cmp_eq_u32 s{S_RW}, 0"); k(f"s_cselect_b32 s92, s{S_W1}, s{S_W3}"); k(f"s_cselect_b32 s93, s{S_W1+1}, s{S_W3+1}")
    k(f"s_cmp_ge_u32 s{S_RW}, 2"); k(f"s_cselect_b32 s92, s{S_U}, s92"); k(f"s_cselect_b32 s93, s{S_U+1}, s93"); k("s_cselect_b64 vcc, -1, 0")
    k(f"s_lshr_b32 s94, s{S_XCD}, 1"); k("s_lshl_b32 s94, s94, 5"); k(f"s_add_u32 s94, s94, s{S_IDX}"); k("s_lshl_b32 s94, s94, 2")
    k("v_lshrrev_b32 v9, 4, v1"); k("v_add_u32 v9, s94, v9"); k("v_mul_u32_u24 v9, 3584, v9")
    k("v_and_b32 v10, 15, v1"); k("v_min_u32 v10, 13, v10"); k("v_lshl_add_u32 v9, v10, 7, v9")
    k(f"s_and_b32 s94, s{S_XCD}, 1"); k("s_mul_i32 s94, s94, 1792"); k("v_add_u32 v9, s94, v9")
    k(f"s_lshl_b32 s94, s{S_XCD}, 5"); k(f"s_add_u32 s94, s94, s{S_IDX}"); k("s_lshl_b32 s94, s94, 13")
    k(f"s_and_b32 s95, s{S_RW}, 1"); k("s_lshl_b32 s95, s95, 12"); k("s_add_u32 s94, s94, s95")
    k("v_and_b32 v10, 31, v1"); k("v_lshlrev_b32 v10, 7, v10"); k("v_add_u32 v10, s94, v10")
    k("v_cndmask_b32 v9, v9, v10, vcc")
    k.vmem("global_load_dword v252, v9, s[92:93]", "pf")

def g2_setup(k):
    w2_addr(k, 2, 4, 5); k.srd(R_B, S_OUT, 2048*1024)
    k("v_bfe_u32 v4, v1, 2, 2"); k("v_lshrrev_b32 v5, 5, v1"); k("v_lshl_add_u32 v5, v5, 2, v4"); k("v_lshlrev_b32 v6, 7, v5")
    k("v_and_b32 v4, 2, v4"); k("v_bfe_u32 v5, v1, 4, 1"); k("v_xor_b32 v4, v4, v5"); k("v_lshl_add_u32 v6, v4, 5, v6")
    k("v_and_b32 v4, 3, v1"); k("v_lshl_add_u32 v6, v4, 3, v6")
    k(f"s_lshl_b32 s64, s{S_CH}, 6"); k("v_xor_b32 v6, s64, v6")
    k("v_xor_b32 v7, 64, v6"); k("v_add_u32 v6, s66, v6"); k("v_add_u32 v7, s66, v7")
    k("v_lshlrev_b32 v8, 4, v1")

def gen_G2(k, st):
    ACC = 24
    pool = list(range(88, 256, 8))
    wreg = {}; hreg = {}
    nd = [W2SLOTS]; nr = [0]
    def wread():
        i = nr[0]; b = pool.pop(0); wreg[i] = b
        k.wait_vm(("w2", i))
        for dt in range(2):
            for s2 in range(2):
                k.lds(f"ds_read_b64_tr_b16 {vr(b+4*dt+2*s2,2)}, v{6+dt} offset:{slot_off(i % W2SLOTS) + s2*1024}", ("wf", i))
        nr[0] += 1
    def more_dma():
        while nd[0] < 28 and nd[0] - W2SLOTS < nr[0] - 1:
            k.wait_lg(("wf", nd[0] - W2SLOTS)); w2dma(k, nd[0]); nd[0] += 1
    for j in range(6): wread()
    k("v_min_u32 v9, 6, v1"); k("v_lshlrev_b32 v9, 7, v9")
    k(f"s_lshl_b32 s82, s{S_TT}, 5"); k(f"s_mul_i32 s69, s{S_RW}, 7"); k("s_add_u32 s82, s82, s69"); k("s_lshl_b32 s82, s82, 7"); k(f"s_add_u32 s82, s82, {LY.WS_FH}")
    k(f"s_mul_i32 s68, s{S_TT}, 224"); k("s_lshl_b32 s69, s69, 2"); k("s_add_u32 s68, s68, s69"); k("s_lshl_b32 s68, s68, 10")
    k(f"s_mul_i32 s69, s{S_HALF}, {112*1024}"); k(f"s_sub_u32 s70, {112*1024}, s69"); k("s_add_u32 s69, s68, s69"); k("s_add_u32 s68, s68, s70")
    st()
    more_dma()
    for j in range(6, NWR):
        wread(); more_dma()
        if j == FJ: k.vmem(f"buffer_load_dword v10, v9, {sr(R_WS,4)}, s82 offen sc1", "fh")
    st()
    k.wait_vm("fh"); k(f"v_cmp_eq_u32 vcc, s{S_TAG}, v10"); k("s_nop 0"); k("s_mov_b32 s83, vcc_lo")
    def need_group(gi):
        def slow(c):
            L = newlabel("gp")
            c(f"s_mov_b32 s{S_CNT}, 0"); c.label(L)
            c(f"buffer_load_dword v10, v9, {sr(R_WS,4)}, s82 offen sc1"); c("s_waitcnt vmcnt(0)")
            c(f"v_cmp_eq_u32 vcc, s{S_TAG}, v10"); c("s_nop 0"); c("s_mov_b32 s83, vcc_lo"); c(f"s_bitcmp1_b32 s83, {gi}")
            spin_tail(c, L, True, SPIN_MAX)
        k(f"s_bitcmp1_b32 s83, {gi}"); cold(k, "s_cbranch_scc0", slow)
    nh = [0]
    def hload():
        i = nh[0]; b = pool.pop(0); hreg[i] = b
        if i % 4 == 0:
            need_group(i // 4)
            if i == 0: st()
            else: k("s_add_u32 s68, s68, 4096"); k("s_add_u32 s69, s69, 4096")
        for tk in range(2):
            k.vmem(f"buffer_load_dwordx4 {vr(b+4*tk,4)}, v8, {sr(R_WS,4)}, s{69-tk} offen offset:{(i%4)*1024} sc1", ("h", i))
        nh[0] += 1
    while pool: hload()
    k("v_and_b32 v20, 31, v1"); k("v_lshrrev_b32 v11, 5, v1")
    k(f"s_lshl_b32 s72, s{S_NT}, 7"); k(f"s_lshr_b32 s73, s{S_TT}, 4"); k("s_lshl_b32 s73, s73, 6"); k("s_add_u32 s72, s72, s73")
    k(f"s_lshl_b32 s73, s{S_CH}, 5"); k("s_add_u32 s72, s72, s73"); k("s_lshl_b32 s72, s72, 7"); k(f"s_add_u32 s72, s72, {LY.WS_FA - LY.WS_FH}")
    k("v_lshlrev_b32 v12, 7, v20"); k("v_add_u32 v12, s72, v12")
    k(f"s_lshl_b32 s72, s{S_TT}, 9"); k(f"s_add_u32 s72, s72, {LY.WS_FG - LY.WS_FH}")
    k("v_and_b32 v13, 3, v1"); k("v_lshlrev_b32 v13, 7, v13"); k("v_add_u32 v13, s72, v13")
    k("v_cmp_gt_u32 vcc, 32, v1"); k("s_nop 1"); k("v_cndmask_b32 v12, v13, v12, vcc")
    k(f"s_mov_b32 s76, {LY.WS_FH}")
    k(f"s_lshl_b32 s72, s{S_TT}, 6"); k(f"s_lshl_b32 s73, s{S_HALF}, 5"); k("s_add_u32 s72, s72, s73")
    k(f"s_lshl_b32 s74, s{S_NT}, 6"); k(f"s_lshl_b32 s73, s{S_CH}, 5"); k("s_add_u32 s74, s74, s73")
    k("v_add_u32 v21, s72, v20")
    k("v_lshlrev_b32 v15, 2, v21"); k("v_lshlrev_b32 v16, 1, v21"); k("v_lshl_add_u32 v16, v11, 14, v16")
    k("s_lshl_b32 s75, s74, 12"); k(f"s_add_u32 s75, s75, {LY.WS_AT}")
    k("v_add_u32 v4, s66, v8")
    for a in range(1, 4):
        k(f"s_xor_b32 s72, s{S_RW}, {a}"); k("s_mul_i32 s72, s72, 6144"); k(f"s_add_u32 s72, s72, {L_W2 + (a-1)*STG}"); k(f"v_add_u32 v{16+a}, s72, v8")
    k("v_lshlrev_b32 v5, 10, v21"); k("v_lshl_add_u32 v5, v11, 3, v5"); k("s_lshl_b32 s77, s74, 1")
    AV = [None]
    def ag_load():
        flag_check(k, 12, 76, 13, "fa")
        b0 = pool.pop(0); b1 = pool.pop(0); AV[0] = list(range(b0, b0+8)) + list(range(b1, b1+8))
        k(f"s_mov_b32 s73, {LY.WS_G}")
        k.vmem(f"buffer_load_dword v14, v15, {sr(R_WS,4)}, s73 offen sc1", "g")
        for r in range(16): k(f"v_mov_b32 v{AV[0][r]}, 0")
        for r in range(16):
            q, i = r >> 2, r & 3
            k(f"s_add_u32 s73, s75, {(8*q+i)*4096}")
            k.vmem(f"buffer_load_short_d16_hi v{AV[0][r]}, v16, {sr(R_WS,4)}, s73 offen sc1", "a")
    for i in range(28):
        k.wait_both(("h", i), ("wf", i))
        if i in (1, 9, 18) and G2F: st()
        for a in ((3, 2, 1, 0) if i == 27 else (0, 1, 2, 3)):
            c = ACC + 16*a
            k(f"v_mfma_f32_32x32x16_bf16 {vr(c,16)}, {vr(wreg[i]+4*(a>>1),4)}, {vr(hreg[i]+4*(a&1),4)}, {'0' if i==0 else vr(c,16)}")
        pool.append(wreg[i]); pool.append(hreg[i])
        if nh[0] < 28: hload()
        if nr[0] < 28: wread(); more_dma()
        elif nh[0] < 28: hload()
        if i == AGI: flag_issue(k, 12, 76, 13, "fa")
        if i == min(26, AGI + 6): ag_load()
    st()
    AVr = AV[0]
    regs = [r for b in sorted(pool) for r in range(b, b+8)]
    def take(n):
        for s0 in range(0, len(regs) - n + 1):
            if regs[s0] % 4 == 0 and regs[s0+n-1] == regs[s0] + n - 1:
                out = regs[s0]; del regs[s0:s0+n]; return out
        raise Exception("no regs")
    PR = [take(16) for _ in range(3)]; OP = take(8); OWN = ACC
    k.nop(9)
    for a in (3, 2, 1):
        for q in range(4): k.lds(f"ds_write_b128 v4, {vr(ACC+16*a+4*q,4)} offset:{(a-1)*STG + 1024*q}")
    k.wait_all_vm()
    k("v_sub_f32 v15, 1.0, v14"); rbf(k, 15)
    for r in range(16): k(f"v_mul_f32 v{AVr[r]}, v14, v{AVr[r]}")
    for j in range(8): k(f"v_cvt_pk_bf16_f32 v{AVr[2*j]}, v{AVr[2*j]}, v{AVr[2*j+1]}")
    for j in range(8): k(f"v_and_b32 v{AVr[2*j+1]}, 0xffff0000, v{AVr[2*j]}"); k(f"v_lshlrev_b32 v{AVr[2*j]}, 16, v{AVr[2*j]}")
    k.wait_all_lg(); k("s_barrier")
    st()
    for src in range(3):
        for q in range(4): k.lds(f"ds_read_b128 {vr(PR[src]+4*q,4)}, v{17+src} offset:{1024*q}", src)
    for src in range(3):
        k.wait_lg(src)
        if PKE:
            for r in range(0, 16, 2): k(f"v_pk_add_f32 {vr(OWN+r,2)}, {vr(OWN+r,2)}, {vr(PR[src]+r,2)}")
        else:
            for r in range(16): k(f"v_add_f32 v{OWN+r}, v{OWN+r}, v{PR[src]+r}")
    for j in range(8): k(f"v_cvt_pk_bf16_f32 v{OWN+2*j}, v{OWN+2*j}, v{OWN+2*j+1}")
    for j in range(8): k(f"v_and_b32 v{OWN+2*j+1}, 0xffff0000, v{OWN+2*j}"); k(f"v_lshlrev_b32 v{OWN+2*j}, 16, v{OWN+2*j}")
    if PKE:
        for r in range(0, 16, 2): k(f"v_pk_mul_f32 {vr(OWN+r,2)}, {vr(OWN+r,2)}, v[14:15] op_sel:[0,1] op_sel_hi:[1,1]")
    else:
        for r in range(16): k(f"v_mul_f32 v{OWN+r}, v15, v{OWN+r}")
    for j in range(8): k(f"v_cvt_pk_bf16_f32 v{OWN+2*j}, v{OWN+2*j}, v{OWN+2*j+1}")
    for j in range(8): k(f"v_and_b32 v{OWN+2*j+1}, 0xffff0000, v{OWN+2*j}"); k(f"v_lshlrev_b32 v{OWN+2*j}, 16, v{OWN+2*j}")
    if PKE:
        for r in range(0, 16, 2): k(f"v_pk_add_f32 {vr(OWN+r,2)}, {vr(OWN+r,2)}, {vr(AVr[r],2)}")
    else:
        for r in range(16): k(f"v_add_f32 v{OWN+r}, v{OWN+r}, v{AVr[r]}")
    for j in range(8): k(f"v_cvt_pk_bf16_f32 v{OP+j}, v{OWN+2*j}, v{OWN+2*j+1}")
    for q in range(4):
        k.vmem(f"buffer_store_dwordx2 {vr(OP+2*q,2)}, v5, {sr(R_B,4)}, s77 offen offset:{16*q}{OMOD}")
    st()
    st.flush(S_RW, LY.WS_STAMP, S_WS)
    k("s_endpgm")

def gen_M(k, st):
    k.srd(R_WS, S_WS, LY.WS_SIZE_USED)
    g2_setup(k)
    k(f"s_cmp_lt_u32 s{S_IDX}, 4"); k("s_cbranch_scc1 L_Maux")
    k("s_barrier"); prefetch_g(k)
    k("v_bfe_u32 v22, v1, 4, 1"); k("v_lshrrev_b32 v23, 5, v1"); k("v_bfe_u32 v24, v1, 2, 2")
    k("v_lshlrev_b32 v25, 13, v22"); k("v_lshl_add_u32 v25, v23, 11, v25"); k("v_lshl_add_u32 v25, v24, 8, v25")
    k("v_lshl_add_u32 v26, v22, 2, v24"); k("v_lshl_add_u32 v25, v26, 5, v25")
    k("v_and_b32 v26, 3, v1"); k("v_lshl_add_u32 v25, v26, 3, v25")
    k(f"s_lshl_b32 s78, s{S_HALF}, 7"); k("v_xor_b32 v25, s78, v25"); k(f"v_add_u32 v25, {RB}, v25")
    for t in range(4):
        k(f"v_xor_b32 v{10+t}, {32*t}, v25"); k(f"v_add_u32 v{14+t}, {3*STG}, v{10+t}")
    k("v_and_b32 v25, 31, v1"); k("v_bfe_u32 v26, v1, 2, 2"); k("v_xor_b32 v26, v26, v23")
    k("v_lshlrev_b32 v25, 6, v25"); k("v_lshl_add_u32 v25, v26, 4, v25")
    k(f"s_lshl_b32 s78, s{S_CH}, 12"); k(f"s_add_u32 s78, s78, {RB + 16384}")
    k("v_xor_b32 v19, 32, v25"); k("v_add_u32 v18, s78, v25"); k("v_add_u32 v19, s78, v19")
    k(f"v_add_u32 v20, {3*STG}, v18"); k(f"v_add_u32 v21, {3*STG}, v19")
    for t in range(4): k(f"v_subrev_u32 v{22+t}, {RB - L_B5}, v{10+t}")
    for e in range(2): k(f"v_subrev_u32 v{26+e}, {RB - L_B5}, v{18+e}")
    k(f"s_lshl_b32 s78, s{S_MT}, 2"); k(f"s_lshl_b32 s79, s{S_CH}, 1"); k("s_add_u32 s78, s78, s79"); k("s_mul_i32 s78, s78, 112")
    k(f"s_lshl_b32 s79, s{S_FT}, 3"); k("s_add_u32 s78, s78, s79"); k(f"s_lshl_b32 s79, s{S_HALF}, 2"); k("s_add_u32 s78, s78, s79"); k("s_lshl_b32 s78, s78, 10")
    k(f"s_add_u32 s79, s78, {112*1024}")
    k(f"s_lshl_b32 s81, s{S_MT}, 1"); k(f"s_add_u32 s81, s81, s{S_CH}"); k("s_lshl_b32 s81, s81, 5")
    k(f"s_lshl_b32 s82, s{S_FT}, 1"); k("s_add_u32 s81, s81, s82"); k(f"s_add_u32 s81, s81, s{S_HALF}"); k("s_lshl_b32 s81, s81, 7")
    k(f"s_add_u32 s81, s81, {LY.WS_FH}")
    k(f"s_lshl_b32 s70, s{S_RW}, 2"); k(f"s_add_u32 s70, s70, {L_FLAG + 64}"); k("v_mov_b32 v28, s70"); k("v_mov_b32 v29, 1"); k(f"v_mov_b32 v30, {L_FLAG + 80}")
    k.wait_vm("p")
    st()
    k.label("L_kgen")
    kgen(k)
    k(f"s_cmp_ge_u32 s{S_WAVE}, 4"); k("s_cbranch_scc1 L_Haux_ret")
    ACC, AF, BF = 64, 32, 48
    def aread(kk, t, dst):
        sg = kk >> 1; e = kk & 1; b = sbuf(sg)
        reg = (10 if b < 3 else 14) + t; off = (b if b < 3 else b - 3) * STG
        if b == 5: reg = 22 + t; off = 0
        for s2 in range(2):
            k.lds(f"ds_read_b64_tr_b16 {vr(dst+2*s2,2)}, v{reg} offset:{off + e*4096 + s2*1024}", ("a", kk, t))
    def bread(kk, dst):
        sg = kk >> 1; e = kk & 1; b = sbuf(sg)
        reg = (18 if b < 3 else 20) + e; off = (b if b < 3 else b - 3) * STG
        if b == 5: reg = 26 + e; off = 0
        for tk in range(2):
            k.lds(f"ds_read_b128 {vr(dst+4*tk,4)}, v{reg} offset:{off + tk*2048}", ("b", kk))
    def mfma(t, tk, a, b, first):
        c = ACC + 16*(2*t+tk)
        k(f"v_mfma_f32_32x32x16_bf16 {vr(c,16)}, {vr(a,4)}, {vr(b,4)}, {'0' if first else vr(c,16)}")
    st()
    k.wait_all_lg(); k("s_barrier")
    st()
    TK = 28
    TB = {28: BF + 0, 29: BF + 8, 30: 192, 31: 200}
    TA = [{28+i: 208 + 4*i for i in range(4)}, {28+i: 224 + 4*i for i in range(4)}]
    bread(0, BF)
    for t in range(4): aread(0, t, AF+4*t)
    for kk in range(TK):
        if kk & 1: k("s_barrier")
        if kk == 16 and not G2F: st()
        bread(kk + 1, BF + 8*((kk+1) & 1))
        for t in range(4):
            k.wait_lg(lambda x: x == ("a", kk, t) or x == ("b", kk))
            for tk in range(2): mfma(t, tk, AF+4*t, BF+8*(kk&1)+4*tk, kk == 0)
            if kk + 1 < TK: aread(kk + 1, t, AF+4*t)
            elif t < 2: aread(28 + t, 0, TA[0][28+t])
    k("s_barrier")
    bread(29, TB[29]); aread(30, 0, TA[0][30]); bread(30, TB[30]); aread(31, 0, TA[0][31]); bread(31, TB[31])
    k.lds("ds_read_b32 v30, v30", "tg")
    if MPRIO: k(f"s_setprio {MPRIO}")
    TMP = 32
    def epi(t):
        L = []
        for tk in range(2):
            A = ACC + 16*(2*t+tk); T = TMP + 8*tk
            L += [f"v_mul_f32 v{T+r}, {LOG2E:#x}, v{A+r}" for r in range(8)]
            L += [f"v_exp_f32 v{T+r}, -v{T+r}" for r in range(8)]
            L += [f"v_mul_f32 v{A+r}, v{A+r}, v{A+8+r}" for r in range(8)]
            L += [f"v_add_f32 v{T+r}, 1.0, v{T+r}" for r in range(8)]
            L += [f"v_rcp_f32 v{T+r}, v{T+r}" for r in range(8)]
            L += ["s_nop 0"]
            L += [f"v_mul_f32 v{A+r}, v{A+r}, v{T+r}" for r in range(8)]
            L += [f"v_cvt_pk_bf16_f32 v{A+8+j}, v{A+2*j}, v{A+2*j+1}" for j in range(4)]
            L += [("st", f"buffer_store_dwordx4 {vr(A+8,4)}, v8, {sr(R_WS,4)}, s{78+tk} offen offset:{t*1024} sc1")]
        return L
    def emit(x):
        if isinstance(x, tuple): k.vmem(x[1], "hst")
        else: k(x)
    for t in range(4):
        ep = epi(t - 1) if t else []
        per = -(-len(ep) // 7)
        n = 0
        for i, kk in enumerate(range(28, 32)):
            for tk in range(2):
                k.wait_lg(lambda x: x == ("a", kk, t) or x == ("b", kk))
                mfma(t, tk, TA[t&1][kk], TB[kk]+4*tk, False)
                if tk == 0 and t < 3: aread(kk, t + 1, TA[(t+1)&1][kk])
                if n == 0 and ep: k.nop(10)
                else:
                    for x in ep[:per]: emit(x)
                    ep = ep[per:]
                n += 1
            if t == 3 and i == 0:
                k.wait_all_lg(); k.lds("ds_write_b32 v28, v29")
                st()
        for x in ep: emit(x)
    k.nop(10)
    ep3 = epi(3)
    for i_, x in enumerate(ep3):
        emit(x)
        if CDEL == 2 and i_ == len(ep3) - CDA: k.lds("ds_write_b32 v28, v29 offset:32")
    st()
    k(f"v_mov_b32 v28, {L_FLAG + 64}"); mr_wait(k, 28, 24)
    k(f"v_readfirstlane_b32 s{S_TAG}, v30")
    for j in range(6, 9): w2dma(k, j)
    k(f"s_lshl_b32 s71, s{S_RW}, 4"); k("v_mov_b32 v24, s71")
    k.wait_vm("hst"); publish(k, 81, 22)
    lds_wait1(k, 24, L_FLAG + 12, 25)
    k.label("L_G2")
    gen_G2(k, st)

def gen_Maux(k, st):
    k.srd(R_U, S_U, 2048*1024)
    k(f"s_lshl_b32 s76, s{S_XCD}, 2"); k(f"s_add_u32 s76, s76, s{S_IDX}")
    k("v_lshrrev_b32 v22, 4, v1"); k("v_bfe_u32 v23, v1, 1, 3"); k("v_xor_b32 v23, v23, v22")
    k("v_lshlrev_b32 v10, 10, v22"); k("v_lshl_add_u32 v10, v23, 5, v10"); k("v_and_b32 v23, 1, v1"); k("v_lshl_add_u32 v10, v23, 4, v10")
    k("v_xor_b32 v11, 0x80, v10")
    k(f"s_lshl_b32 s77, s{S_RW}, 8"); k("v_add_u32 v10, s77, v10"); k("v_add_u32 v11, s77, v11")
    k("s_lshl_b32 s77, s76, 16"); k(f"s_lshl_b32 s78, s{S_RW}, 14"); k(f"s_add_u32 s78, s78, {L_AUX}")
    for tq in range(16):
        k(f"s_add_u32 m0, s78, {tq*1024}"); k(f"s_add_u32 s79, s77, {tq*4096}")
        k.vmem(f"buffer_load_dwordx4 v{10 + ((tq>>1)&1)}, {sr(R_U,4)}, s79 offen lds", "dma")
    prefetch_g(k)
    k("v_lshlrev_b32 v12, 4, v22")
    k("v_bfe_u32 v23, v1, 2, 2"); k("v_lshl_add_u32 v24, v22, 3, v23"); k("v_lshlrev_b32 v13, 8, v24")
    k("v_and_b32 v24, 1, v22"); k("v_lshl_add_u32 v24, v24, 2, v23"); k("v_lshl_add_u32 v13, v24, 5, v13")
    k("v_and_b32 v24, 3, v1"); k("v_lshl_add_u32 v13, v24, 3, v13"); k("v_add_u32 v13, s78, v13")
    k("v_and_b32 v25, 15, v1")
    k("s_lshl_b32 s83, s76, 7"); k(f"s_add_u32 s83, s83, {LY.WS_UT}")
    k(f"s_lshl_b32 s79, s{S_RW}, 11"); k(f"s_add_u32 s79, s79, {L_AUX + 65536}")
    k("v_and_b32 v19, 7, v25"); k("v_xor_b32 v19, v19, v22"); k("v_lshlrev_b32 v16, 7, v25"); k("v_lshl_add_u32 v16, v19, 4, v16"); k("v_add_u32 v16, s79, v16")
    k("v_xor_b32 v20, 64, v16")
    k("v_add_u32 v17, s79, v8")
    k("v_lshrrev_b32 v18, 3, v1"); k("v_and_b32 v19, 7, v1"); k("v_xor_b32 v19, v19, v18")
    k(f"s_lshl_b32 s79, s{S_RW}, 7"); k("v_add_u32 v18, s79, v18"); k("v_lshlrev_b32 v18, 12, v18"); k("v_lshl_add_u32 v18, v19, 4, v18")
    st()
    k.wait_vm("dma")
    tag_issue(k, 26)
    st()
    for cb in range(8):
        k(f"v_xor_b32 v15, {32*cb}, v13")
        for a in range(2):
            base = 160 + (cb*2+a) * 4
            for s in range(2):
                k.lds(f"ds_read_b64_tr_b16 {vr(base+2*s,2)}, v15 offset:{a*8192 + s*1024}", ("t", cb, a))
    def ust(cb):
        for a in range(2):
            base = 160 + (cb*2+a) * 4
            k.wait_lg(("r", cb, a))
            k(f"s_add_u32 s81, s83, {cb*65536 + a*32768}")
            k.vmem(f"buffer_store_dwordx4 {vr(base,4)}, v18, {sr(R_WS,4)}, s81 offen sc1", "st")
    for cb in range(8):
        for a in range(2):
            base = 160 + (cb*2+a) * 4
            k.wait_lg(("t", cb, a))
            k.lds(f"ds_write_b128 v{20 if a else 16}, {vr(base,4)}")
        for a in range(2):
            k.lds(f"ds_read_b128 {vr(160 + (cb*2+a)*4,4)}, v17 offset:{1024*a}", ("r", cb, a))
        if cb: ust(cb - 1)
    ust(7)
    tag_check(k, 26)
    k(f"s_lshl_b32 s79, s{S_RW}, 5"); k("s_add_u32 s79, s79, s76"); k("s_lshl_b32 s79, s79, 7"); k(f"s_add_u32 s79, s79, {LY.WS_FU}")
    k.wait_all_vm()
    publish(k, 79, 26)
    for s in range(16):
        k.vmem(f"global_load_dwordx4 {vr(96+4*s,4)}, v12, {sr(S_GW,2)} offset:{64*s}", "gw")
    st()
    k("s_barrier")
    k(f"s_lshl_b32 s79, s{S_RW}, 12"); k(f"s_add_u32 s79, s79, {L_AUX}"); k("v_lshlrev_b32 v16, 8, v25"); k("v_add_u32 v16, s79, v16")
    k("v_and_b32 v23, 3, v25"); k("v_bfe_u32 v24, v25, 3, 1"); k("v_lshl_add_u32 v23, v24, 2, v23")
    k("v_lshrrev_b32 v24, 1, v22"); k("v_xor_b32 v23, v23, v24"); k("v_lshl_add_u32 v16, v23, 5, v16")
    k("v_and_b32 v24, 1, v22"); k("v_lshl_add_u32 v16, v24, 4, v16")
    for s3 in range(4):
        k(f"v_xor_b32 v17, {64*s3}, v16")
        for reg in range(4):
            k.lds(f"ds_read_b128 {vr(32+4*(4*reg+s3),4)}, v17 offset:{reg*16384}", "gx")
    for i in range(4): k(f"v_mov_b32 v{28+i}, 0x3f803f80")
    k.wait_all_lg(); k.wait_all_vm()
    for s in range(16):
        T = 160
        for j in range(4):
            x = 32+4*s+j; w = 96+4*s+j
            k(f"v_lshlrev_b32 v{T+4*j}, 16, v{x}"); k(f"v_and_b32 v{T+4*j+1}, 0xffff0000, v{x}")
            k(f"v_lshlrev_b32 v{T+4*j+2}, 16, v{w}"); k(f"v_and_b32 v{T+4*j+3}, 0xffff0000, v{w}")
        for j in range(4): k(f"v_pk_mul_f32 {vr(T+4*j,2)}, {vr(T+4*j,2)}, {vr(T+4*j+2,2)}")
        for j in range(4): k(f"v_cvt_pk_bf16_f32 v{32+4*s+j}, v{T+4*j}, v{T+4*j+1}")
        k.nop(2)
        k(f"v_mfma_f32_16x16x32_bf16 v[224:227], v[28:31], {vr(32+4*s,4)}, {'0' if s==0 else 'v[224:227]'}")
    k.nop(10)
    rbf(k, 224)
    k(f"v_mul_f32 v225, {LOG2E:#x}, v224"); k("v_exp_f32 v225, -v225"); k("s_nop 0")
    k("v_add_f32 v225, 1.0, v225"); k("v_rcp_f32 v225, v225"); k("s_nop 0")
    rbf(k, 225)
    k("s_lshl_b32 s79, s76, 8"); k(f"s_lshl_b32 s81, s{S_RW}, 6"); k("s_add_u32 s79, s79, s81"); k(f"s_add_u32 s79, s79, {LY.WS_G}")
    k("v_lshlrev_b32 v226, 2, v25")
    k.vmem(f"buffer_store_dword v225, v226, {sr(R_WS,4)}, s79 offen sc1", "st")
    k("s_lshl_b32 s78, s76, 2"); k(f"s_add_u32 s78, s78, s{S_RW}"); k("s_lshl_b32 s78, s78, 7"); k(f"s_add_u32 s78, s78, {LY.WS_FG}")
    k.wait_all_vm()
    publish(k, 78, 22)
    st()
    k("v_and_b32 v13, 3, v1"); k("v_lshlrev_b32 v13, 7, v13"); k("s_lshl_b32 s78, s76, 9"); k(f"s_add_u32 s78, s78, {LY.WS_FG}")
    poll(k, 13, 78, 12)
    for j in range(9): w2dma(k, j)
    k.wait_all_vm()
    st(); st()
    k("s_branch L_G2")

def main():
    COLD.clear(); _lbl[0] = 0
    k = Asm()
    k("s_cmp_ge_u32 s2, 256"); k("s_cbranch_scc1 L_end")
    if STAMPS: k("s_memrealtime s[96:97]")
    k("s_load_dwordx16 s[4:19], s[0:1], 0"); k("s_load_dwordx16 s[20:35], s[0:1], 64"); k("s_load_dwordx2 s[36:37], s[0:1], 128")
    k("v_and_b32 v1, 63, v0"); k("v_lshrrev_b32 v2, 6, v0")
    k("s_getpc_b64 s[90:91]"); k("s_and_b32 s90, s90, 0xffffff00")
    k("s_lshr_b32 s64, s2, 3"); k("s_lshl_b32 s64, s64, 4")
    k("v_and_b32 v4, 1, v0"); k("v_lshl_add_u32 v4, v2, 1, v4"); k("v_add_u32 v4, s64, v4"); k(f"v_min_u32 v4, {CODEL}, v4"); k("v_lshlrev_b32 v4, 7, v4")
    k.vmem("global_load_dword v253, v4, s[90:91]", "cpf")
    k(f"v_readfirstlane_b32 s{S_WAVE}, v2")
    k(f"s_and_b32 s{S_XCD}, s2, 7"); k(f"s_lshr_b32 s{S_IDX}, s2, 3")
    k(f"s_and_b32 s{S_RW}, s{S_WAVE}, 3")
    k(f"s_lshr_b32 s{S_CH}, s{S_RW}, 1"); k(f"s_and_b32 s{S_HALF}, s{S_RW}, 1")
    k(f"s_lshl_b32 s{S_CHAN}, s2, 1"); k(f"s_add_u32 s{S_CHAN}, s{S_CHAN}, s{S_CH}")
    k(f"s_max_u32 s65, s{S_IDX}, 4"); k("s_sub_u32 s65, s65, 4")
    k(f"s_mul_i32 s{S_MT}, s65, 37"); k(f"s_lshr_b32 s{S_MT}, s{S_MT}, 8")
    k(f"s_mul_i32 s64, s{S_MT}, 7"); k(f"s_sub_u32 s{S_FT}, s65, s64")
    k(f"s_lshr_b32 s64, s{S_XCD}, 1"); k("s_lshl_b32 s64, s64, 2"); k(f"s_add_u32 s{S_MT}, s{S_MT}, s64")
    k(f"s_and_b32 s64, s{S_XCD}, 1"); k("s_mul_i32 s64, s64, 7"); k(f"s_add_u32 s{S_FT}, s{S_FT}, s64")
    k(f"s_lshl_b32 s{S_TT}, s{S_XCD}, 2"); k(f"s_lshr_b32 s64, s{S_IDX}, 3"); k(f"s_add_u32 s{S_TT}, s{S_TT}, s64")
    k(f"s_and_b32 s{S_NT}, s{S_IDX}, 7")
    k(f"s_mul_i32 s{S_TABB}, s{S_RW}, {TABW}"); k(f"s_add_u32 s{S_TABB}, s{S_TABB}, {L_TAB}")
    k("s_waitcnt lgkmcnt(0)")
    param_loads(k)
    k("s_barrier")
    vm0 = copy.deepcopy(k.vm)
    k(f"s_cmp_ge_u32 s{S_WAVE}, 4"); k("s_cbranch_scc1 L_H")
    st = Stamper(k, STAMPS, 3, 0)
    if STAMPS: k("v_writelane_b32 v3, s96, 14")
    st(); gen_M(k, st)
    k.label("L_H"); k.reset_counters(); k.vm = copy.deepcopy(vm0)
    st = Stamper(k, STAMPS, 250, 1); st(); gen_H(k, st, vm0)
    k.label("L_Maux"); k.reset_counters(); k.vm = copy.deepcopy(vm0)
    st = Stamper(k, STAMPS, 3, 0); st.n = 1; gen_Maux(k, st)
    k.out.extend(COLD)
    k.label("L_end"); k("s_endpgm")
    name = "gated_mix__ssm_conv_s4__glu_gated_swiglu__prompt_kernel"
    hdr = open("gated_mix__ssm_conv_s4__glu_gated_swiglu__prompt.s.ref").read().split("; Override")[0]
    s = hdr + f"; @launch grid=(256,1,1) block=(512,1,1) lds={LDS_TOTAL}\n" + '.amdgcn_target "amdgcn-amd-amdhsa--gfx950"\n.text\n' + kernel_header(name) + k.text() + '.section .rodata,"a"\n' + kernel_desc(name, 256, 102, 256)
    open(sys.argv[1], "w").write(s)
def codesize(path):
    import subprocess, re
    subprocess.check_call(["clang", "-x", "assembler", "-target", "amdgcn-amd-amdhsa", "-mcpu=gfx950", "-c", path, "-o", "_sz.o"])
    o = subprocess.check_output(["llvm-objdump", "-h", "_sz.o"]).decode()
    return int(re.search(r"\.text\s+([0-9a-f]+)", o).group(1), 16)
main()
sz = codesize(sys.argv[1]); CODEL = (sz - 4) // 128
assert CODEL < 512
main()
print("code bytes", sz)
```

```python
import sys, struct, copy
from asmlib import *
import layout as LY
LOG2E = 0x3fb8aa3b
def opt(n, d):
    for a in sys.argv:
        if a.startswith(f"--{n}="): return int(a.split("=")[1])
    return d
STAMPS = "--stamps" in sys.argv
MPRIO = opt("mprio", 2); HP2 = opt("hp2", 3); NWR = opt("nwr", 11); AGI = opt("agi", 20); FJ = opt("fj", 9)
ROTQ = opt("rotq", 4); PRE2 = opt("pre2", 4); DPE = opt("dpe", 2); TAGE = opt("tage", 11); UFE = opt("ufe", 13); UTE = opt("ute", 15)
OMOD = {0: "", 1: " sc1", 2: " nt", 3: " sc0 sc1"}[opt("omod", 1)]; PKE = opt("pke", 1); OST = opt("ost", 1); CDEL = opt("cdel", 0); CDA = opt("cda", 30); WFS = opt("wfs", 6); G2F = opt("g2f", 0); CODEL = 300
def f2h(x): return "0x%08x" % struct.unpack("<I", struct.pack("<f", float(x)))[0]

S_U, S_ARE, S_AIM, S_BRE, S_BIM, S_CRE, S_CIM, S_LDT = 4, 6, 8, 10, 12, 14, 16, 18
S_DSK, S_W1, S_W3, S_W2, S_GW, S_OUT, S_DBG, S_WS = 20, 24, 26, 28, 30, 32, 34, 36
S_WAVE, S_XCD, S_IDX, S_MT, S_FT, S_TT, S_NT, S_RW = 38, 39, 40, 41, 42, 43, 44, 45
S_TAG = 46; S_CNT = 47
R_U, R_A, R_B, R_WS = 48, 52, 56, 60
S_TABB = 80; S_CH, S_HALF, S_CHAN = 84, 85, 86
STG = 24576; RB = 40960
L_FLAG = 0; L_TAB = 1024; L_B5 = 1024
ROWB = 272; TABW = 32 * ROWB
CPY = 4160; PL = 1536
L_X = RB + 4 * STG; L_UP = RB; W2SLOTS = 9; L_W2 = RB + STG; L_AUX = RB + STG
LDS_TOTAL = RB + 5 * STG
RND2 = [0, 0, 2, 4, 4, 4, 6, 8, 8]
SPIN_MAX = 40000; LSPIN = 0x100000
def sbuf(sg): return [1, 2, 3, 4, 0, 5][sg % 6]
def bufaddr(b): return L_B5 if b == 5 else RB + b * STG
def slot_off(sl): return (sl // 3) * STG + (sl % 3) * 2048

def rbf(k, v):
    k(f"v_cvt_pk_bf16_f32 v{v}, v{v}, v{v}"); k(f"v_and_b32 v{v}, 0xffff0000, v{v}")
_lbl = [0]
def newlabel(p):
    _lbl[0] += 1; return f"L_{p}_{_lbl[0]}"
COLD = []
def cold(k, branch, fn):
    L = newlabel("cold"); B = newlabel("back")
    k(f"{branch} {L}"); k.label(B)
    c = Asm(); c.label(L); fn(c); c(f"s_branch {B}"); COLD.extend(c.out)

def spin_tail(k, L, ready_scc1, limit):
    k(f"s_cselect_b32 s{S_CNT}, {limit}, s{S_CNT}"); k(f"s_add_u32 s{S_CNT}, s{S_CNT}, 1")
    k(f"s_cmp_lt_u32 s{S_CNT}, {limit}"); k(f"s_cbranch_scc1 {L}")
def get_tag(k, vt):
    L = newlabel("tag")
    k(f"v_mov_b32 v{vt+1}, 0"); k(f"s_mov_b32 s{S_CNT}, 0")
    k.label(L)
    k(f"global_load_dword v{vt}, v{vt+1}, {sr(S_DBG,2)} sc1"); k("s_waitcnt vmcnt(0)")
    k(f"v_readfirstlane_b32 s{S_TAG}, v{vt}"); k(f"s_cmp_lg_u32 s{S_TAG}, 0")
    spin_tail(k, L, True, SPIN_MAX)
def poll(k, voff, soff, vt):
    L = newlabel("poll")
    k(f"s_mov_b32 s{S_CNT}, 0")
    k.label(L)
    k(f"buffer_load_dword v{vt}, v{voff}, {sr(R_WS,4)}, s{soff} offen sc1"); k("s_waitcnt vmcnt(0)"); k.vm.all_done()
    k(f"v_cmp_ne_u32 vcc, s{S_TAG}, v{vt}"); k("s_cmp_eq_u64 vcc, 0")
    spin_tail(k, L, True, SPIN_MAX)
def tag_issue(k, vt):
    k(f"v_mov_b32 v{vt+1}, 0"); k.vmem(f"global_load_dword v{vt}, v{vt+1}, {sr(S_DBG,2)} sc1", "tag")
def tag_check(k, vt):
    k.wait_vm("tag"); k(f"v_readfirstlane_b32 s{S_TAG}, v{vt}"); k(f"s_cmp_lg_u32 s{S_TAG}, 0")
    cold(k, "s_cbranch_scc0", lambda c: get_tag(c, vt))
def flag_issue(k, voff, soff, vt, name):
    k.vmem(f"buffer_load_dword v{vt}, v{voff}, {sr(R_WS,4)}, s{soff} offen sc1", name)
def flag_check(k, voff, soff, vt, name):
    k.wait_vm(name); k(f"v_cmp_ne_u32 vcc, s{S_TAG}, v{vt}")
    cold(k, "s_cbranch_vccnz", lambda c: poll(c, voff, soff, vt))
def publish(k, soff, vt):
    k(f"v_mov_b32 v{vt}, s{S_TAG}"); k(f"v_lshlrev_b32 v{vt+1}, 2, v1")
    k("s_mov_b32 exec_hi, 0")
    k.vmem(f"buffer_store_dword v{vt}, v{vt+1}, {sr(R_WS,4)}, s{soff} offen sc1", "flag")
    k("s_mov_b32 exec_hi, -1")
def lds_wait1(k, va, off, vt):
    L = newlabel("lw")
    k(f"s_mov_b32 s{S_CNT}, 0")
    k.label(L)
    k(f"ds_read_b32 v{vt}, v{va} offset:{off}"); k("s_waitcnt lgkmcnt(0)"); k.lg.all_done()
    k(f"v_readfirstlane_b32 s70, v{vt}"); k("s_cmp_eq_u32 s70, 1")
    spin_tail(k, L, True, LSPIN)
def mr_wait(k, va, vt):
    L = newlabel("mr")
    k(f"s_mov_b32 s{S_CNT}, 0")
    k.label(L)
    k(f"ds_read_b128 {vr(vt,4)}, v{va}"); k("s_waitcnt lgkmcnt(0)"); k.lg.all_done()
    k(f"v_and_b32 v{vt}, v{vt}, v{vt+1}"); k(f"v_and_b32 v{vt+2}, v{vt+2}, v{vt+3}"); k(f"v_and_b32 v{vt}, v{vt}, v{vt+2}"); k("s_nop 0")
    k(f"v_readfirstlane_b32 s70, v{vt}"); k("s_cmp_eq_u32 s70, 1")
    spin_tail(k, L, True, LSPIN)

def merge(a, b):
    ta = max(1, sum(x[0] for x in a)); tb = max(1, sum(x[0] for x in b)); out = []; i = j = 0; wa = wb = 0
    while i < len(a) or j < len(b):
        if j >= len(b) or (i < len(a) and wa / ta <= wb / tb): out.append(a[i]); wa += a[i][0]; i += 1
        else: out.append(b[j]); wb += b[j][0]; j += 1
    return out

PRM = 232; KD = 128
def param_loads(k):
    k(f"s_lshl_b32 s69, s{S_CHAN}, 8"); k(f"s_lshl_b32 s70, s{S_HALF}, 7"); k("s_add_u32 s69, s69, s70")
    k("v_lshlrev_b32 v240, 1, v1"); k("v_add_u32 v240, s69, v240")
    for i in range(8): k(f"v_mov_b32 v{PRM+i}, 0")
    for i, sp in enumerate([S_ARE, S_AIM, S_BRE, S_BIM, S_CRE, S_CIM]):
        k.vmem(f"global_load_short_d16_hi v{PRM+i}, v240, {sr(sp,2)}", "p")
    k(f"s_lshl_b32 s70, s{S_CHAN}, 1"); k("v_mov_b32 v241, s70")
    k.vmem(f"global_load_short_d16_hi v{PRM+6}, v241, {sr(S_LDT,2)}", "p")
    k.vmem(f"global_load_short_d16_hi v{PRM+7}, v241, {sr(S_DSK,2)}", "p")

def kgen(k):
    atoms = []
    def A(w, fn): atoms.append((w, fn))
    Are, Aim, Bre, Bim, Cre, Cim, LDT, DSK = range(PRM, PRM + 8)
    W = {0: 120, 1: 122, 2: 124, 3: 126}
    E = {i: 32 + 2*(i-1) for i in range(1, 9)}; E128 = 48; E512 = 50; V32 = 52; E256 = 54
    PKS = [56, 146]
    TP = [180 + 2*i for i in range(8)]; VQ = [196 + 2*i for i in range(8)]; WQ = [212 + 2*i for i in range(8)]
    VF, AFR, RA = 72, 88, 242
    k("v_and_b32 v243, 15, v1"); k("v_lshrrev_b32 v244, 4, v1")
    k(f"v_mul_u32_u24 v{RA}, {ROWB}, v243"); k(f"v_lshl_add_u32 v{RA}, v244, 4, v{RA}"); k(f"v_add_u32 v{RA}, s{S_TABB}, v{RA}")
    k(f"s_mov_b32 m0, s{S_TABB}")
    def cmulb(lst):
        for d, x, y in lst: assert d != x and d != y
        def f():
            for d, x, y in lst: k(f"v_pk_mul_f32 {vr(d,2)}, {vr(x,2)}, {vr(y,2)} op_sel:[0,0] op_sel_hi:[0,1]")
            for d, x, y in lst: k(f"v_pk_fma_f32 {vr(d,2)}, {vr(x,2)}, {vr(y,2)}, {vr(d,2)} op_sel:[1,1,0] op_sel_hi:[1,0,1] neg_lo:[1,0,0]")
        A(2*len(lst), f)
    k(f"s_mov_b32 s76, {LOG2E:#x}"); k("s_mov_b32 s77, 0x32a57060")
    k(f"v_mul_f32 v243, s76, v{LDT}"); k(f"v_fma_f32 v244, v{LDT}, s76, -v243"); k(f"v_fma_f32 v244, v{LDT}, s77, v244")
    k("v_exp_f32 v243, v243"); k("v_mul_f32 v244, 0x3f317218, v244"); k("v_fma_f32 v243, v243, v244, v243")
    rbf(k, 243)
    for r in (Are, Aim, Bre, Bim): k(f"v_mul_f32 v{r}, v243, v{r}")
    k(f"v_mul_f32 v{Are}, s76, v{Are}"); k(f"v_mul_f32 v{Aim}, 0.15915494, v{Aim}")
    dl = [(E[8], 8), (E128, 128), (E[4], 4), (V32, 32), (E[1], 1), (E512, 512)]
    for i, (d, e) in enumerate(dl): k(f"v_mul_f32 v{TP[i]}, {f2h(e)}, v{Are}"); k(f"v_mul_f32 v{TP[i]+1}, {f2h(e)}, v{Aim}")
    for i, (d, e) in enumerate(dl): k(f"v_exp_f32 v{TP[i]}, v{TP[i]}"); k(f"v_fract_f32 v{TP[i]+1}, v{TP[i]+1}")
    for i, (d, e) in enumerate(dl): k(f"v_cos_f32 v{d}, v{TP[i]+1}"); k(f"v_sin_f32 v{d+1}, v{TP[i]+1}")
    k("s_nop 0")
    for i, (d, e) in enumerate(dl): k(f"v_mul_f32 v{d}, v{TP[i]}, v{d}"); k(f"v_mul_f32 v{d+1}, v{TP[i]}, v{d+1}")
    cur = [0]
    def packb(lst):
        PK = PKS[cur[0] & 1]
        def f():
            for slot, v, neg in lst: k(f"v_cvt_pk_bf16_f32 v{PK+slot}, v{v}, {'-' if neg else ''}v{v+1}")
        A(len(lst), f)
    def wr(row, reg): return (2, lambda: k.lds(f"ds_write_addtid_b32 v{reg} offset:{row*ROWB}"))
    cmulb([(W[0], Cre, Bre), (VQ[2], E[8], E[8]), (E256, E128, E128), (VQ[5], E[8], V32), (E[2], E[1], E[1]), (E[5], E[4], E[1])])
    cmulb([(W[1], W[0], E128), (VQ[3], VQ[2], E[8]), (VQ[6], VQ[2], V32), (W[2], W[0], E256), (E[3], E[2], E[1]), (E[6], E[4], E[2])])
    cmulb([(W[3], W[1], E256), (VQ[7], VQ[3], V32), (VQ[0], V32, V32), (VQ[1], VQ[5], V32), (E[7], E[4], E[3])])
    A(1, lambda: k(f"v_mov_b32 v{PKS[0]}, 0x3f80"))
    packb([(1, E[8], 0), (2, VQ[2], 0), (3, VQ[3], 0), (4, V32, 0), (5, VQ[5], 0), (6, VQ[6], 0), (7, VQ[7], 0)])
    cmulb([(VQ[2], VQ[6], V32), (VQ[3], VQ[7], V32), (VQ[4], VQ[0], V32), (VQ[5], VQ[1], V32)])
    cmulb([(VQ[6], VQ[2], V32), (VQ[7], VQ[3], V32)])
    packb([(8+i, VQ[i], 0) for i in range(8)])
    pend = [wr(j, PKS[0]+j) for j in range(16)] + [(4, lambda: [k.lds(f"ds_read_b128 {vr(VF+4*s,4)}, v{RA} offset:{64*s}") for s in range(4)])]
    def prods(items):
        dp = [(s_, w, True) for slots, w, x in items if x == 0 for s_ in slots]
        pr = [(slots, w, x) for slots, w, x in items if x]
        if dp: packb(dp)
        for i in range(0, len(pr), 8):
            b = pr[i:i+8]
            for h in range(0, len(b), 4): cmulb([(TP[h+j], w, E[x]) for j, (slots, w, x) in enumerate(b[h:h+4])])
            packb([(s_, TP[j], True) for j, (slots, w, x) in enumerate(b) for s_ in slots])
    def tile_compute(tau):
        items = []
        if tau < 2:
            for g in range(4):
                xs = [(4*tau + i) if g < 2 else RND2[4*tau + i] for i in range(4)]
                for x in sorted(set(xs)): items.append(([4*g + i for i in range(4) if xs[i] == x], W[g], x))
        elif tau == 2:
            cmulb([(WQ[g], W[g], E512) for g in range(4)])
            for g in range(4):
                items.append(([4*g], W[g], 8))
                for i, x in enumerate([0, 4, 8]): items.append(([4*g + 1 + i], WQ[g], x))
        else:
            cmulb([(WQ[4+g], WQ[g], E512) for g in range(4)])
            cmulb([(WQ[g], WQ[4+g], E512) for g in range(4)])
            for b in range(8):
                w = WQ[4+b] if b < 4 else WQ[b-4]
                items.append(([2*b], w, 0)); items.append(([2*b+1], w, 8))
        prods(items)
    def tile_mfma(tau):
        def f1():
            for s in range(4): k.lds(f"ds_read_b128 {vr(AFR+4*s,4)}, v{RA} offset:{16*ROWB + 64*s}", ("af", tau, s))
        def f2():
            dd = KD + 4*tau
            for s in range(4):
                k.wait_lg(("af", tau, s))
                k(f"v_mfma_f32_16x16x32_bf16 {vr(dd,4)}, {vr(AFR+4*s,4)}, {vr(VF+4*s,4)}, {'0' if s==0 else vr(dd,4)}")
        return [(6, f1), (8, f2)]
    for tau in range(4):
        cur[0] += 1
        n0 = len(atoms); tile_compute(tau); c_ = atoms[n0:]; del atoms[n0:]
        atoms.extend(merge(c_, pend))
        pend = [wr(16+j, PKS[cur[0] & 1]+j) for j in range(16)] + tile_mfma(tau)
    atoms.extend(pend)
    for w, f in atoms: f()
    k("v_lshlrev_b32 v243, 4, v1"); k(f"v_add_u32 v243, s{S_TABB}, v243")
    k.nop(7)
    for q in range(4): k.lds(f"ds_write_b128 v243, {vr(KD+4*q,4)} offset:{1024*q}")

def w2_addr(k, v, t1, t2):
    k.srd(R_A, S_W2, 1792*1024)
    k(f"v_lshrrev_b32 v{t1}, 3, v1"); k(f"v_lshlrev_b32 v{v}, 10, v{t1}")
    k(f"v_and_b32 v{t1}, 2, v{t1}"); k(f"v_bfe_u32 v{t2}, v1, 1, 2"); k(f"v_xor_b32 v{t1}, v{t1}, v{t2}"); k(f"v_lshl_add_u32 v{v}, v{t1}, 5, v{v}")
    k(f"v_and_b32 v{t1}, 1, v1"); k(f"v_lshl_add_u32 v{v}, v{t1}, 4, v{v}")
    k(f"s_lshl_b32 s64, s{S_NT}, 7"); k(f"s_mul_i32 s65, s{S_RW}, {448*1024}"); k("s_add_u32 s64, s64, s65"); k(f"v_add_u32 v{v}, s64, v{v}")
    k(f"s_mul_i32 s66, s{S_RW}, 6144"); k(f"s_add_u32 s66, s66, {L_W2}")
def w2dma(k, i):
    so = slot_off(i % W2SLOTS)
    for q in range(2):
        k(f"s_add_u32 m0, s66, {so + q*1024}"); k(f"s_mov_b32 s67, {(16*i + 8*q)*1024}")
        k.vmem(f"buffer_load_dwordx4 v2, {sr(R_A,4)}, s67 offen lds", ("w2", i))

def gen_H(k, st, vm0):
    D = KD; DX = 104; P = 148; DSK = PRM + 7; EB = 184
    k.srd(R_WS, S_WS, LY.WS_SIZE_USED)
    def common_setup():
        k(f"s_mul_i32 s68, s{S_CH}, {2*TABW}"); k(f"s_add_u32 s68, s68, {L_TAB}")
        k(f"s_lshl_b32 s70, s{S_RW}, 4"); k(f"s_add_u32 s70, s70, {L_FLAG}"); k("v_mov_b32 v29, s70"); k("v_xor_b32 v30, 16, v29")
        for i in range(4): k(f"v_mov_b32 v{176+i}, 0")
        k.lds("ds_write_b128 v29, v[176:179]")
        k(f"v_mov_b32 v28, {L_FLAG + 64}")
        k("v_lshlrev_b32 v22, 4, v1")
        k(f"s_lshl_b32 s78, s{S_RW}, 12"); k(f"s_add_u32 s78, s78, {L_X}"); k("v_add_u32 v24, s78, v22"); k("v_xor_b32 v25, 0x1000, v24")
        k(f"s_mul_i32 s71, s{S_RW}, {4*PL}"); k(f"s_add_u32 s71, s71, {L_UP}"); k("v_add_u32 v23, s71, v22")
    def hs_set(i):
        k.wait_all_lg(); k("v_mov_b32 v31, 1"); k.lds(f"ds_write_b32 v29, v31 offset:{4*i}")
    def hs_wait(i): lds_wait1(k, 30, 4*i, 31)
    def dsum():
        k("v_add_u32 v16, s68, v22")
        for q in range(4): k.lds(f"ds_read_b128 {vr(D+4*q,4)}, v16 offset:{1024*q}")
        for q in range(4): k.lds(f"ds_read_b128 {vr(DX+4*q,4)}, v16 offset:{TABW + 1024*q}")
        k.wait_all_lg()
        for r in range(16): k(f"v_add_f32 v{D+r}, v{D+r}, v{DX+r}")
    def eprep():
        k("v_and_b32 v16, 15, v1"); k("v_lshrrev_b32 v17, 4, v1")
        k("v_and_b32 v18, 1, v16"); k("v_cmp_eq_u32 vcc, 0, v18"); k("s_nop 1")
        k(f"v_cndmask_b32 v{D+16}, v{D+13}, v{D+12}, vcc"); k(f"v_cndmask_b32 v{D+17}, v{D+15}, v{D+14}, vcc")
        k(f"s_cmp_eq_u32 s{S_HALF}, 0"); k("s_cselect_b64 vcc, -1, 0")
        A0 = [D+i for i in range(9)]; A1 = [D+9]*3 + [D+10]*3 + [D+11]*3
        B0 = [D+12]*4 + [D+16] + [D+13]*4; B1 = [D+14]*4 + [D+17] + [D+15]*4
        for i in range(9): k(f"v_cndmask_b32 v{EB+i}, v{B0[i]}, v{A0[i]}, vcc")
        for i in range(9): k(f"v_cndmask_b32 v{EB+9+i}, v{B1[i]}, v{A1[i]}, vcc")
        k("v_lshlrev_b32 v19, 4, v16"); k(f"v_sub_u32 v19, {4080 - 16}, v19"); k("v_add_u32 v19, s68, v19")
        k(f"s_add_u32 s70, s{S_HALF}, 8"); k("v_lshlrev_b32 v20, s70, v17"); k("v_sub_u32 v20, v19, v20")
        k(f"s_lshl_b32 s70, s{S_HALF}, 11"); k("v_subrev_u32 v20, s70, v20")
        k(f"s_cmp_eq_u32 s{S_HALF}, 0"); k("s_cselect_b32 s70, 4, 1"); k("s_lshl_b32 s70, s70, 8"); k("v_subrev_u32 v21, s70, v20")
        k(f"v_mul_u32_u24 v26, {CPY}, v17"); k("v_lshl_add_u32 v26, v16, 2, v26"); k("v_add_u32 v26, s68, v26")
    def write_block(e, addr, P):
        for j, (lo, hi) in enumerate([(7,6),(5,4),(3,2),(1,0)]): k(f"v_cvt_pk_bf16_f32 v{P+j}, v{e+lo}, v{e+hi}")
        for j, (lo, hi) in enumerate([(8,7),(6,5),(4,3),(2,1)]): k(f"v_cvt_pk_bf16_f32 v{P+4+j}, v{e+lo}, v{e+hi}")
        k(f"v_mov_b32 v{P+8}, v{P+1}"); k(f"v_mov_b32 v{P+9}, v{P+2}"); k(f"v_mov_b32 v{P+10}, v{P+5}"); k(f"v_mov_b32 v{P+11}, v{P+6}")
        return [f"ds_write_b128 v{addr}, {vr(P,4)} offset:16",
                f"ds_write_b32 v{addr}, v{P} offset:{2*CPY + 12}", f"ds_write_b32 v{addr}, v{P+3} offset:{2*CPY + 24}",
                f"ds_write_b64 v{addr}, {vr(P+8,2)} offset:{2*CPY + 16}",
                f"ds_write_b32 v{addr}, v{P+4} offset:{CPY + 12}", f"ds_write_b32 v{addr}, v{P+7} offset:{CPY + 24}",
                f"ds_write_b64 v{addr}, {vr(P+4,2)} offset:{3*CPY + 8}", f"ds_write_b64 v{addr}, {vr(P+6,2)} offset:{3*CPY + 16}",
                f"ds_write_b64 v{addr}, {vr(P+10,2)} offset:{CPY + 16}"]
    WL = []
    def epack():
        WL.extend(write_block(EB, 20, 204)); WL.extend(write_block(EB + 9, 21, 216))
        k(f"v_cvt_pk_bf16_f32 v27, v{D}, v{D}")
    def ewrite():
        k(f"s_cmp_eq_u32 s{S_HALF}, 0"); k("s_cselect_b64 exec, -1, 0")
        k.lds(f"ds_write_b32 v26, v176 offset:{2*2044}")
        k("s_mov_b64 exec, -1")
        for w in WL: k.lds(w)
        k("v_mov_b32 v31, s68"); k("s_cselect_b64 exec, 1, 0")
        k.lds(f"ds_write_b16 v31, v27 offset:{CPY + 2*2046}"); k.lds(f"ds_write_b16 v31, v27 offset:{3*CPY + 2*2044}")
        k("s_mov_b64 exec, -1")
    def u_flag():
        tag_check(k, 244)
        k(f"v_mov_b32 v245, {L_FLAG + 80}"); k(f"v_mov_b32 v244, s{S_TAG}"); k.lds("ds_write_b32 v245, v244")
        k("v_and_b32 v246, 31, v1"); k("v_lshlrev_b32 v246, 7, v246")
        k(f"s_lshr_b32 s79, s{S_CHAN}, 7"); k("s_lshl_b32 s79, s79, 12"); k(f"s_add_u32 s79, s79, {LY.WS_FU}")
        k(f"s_lshl_b32 s90, s{S_CHAN}, 12"); k(f"s_add_u32 s90, s90, {LY.WS_UT}")
        flag_issue(k, 246, 79, 247, "fu")
    def uload():
        flag_check(k, 246, 79, 247, "fu")
        for p in range(4): k.vmem(f"buffer_load_dwordx4 {vr(160+4*p,4)}, v22, {sr(R_WS,4)}, s90 offen offset:{1024*p} sc1", "ut")
    def caddr():
        k("v_and_b32 v16, 31, v1"); k("v_lshrrev_b32 v17, 5, v1")
        k(f"v_mul_u32_u24 v249, {PL}, v17"); k("v_lshl_add_u32 v249, v16, 4, v249"); k("v_add_u32 v249, s71, v249")
        k("v_sub_u32 v18, 3, v16"); k("v_and_b32 v18, 3, v18"); k(f"v_mul_u32_u24 v18, {CPY - 2}, v18")
        k("v_sub_u32 v19, 31, v16"); k("v_lshl_add_u32 v19, v17, 3, v19"); k("v_lshl_add_u32 v18, v19, 1, v18")
        k(f"s_lshl_b32 s70, s{S_HALF}, 10"); k("s_sub_u32 s70, s68, s70"); k("v_add_u32 v18, s70, v18")
        k(f"s_lshl_b32 s70, s{S_HALF}, 8"); k("s_sub_u32 s70, 256, s70"); k("v_add_u32 v19, s70, v249")
        k("v_and_b32 v248, 3, v1"); k(f"v_mul_u32_u24 v248, {PL}, v248"); k("v_lshrrev_b32 v5, 2, v1"); k("v_lshl_add_u32 v248, v5, 4, v248"); k("v_add_u32 v248, s71, v248")
    def ustage():
        k.lds("ds_write_b128 v249, v[176:179]"); k.lds(f"ds_write_b128 v249, v[176:179] offset:{2*PL}")
        k.wait_vm("ut")
        for p in range(4): k.lds(f"ds_write_b128 v248, {vr(160+4*p,4)} offset:{p*256 + 512}")

    k(f"s_cmp_lt_u32 s{S_IDX}, 4"); k("s_cbranch_scc1 L_Haux")
    k.srd(R_U, S_U, 2048*1024); k.srd(R_A, S_W1, 512*3584); k.srd(R_B, S_W3, 512*3584)
    k("v_lshrrev_b32 v16, 4, v1"); k("v_bfe_u32 v17, v1, 1, 3"); k("v_xor_b32 v17, v17, v16")
    k("v_mul_u32_u24 v2, 3584, v16"); k("v_lshl_add_u32 v2, v17, 5, v2")
    k("v_and_b32 v17, 1, v1"); k("v_lshl_add_u32 v2, v17, 4, v2")
    k(f"s_lshl_b32 s70, s{S_FT}, 8"); k(f"s_mul_i32 s71, s{S_RW}, {8*3584}"); k("s_add_u32 s70, s70, s71")
    k("v_xor_b32 v3, 0x80, v2")
    k("v_add_u32 v2, s70, v2"); k("v_add_u32 v3, s70, v3")
    k("v_lshrrev_b32 v4, 2, v1"); k("v_lshlrev_b32 v4, 10, v4")
    k("v_and_b32 v17, 3, v1"); k("v_xor_b32 v17, v17, v16"); k("v_lshl_add_u32 v4, v17, 4, v4")
    k(f"s_lshl_b32 s70, s{S_MT}, 17"); k(f"s_lshl_b32 s71, s{S_RW}, 15"); k("s_add_u32 s70, s70, s71")
    k("v_add_u32 v4, s70, v4")
    k(f"s_lshl_b32 s72, s{S_RW}, 11")
    k(f"s_lshr_b32 s87, s{S_XCD}, 1"); k(f"s_mul_i32 s87, s87, {ROTQ}")
    def dma(sg):
        buf = bufaddr(sbuf(sg))
        k(f"s_add_u32 s88, s87, {sg}"); k("s_and_b32 s88, s88, 15")
        k(f"s_mul_i32 s89, s88, {32*3584}"); k("s_lshl_b32 s88, s88, 6")
        def one(lo, sb, so, v, srd):
            k(f"s_add_u32 m0, s72, {lo}"); k(f"s_add_u32 s73, s{sb}, {so}")
            k.vmem(f"buffer_load_dwordx4 v{v}, {sr(srd,4)}, s73 offen lds", ("w", sg))
        for m in range(2):
            for q in range(2): one(buf + m*8192 + q*1024, 89, q*4*3584, 2+m, R_A+4*m)
        for q in range(2): one(buf + 16384 + q*1024, 88, q*16*1024, 4, R_U)
    dma(0)
    k("s_barrier")
    common_setup(); k.lds("ds_write_b128 v28, v[176:179]"); k.lds("ds_write_b128 v28, v[176:179] offset:32")
    st()
    for sg in range(1, PRE2): dma(sg)
    st()
    nxt = PRE2
    for s in range(16):
        k.wait_vm(("w", s))
        if k.lg.outstanding() and s in (0, 1, 15): k.wait_all_lg()
        k("s_barrier")
        if s in (0, 8): st()
        cnt = 0
        while nxt < 16 and nxt <= max(4, s + 4) and cnt < DPE:
            dma(nxt); nxt += 1; cnt += 1
        if s == 0: dsum()
        if s == TAGE: tag_issue(k, 244)
        if s == 12: eprep(); epack(); w2_addr(k, 2, 16, 17)
        if s == UFE: u_flag(); caddr()
        if s == UTE: uload()
        if s in (14, 15):
            for j in range(3): w2dma(k, 3*(s-14) + j)
    assert nxt == 16
    k.label("L_Hjoin")
    ewrite(); hs_set(1); ustage(); hs_wait(1)
    if CDEL:
        k.wait_all_vm(); k("v_mov_b32 v31, 1"); k.lds("ds_write_b32 v29, v31 offset:12")
    if CDEL == 1: mr_wait(k, 28, 180)
    if CDEL == 2:
        k(f"s_lshl_b32 s73, s{S_RW}, 2"); k("v_mov_b32 v180, s73"); lds_wait1(k, 180, L_FLAG + 96, 181)
    st()
    AC0, AC1, FR = 32, 48, 64
    steps = [(dl, kh) for dl in range(16) for kh in range(2)]
    def rd(i):
        dl, kh = steps[i]; b = FR + (i % 3) * 16
        o1 = 2*(2016 - 32*dl + 16*kh); o2 = o1 - 2048
        k.lds(f"ds_read_b64 {vr(b,2)}, v18 offset:{o1}", i); k.lds(f"ds_read_b64 {vr(b+2,2)}, v18 offset:{o1+8}", i)
        k.lds(f"ds_read_b128 {vr(b+8,4)}, v19 offset:{2*kh*PL + (16-dl)*16}", i)
        k.lds(f"ds_read_b128 {vr(b+12,4)}, v19 offset:{2*kh*PL + (48-dl)*16}", i)
        k.lds(f"ds_read_b64 {vr(b+4,2)}, v18 offset:{o2}", i); k.lds(f"ds_read_b64 {vr(b+6,2)}, v18 offset:{o2+8}", i)
    NCS = opt('ncs', 32)
    rd(0); rd(1)
    for i in range(NCS):
        b = FR + (i % 3) * 16
        k.wait_lg(i)
        if i == WFS and not CDEL:
            k.wait_all_vm(); k("v_mov_b32 v31, 1"); k.lds("ds_write_b32 v29, v31 offset:12")
        if i + 2 < NCS: rd(i + 2)
        k(f"v_mfma_f32_32x32x16_bf16 {vr(AC0,16)}, {vr(b,4)}, {vr(b+8,4)}, {'0' if i==0 else vr(AC0,16)}")
        k(f"v_mfma_f32_32x32x16_bf16 {vr(AC1,16)}, {vr(b,4)}, {vr(b+12,4)}, {'0' if i==0 else vr(AC1,16)}")
        k(f"v_mfma_f32_32x32x16_bf16 {vr(AC1,16)}, {vr(b+4,4)}, {vr(b+8,4)}, {vr(AC1,16)}")
    if HP2: k(f"s_setprio {HP2}")
    k("v_lshlrev_b32 v26, 4, v16"); k("v_lshl_add_u32 v26, v17, 3, v26")
    k(f"s_lshl_b32 s70, s{S_HALF}, 9"); k("s_add_u32 s70, s70, s71"); k("v_add_u32 v26, s70, v26")
    for q in range(4): k.lds(f"ds_read_b64 {vr(FR+2*q,2)}, v26 offset:{q*PL + 512}", "uu")
    st()
    mr_wait(k, 28, 180)
    k(f"s_cmp_eq_u32 s{S_HALF}, 1"); k("s_cselect_b64 exec, -1, 0")
    for i in range(16): k(f"v_swap_b32 v{AC0+i}, v{AC1+i}")
    k("s_mov_b64 exec, -1")
    for q in range(4): k.lds(f"ds_write_b128 v24, {vr(AC1+4*q,4)} offset:{1024*q}")
    hs_set(2)
    for j in range(8):
        k(f"v_lshlrev_b32 v{80+2*j}, 16, v{FR+j}"); k(f"v_and_b32 v{81+2*j}, 0xffff0000, v{FR+j}")
    for j in range(16): k(f"v_mul_f32 v{80+j}, v{DSK}, v{80+j}")
    for j in range(8): k(f"v_cvt_pk_bf16_f32 v{FR+j}, v{80+2*j}, v{81+2*j}")
    for j in range(8):
        k(f"v_lshlrev_b32 v{80+2*j}, 16, v{FR+j}"); k(f"v_and_b32 v{81+2*j}, 0xffff0000, v{FR+j}")
    k("v_lshlrev_b32 v26, 6, v16"); k("v_lshl_add_u32 v26, v17, 3, v26"); k("v_add_u32 v26, s71, v26")
    k(f"s_lshl_b32 s74, s{S_CHAN}, 12"); k(f"s_lshl_b32 s73, s{S_HALF}, 11"); k("s_add_u32 s74, s74, s73"); k(f"s_add_u32 s74, s74, {LY.WS_AT}")
    k(f"s_lshr_b32 s72, s{S_CHAN}, 6"); k("s_lshl_b32 s72, s72, 7"); k(f"s_lshl_b32 s73, s{S_HALF}, 6"); k("s_add_u32 s72, s72, s73")
    k(f"s_and_b32 s73, s{S_CHAN}, 63"); k("s_add_u32 s72, s72, s73"); k("s_lshl_b32 s72, s72, 7"); k(f"s_add_u32 s72, s72, {LY.WS_FA}")
    hs_wait(2)
    st()
    for q in range(4): k.lds(f"ds_read_b128 {vr(AC1+4*q,4)}, v25 offset:{1024*q}", "x")
    k.wait_all_lg()
    for r in range(16): k(f"v_add_f32 v{AC0+r}, v{AC0+r}, v{AC1+r}")
    for j in range(8): k(f"v_cvt_pk_bf16_f32 v{AC1+j}, v{AC0+2*j}, v{AC0+2*j+1}")
    for j in range(8):
        k(f"v_lshlrev_b32 v{AC0+2*j}, 16, v{AC1+j}"); k(f"v_and_b32 v{AC0+2*j+1}, 0xffff0000, v{AC1+j}")
    for r in range(16): k(f"v_add_f32 v{AC0+r}, v{AC0+r}, v{80+r}")
    for j in range(8): k(f"v_cvt_pk_bf16_f32 v{AC1+j}, v{AC0+2*j}, v{AC0+2*j+1}")
    for q in range(4): k.lds(f"ds_write_b64 v26, {vr(AC1+2*q,2)} offset:{16*q}")
    for j in range(2): k.lds(f"ds_read_b128 {vr(FR+4*j,4)}, v23 offset:{1024*j}")
    k.wait_all_lg()
    for j in range(2): k.vmem(f"buffer_store_dwordx4 {vr(FR+4*j,4)}, v22, {sr(R_WS,4)}, s74 offen offset:{1024*j} sc1")
    st()
    k.wait_all_vm()
    publish(k, 72, 16)
    st()
    st.flush(S_RW, LY.WS_STAMP, S_WS)
    k("s_endpgm")
    k.label("L_Haux"); k.reset_counters(); k.vm = copy.deepcopy(vm0); WL.clear()
    Lt = newlabel("notag")
    k("s_cmp_lg_u32 s2, 0"); k(f"s_cbranch_scc1 {Lt}"); k(f"s_cmp_lg_u32 s{S_RW}, 3"); k(f"s_cbranch_scc1 {Lt}")
    k("s_memrealtime s[74:75]"); k("s_waitcnt lgkmcnt(0)"); k("s_or_b32 s74, s74, 1")
    k("v_mov_b32 v16, s74"); k("v_mov_b32 v17, 0"); k("s_mov_b64 exec, 1")
    k(f"global_store_dword v17, v16, {sr(S_DBG,2)} sc1"); k("s_mov_b64 exec, -1")
    k.label(Lt)
    common_setup()
    for i in range(4): k(f"v_mov_b32 v{8+i}, 1")
    k.lds("ds_write_b128 v28, v[8:11] offset:32")
    k.lds("ds_write_b128 v28, v[8:11]")
    k("s_waitcnt vmcnt(0) lgkmcnt(0)"); k.vm.all_done(); k.lg.all_done()
    k("s_branch L_kgen"); k.label("L_Haux_ret")
    tag_issue(k, 244)
    k("s_waitcnt lgkmcnt(0)"); k("s_barrier")
    k(f"s_lshl_b32 s70, s{S_XCD}, 2"); k(f"s_add_u32 s70, s70, s{S_IDX}"); k("s_lshl_b32 s70, s70, 2"); k(f"s_add_u32 s70, s70, s{S_RW}"); k("s_mul_i32 s70, s70, 112")
    k("v_min_u32 v5, 55, v1"); k("v_add_u32 v5, s70, v5"); k("v_lshlrev_b32 v5, 7, v5")
    k.vmem(f"global_load_dword v252, v5, {sr(S_W2,2)}", "pf"); k(f"v_add_u32 v5, {56*128}, v5")
    k.vmem(f"global_load_dword v252, v5, {sr(S_W2,2)}", "pf")
    dsum(); hs_set(0)
    u_flag(); eprep(); epack(); caddr(); uload(); hs_wait(0)
    k.wait_all_vm()
    k("s_branch L_Hjoin")

def prefetch_g(k):
    k(f"s_cmp_eq_u32 s{S_RW}, 0"); k(f"s_cselect_b32 s92, s{S_W1}, s{S_W3}"); k(f"s_cselect_b32 s93, s{S_W1+1}, s{S_W3+1}")
    k(f"s_cmp_ge_u32 s{S_RW}, 2"); k(f"s_cselect_b32 s92, s{S_U}, s92"); k(f"s_cselect_b32 s93, s{S_U+1}, s93"); k("s_cselect_b64 vcc, -1, 0")
    k(f"s_lshr_b32 s94, s{S_XCD}, 1"); k("s_lshl_b32 s94, s94, 5"); k(f"s_add_u32 s94, s94, s{S_IDX}"); k("s_lshl_b32 s94, s94, 2")
    k("v_lshrrev_b32 v9, 4, v1"); k("v_add_u32 v9, s94, v9"); k("v_mul_u32_u24 v9, 3584, v9")
    k("v_and_b32 v10, 15, v1"); k("v_min_u32 v10, 13, v10"); k("v_lshl_add_u32 v9, v10, 7, v9")
    k(f"s_and_b32 s94, s{S_XCD}, 1"); k("s_mul_i32 s94, s94, 1792"); k("v_add_u32 v9, s94, v9")
    k(f"s_lshl_b32 s94, s{S_XCD}, 5"); k(f"s_add_u32 s94, s94, s{S_IDX}"); k("s_lshl_b32 s94, s94, 13")
    k(f"s_and_b32 s95, s{S_RW}, 1"); k("s_lshl_b32 s95, s95, 12"); k("s_add_u32 s94, s94, s95")
    k("v_and_b32 v10, 31, v1"); k("v_lshlrev_b32 v10, 7, v10"); k("v_add_u32 v10, s94, v10")
    k("v_cndmask_b32 v9, v9, v10, vcc")
    k.vmem("global_load_dword v252, v9, s[92:93]", "pf")

def g2_setup(k):
    w2_addr(k, 2, 4, 5); k.srd(R_B, S_OUT, 2048*1024)
    k("v_bfe_u32 v4, v1, 2, 2"); k("v_lshrrev_b32 v5, 5, v1"); k("v_lshl_add_u32 v5, v5, 2, v4"); k("v_lshlrev_b32 v6, 7, v5")
    k("v_and_b32 v4, 2, v4"); k("v_bfe_u32 v5, v1, 4, 1"); k("v_xor_b32 v4, v4, v5"); k("v_lshl_add_u32 v6, v4, 5, v6")
    k("v_and_b32 v4, 3, v1"); k("v_lshl_add_u32 v6, v4, 3, v6")
    k(f"s_lshl_b32 s64, s{S_CH}, 6"); k("v_xor_b32 v6, s64, v6")
    k("v_xor_b32 v7, 64, v6"); k("v_add_u32 v6, s66, v6"); k("v_add_u32 v7, s66, v7")
    k("v_lshlrev_b32 v8, 4, v1")

def gen_G2(k, st):
    ACC = 24
    pool = list(range(88, 256, 8))
    wreg = {}; hreg = {}
    nd = [W2SLOTS]; nr = [0]
    def wread():
        i = nr[0]; b = pool.pop(0); wreg[i] = b
        k.wait_vm(("w2", i))
        for dt in range(2):
            for s2 in range(2):
                k.lds(f"ds_read_b64_tr_b16 {vr(b+4*dt+2*s2,2)}, v{6+dt} offset:{slot_off(i % W2SLOTS) + s2*1024}", ("wf", i))
        nr[0] += 1
    def more_dma():
        while nd[0] < 28 and nd[0] - W2SLOTS < nr[0] - 1:
            k.wait_lg(("wf", nd[0] - W2SLOTS)); w2dma(k, nd[0]); nd[0] += 1
    for j in range(6): wread()
    k("v_min_u32 v9, 6, v1"); k("v_lshlrev_b32 v9, 7, v9")
    k(f"s_lshl_b32 s82, s{S_TT}, 5"); k(f"s_mul_i32 s69, s{S_RW}, 7"); k("s_add_u32 s82, s82, s69"); k("s_lshl_b32 s82, s82, 7"); k(f"s_add_u32 s82, s82, {LY.WS_FH}")
    k(f"s_mul_i32 s68, s{S_TT}, 224"); k("s_lshl_b32 s69, s69, 2"); k("s_add_u32 s68, s68, s69"); k("s_lshl_b32 s68, s68, 10")
    k(f"s_mul_i32 s69, s{S_HALF}, {112*1024}"); k(f"s_sub_u32 s70, {112*1024}, s69"); k("s_add_u32 s69, s68, s69"); k("s_add_u32 s68, s68, s70")
    st()
    more_dma()
    for j in range(6, NWR):
        wread(); more_dma()
        if j == FJ: k.vmem(f"buffer_load_dword v10, v9, {sr(R_WS,4)}, s82 offen sc1", "fh")
    st()
    k.wait_vm("fh"); k(f"v_cmp_eq_u32 vcc, s{S_TAG}, v10"); k("s_nop 0"); k("s_mov_b32 s83, vcc_lo")
    def need_group(gi):
        def slow(c):
            L = newlabel("gp")
            c(f"s_mov_b32 s{S_CNT}, 0"); c.label(L)
            c(f"buffer_load_dword v10, v9, {sr(R_WS,4)}, s82 offen sc1"); c("s_waitcnt vmcnt(0)")
            c(f"v_cmp_eq_u32 vcc, s{S_TAG}, v10"); c("s_nop 0"); c("s_mov_b32 s83, vcc_lo"); c(f"s_bitcmp1_b32 s83, {gi}")
            spin_tail(c, L, True, SPIN_MAX)
        k(f"s_bitcmp1_b32 s83, {gi}"); cold(k, "s_cbranch_scc0", slow)
    nh = [0]
    def hload():
        i = nh[0]; b = pool.pop(0); hreg[i] = b
        if i % 4 == 0:
            need_group(i // 4)
            if i == 0: st()
            else: k("s_add_u32 s68, s68, 4096"); k("s_add_u32 s69, s69, 4096")
        for tk in range(2):
            k.vmem(f"buffer_load_dwordx4 {vr(b+4*tk,4)}, v8, {sr(R_WS,4)}, s{69-tk} offen offset:{(i%4)*1024} sc1", ("h", i))
        nh[0] += 1
    while pool: hload()
    k("v_and_b32 v20, 31, v1"); k("v_lshrrev_b32 v11, 5, v1")
    k(f"s_lshl_b32 s72, s{S_NT}, 7"); k(f"s_lshr_b32 s73, s{S_TT}, 4"); k("s_lshl_b32 s73, s73, 6"); k("s_add_u32 s72, s72, s73")
    k(f"s_lshl_b32 s73, s{S_CH}, 5"); k("s_add_u32 s72, s72, s73"); k("s_lshl_b32 s72, s72, 7"); k(f"s_add_u32 s72, s72, {LY.WS_FA - LY.WS_FH}")
    k("v_lshlrev_b32 v12, 7, v20"); k("v_add_u32 v12, s72, v12")
    k(f"s_lshl_b32 s72, s{S_TT}, 9"); k(f"s_add_u32 s72, s72, {LY.WS_FG - LY.WS_FH}")
    k("v_and_b32 v13, 3, v1"); k("v_lshlrev_b32 v13, 7, v13"); k("v_add_u32 v13, s72, v13")
    k("v_cmp_gt_u32 vcc, 32, v1"); k("s_nop 1"); k("v_cndmask_b32 v12, v13, v12, vcc")
    k(f"s_mov_b32 s76, {LY.WS_FH}")
    k(f"s_lshl_b32 s72, s{S_TT}, 6"); k(f"s_lshl_b32 s73, s{S_HALF}, 5"); k("s_add_u32 s72, s72, s73")
    k(f"s_lshl_b32 s74, s{S_NT}, 6"); k(f"s_lshl_b32 s73, s{S_CH}, 5"); k("s_add_u32 s74, s74, s73")
    k("v_add_u32 v21, s72, v20")
    k("v_lshlrev_b32 v15, 2, v21"); k("v_lshlrev_b32 v16, 1, v21"); k("v_lshl_add_u32 v16, v11, 14, v16")
    k("s_lshl_b32 s75, s74, 12"); k(f"s_add_u32 s75, s75, {LY.WS_AT}")
    k("v_add_u32 v4, s66, v8")
    for a in range(1, 4):
        k(f"s_xor_b32 s72, s{S_RW}, {a}"); k("s_mul_i32 s72, s72, 6144"); k(f"s_add_u32 s72, s72, {L_W2 + (a-1)*STG}"); k(f"v_add_u32 v{16+a}, s72, v8")
    k("v_lshlrev_b32 v5, 10, v21"); k("v_lshl_add_u32 v5, v11, 3, v5"); k("s_lshl_b32 s77, s74, 1")
    AV = [None]
    def ag_load():
        flag_check(k, 12, 76, 13, "fa")
        b0 = pool.pop(0); b1 = pool.pop(0); AV[0] = list(range(b0, b0+8)) + list(range(b1, b1+8))
        k(f"s_mov_b32 s73, {LY.WS_G}")
        k.vmem(f"buffer_load_dword v14, v15, {sr(R_WS,4)}, s73 offen sc1", "g")
        for r in range(16): k(f"v_mov_b32 v{AV[0][r]}, 0")
        for r in range(16):
            q, i = r >> 2, r & 3
            k(f"s_add_u32 s73, s75, {(8*q+i)*4096}")
            k.vmem(f"buffer_load_short_d16_hi v{AV[0][r]}, v16, {sr(R_WS,4)}, s73 offen sc1", "a")
    for i in range(28):
        k.wait_both(("h", i), ("wf", i))
        if i in (1, 9, 18) and G2F: st()
        for a in ((3, 2, 1, 0) if i == 27 else (0, 1, 2, 3)):
            c = ACC + 16*a
            k(f"v_mfma_f32_32x32x16_bf16 {vr(c,16)}, {vr(wreg[i]+4*(a>>1),4)}, {vr(hreg[i]+4*(a&1),4)}, {'0' if i==0 else vr(c,16)}")
        pool.append(wreg[i]); pool.append(hreg[i])
        if nh[0] < 28: hload()
        if nr[0] < 28: wread(); more_dma()
        elif nh[0] < 28: hload()
        if i == AGI: flag_issue(k, 12, 76, 13, "fa")
        if i == min(26, AGI + 6): ag_load()
    st()
    AVr = AV[0]
    regs = [r for b in sorted(pool) for r in range(b, b+8)]
    def take(n):
        for s0 in range(0, len(regs) - n + 1):
            if regs[s0] % 4 == 0 and regs[s0+n-1] == regs[s0] + n - 1:
                out = regs[s0]; del regs[s0:s0+n]; return out
        raise Exception("no regs")
    PR = [take(16) for _ in range(3)]; OP = take(8); OWN = ACC
    k.nop(9)
    for a in (3, 2, 1):
        for q in range(4): k.lds(f"ds_write_b128 v4, {vr(ACC+16*a+4*q,4)} offset:{(a-1)*STG + 1024*q}")
    k.wait_all_vm()
    k("v_sub_f32 v15, 1.0, v14"); rbf(k, 15)
    for r in range(16): k(f"v_mul_f32 v{AVr[r]}, v14, v{AVr[r]}")
    for j in range(8): k(f"v_cvt_pk_bf16_f32 v{AVr[2*j]}, v{AVr[2*j]}, v{AVr[2*j+1]}")
    for j in range(8): k(f"v_and_b32 v{AVr[2*j+1]}, 0xffff0000, v{AVr[2*j]}"); k(f"v_lshlrev_b32 v{AVr[2*j]}, 16, v{AVr[2*j]}")
    if OST:
        k("v_bfe_u32 v13, v20, 1, 2"); k("v_lshlrev_b32 v9, 6, v20"); k("v_lshl_add_u32 v9, v13, 4, v9"); k("v_lshl_add_u32 v9, v11, 3, v9"); k("v_add_u32 v9, s66, v9")
        for q in range(1, 4): k(f"v_xor_b32 v{9+q}, {16*q}, v9")
        k("v_lshrrev_b32 v5, 2, v1"); k("v_bfe_u32 v13, v1, 3, 2"); k("v_and_b32 v16, 3, v1"); k("v_xor_b32 v13, v13, v16")
        k(f"s_lshl_b32 s72, s{S_TT}, 6"); k(f"s_lshl_b32 s73, s{S_HALF}, 5"); k("s_add_u32 s72, s72, s73")
        k("v_add_u32 v5, s72, v5"); k("v_lshlrev_b32 v5, 10, v5"); k("v_lshl_add_u32 v5, v13, 4, v5"); k("s_add_u32 s78, s77, 16384")
    k.wait_all_lg(); k("s_barrier")
    st()
    for src in range(3):
        for q in range(4): k.lds(f"ds_read_b128 {vr(PR[src]+4*q,4)}, v{17+src} offset:{1024*q}", src)
    for src in range(3):
        k.wait_lg(src)
        if PKE:
            for r in range(0, 16, 2): k(f"v_pk_add_f32 {vr(OWN+r,2)}, {vr(OWN+r,2)}, {vr(PR[src]+r,2)}")
        else:
            for r in range(16): k(f"v_add_f32 v{OWN+r}, v{OWN+r}, v{PR[src]+r}")
    for j in range(8): k(f"v_cvt_pk_bf16_f32 v{OWN+2*j}, v{OWN+2*j}, v{OWN+2*j+1}")
    for j in range(8): k(f"v_and_b32 v{OWN+2*j+1}, 0xffff0000, v{OWN+2*j}"); k(f"v_lshlrev_b32 v{OWN+2*j}, 16, v{OWN+2*j}")
    if PKE:
        for r in range(0, 16, 2): k(f"v_pk_mul_f32 {vr(OWN+r,2)}, {vr(OWN+r,2)}, v[14:15] op_sel:[0,1] op_sel_hi:[1,1]")
    else:
        for r in range(16): k(f"v_mul_f32 v{OWN+r}, v15, v{OWN+r}")
    for j in range(8): k(f"v_cvt_pk_bf16_f32 v{OWN+2*j}, v{OWN+2*j}, v{OWN+2*j+1}")
    for j in range(8): k(f"v_and_b32 v{OWN+2*j+1}, 0xffff0000, v{OWN+2*j}"); k(f"v_lshlrev_b32 v{OWN+2*j}, 16, v{OWN+2*j}")
    if PKE:
        for r in range(0, 16, 2): k(f"v_pk_add_f32 {vr(OWN+r,2)}, {vr(OWN+r,2)}, {vr(AVr[r],2)}")
    else:
        for r in range(16): k(f"v_add_f32 v{OWN+r}, v{OWN+r}, v{AVr[r]}")
    for j in range(8): k(f"v_cvt_pk_bf16_f32 v{OP+j}, v{OWN+2*j}, v{OWN+2*j+1}")
    if OST == 0:
        for q in range(4):
            k.vmem(f"buffer_store_dwordx2 {vr(OP+2*q,2)}, v5, {sr(R_B,4)}, s77 offen offset:{16*q}{OMOD}")
    else:
        for q in range(4): k.lds(f"ds_write_b64 v{9 + q}, {vr(OP+2*q,2)} offset:4096")
        for j in range(2): k.lds(f"ds_read_b128 {vr(PR[0]+4*j,4)}, v4 offset:{4096 + 1024*j}", "o")
        k.wait_all_lg()
        for j in range(2):
            k.vmem(f"buffer_store_dwordx4 {vr(PR[0]+4*j,4)}, v5, {sr(R_B,4)}, s{77+j} offen{OMOD}")
    st()
    st.flush(S_RW, LY.WS_STAMP, S_WS)
    k("s_endpgm")

def gen_M(k, st):
    k.srd(R_WS, S_WS, LY.WS_SIZE_USED)
    g2_setup(k)
    k(f"s_cmp_lt_u32 s{S_IDX}, 4"); k("s_cbranch_scc1 L_Maux")
    k("s_barrier"); prefetch_g(k)
    k("v_bfe_u32 v22, v1, 4, 1"); k("v_lshrrev_b32 v23, 5, v1"); k("v_bfe_u32 v24, v1, 2, 2")
    k("v_lshlrev_b32 v25, 13, v22"); k("v_lshl_add_u32 v25, v23, 11, v25"); k("v_lshl_add_u32 v25, v24, 8, v25")
    k("v_lshl_add_u32 v26, v22, 2, v24"); k("v_lshl_add_u32 v25, v26, 5, v25")
    k("v_and_b32 v26, 3, v1"); k("v_lshl_add_u32 v25, v26, 3, v25")
    k(f"s_lshl_b32 s78, s{S_HALF}, 7"); k("v_xor_b32 v25, s78, v25"); k(f"v_add_u32 v25, {RB}, v25")
    for t in range(4):
        k(f"v_xor_b32 v{10+t}, {32*t}, v25"); k(f"v_add_u32 v{14+t}, {3*STG}, v{10+t}")
    k("v_and_b32 v25, 31, v1"); k("v_bfe_u32 v26, v1, 2, 2"); k("v_xor_b32 v26, v26, v23")
    k("v_lshlrev_b32 v25, 6, v25"); k("v_lshl_add_u32 v25, v26, 4, v25")
    k(f"s_lshl_b32 s78, s{S_CH}, 12"); k(f"s_add_u32 s78, s78, {RB + 16384}")
    k("v_xor_b32 v19, 32, v25"); k("v_add_u32 v18, s78, v25"); k("v_add_u32 v19, s78, v19")
    k(f"v_add_u32 v20, {3*STG}, v18"); k(f"v_add_u32 v21, {3*STG}, v19")
    for t in range(4): k(f"v_subrev_u32 v{22+t}, {RB - L_B5}, v{10+t}")
    for e in range(2): k(f"v_subrev_u32 v{26+e}, {RB - L_B5}, v{18+e}")
    k(f"s_lshl_b32 s78, s{S_MT}, 2"); k(f"s_lshl_b32 s79, s{S_CH}, 1"); k("s_add_u32 s78, s78, s79"); k("s_mul_i32 s78, s78, 112")
    k(f"s_lshl_b32 s79, s{S_FT}, 3"); k("s_add_u32 s78, s78, s79"); k(f"s_lshl_b32 s79, s{S_HALF}, 2"); k("s_add_u32 s78, s78, s79"); k("s_lshl_b32 s78, s78, 10")
    k(f"s_add_u32 s79, s78, {112*1024}")
    k(f"s_lshl_b32 s81, s{S_MT}, 1"); k(f"s_add_u32 s81, s81, s{S_CH}"); k("s_lshl_b32 s81, s81, 5")
    k(f"s_lshl_b32 s82, s{S_FT}, 1"); k("s_add_u32 s81, s81, s82"); k(f"s_add_u32 s81, s81, s{S_HALF}"); k("s_lshl_b32 s81, s81, 7")
    k(f"s_add_u32 s81, s81, {LY.WS_FH}")
    k(f"s_lshl_b32 s70, s{S_RW}, 2"); k(f"s_add_u32 s70, s70, {L_FLAG + 64}"); k("v_mov_b32 v28, s70"); k("v_mov_b32 v29, 1"); k(f"v_mov_b32 v30, {L_FLAG + 80}")
    k.wait_vm("p")
    st()
    k.label("L_kgen")
    kgen(k)
    k(f"s_cmp_ge_u32 s{S_WAVE}, 4"); k("s_cbranch_scc1 L_Haux_ret")
    ACC, AF, BF = 64, 32, 48
    def aread(kk, t, dst):
        sg = kk >> 1; e = kk & 1; b = sbuf(sg)
        reg = (10 if b < 3 else 14) + t; off = (b if b < 3 else b - 3) * STG
        if b == 5: reg = 22 + t; off = 0
        for s2 in range(2):
            k.lds(f"ds_read_b64_tr_b16 {vr(dst+2*s2,2)}, v{reg} offset:{off + e*4096 + s2*1024}", ("a", kk, t))
    def bread(kk, dst):
        sg = kk >> 1; e = kk & 1; b = sbuf(sg)
        reg = (18 if b < 3 else 20) + e; off = (b if b < 3 else b - 3) * STG
        if b == 5: reg = 26 + e; off = 0
        for tk in range(2):
            k.lds(f"ds_read_b128 {vr(dst+4*tk,4)}, v{reg} offset:{off + tk*2048}", ("b", kk))
    def mfma(t, tk, a, b, first):
        c = ACC + 16*(2*t+tk)
        k(f"v_mfma_f32_32x32x16_bf16 {vr(c,16)}, {vr(a,4)}, {vr(b,4)}, {'0' if first else vr(c,16)}")
    st()
    k.wait_all_lg(); k("s_barrier")
    st()
    TK = 28
    TB = {28: BF + 0, 29: BF + 8, 30: 192, 31: 200}
    TA = [{28+i: 208 + 4*i for i in range(4)}, {28+i: 224 + 4*i for i in range(4)}]
    bread(0, BF)
    for t in range(4): aread(0, t, AF+4*t)
    for kk in range(TK):
        if kk & 1: k("s_barrier")
        if kk == 16 and not G2F: st()
        bread(kk + 1, BF + 8*((kk+1) & 1))
        for t in range(4):
            k.wait_lg(lambda x: x == ("a", kk, t) or x == ("b", kk))
            for tk in range(2): mfma(t, tk, AF+4*t, BF+8*(kk&1)+4*tk, kk == 0)
            if kk + 1 < TK: aread(kk + 1, t, AF+4*t)
            elif t < 2: aread(28 + t, 0, TA[0][28+t])
    k("s_barrier")
    bread(29, TB[29]); aread(30, 0, TA[0][30]); bread(30, TB[30]); aread(31, 0, TA[0][31]); bread(31, TB[31])
    k.lds("ds_read_b32 v30, v30", "tg")
    if MPRIO: k(f"s_setprio {MPRIO}")
    TMP = 32
    def epi(t):
        L = []
        for tk in range(2):
            A = ACC + 16*(2*t+tk); T = TMP + 8*tk
            L += [f"v_mul_f32 v{T+r}, {LOG2E:#x}, v{A+r}" for r in range(8)]
            L += [f"v_exp_f32 v{T+r}, -v{T+r}" for r in range(8)]
            L += [f"v_mul_f32 v{A+r}, v{A+r}, v{A+8+r}" for r in range(8)]
            L += [f"v_add_f32 v{T+r}, 1.0, v{T+r}" for r in range(8)]
            L += [f"v_rcp_f32 v{T+r}, v{T+r}" for r in range(8)]
            L += ["s_nop 0"]
            L += [f"v_mul_f32 v{A+r}, v{A+r}, v{T+r}" for r in range(8)]
            L += [f"v_cvt_pk_bf16_f32 v{A+8+j}, v{A+2*j}, v{A+2*j+1}" for j in range(4)]
            L += [("st", f"buffer_store_dwordx4 {vr(A+8,4)}, v8, {sr(R_WS,4)}, s{78+tk} offen offset:{t*1024} sc1")]
        return L
    def emit(x):
        if isinstance(x, tuple): k.vmem(x[1], "hst")
        else: k(x)
    for t in range(4):
        ep = epi(t - 1) if t else []
        per = -(-len(ep) // 7)
        n = 0
        for i, kk in enumerate(range(28, 32)):
            for tk in range(2):
                k.wait_lg(lambda x: x == ("a", kk, t) or x == ("b", kk))
                mfma(t, tk, TA[t&1][kk], TB[kk]+4*tk, False)
                if tk == 0 and t < 3: aread(kk, t + 1, TA[(t+1)&1][kk])
                if n == 0 and ep: k.nop(10)
                else:
                    for x in ep[:per]: emit(x)
                    ep = ep[per:]
                n += 1
            if t == 3 and i == 0:
                k.wait_all_lg(); k.lds("ds_write_b32 v28, v29")
                st()
        for x in ep: emit(x)
    k.nop(10)
    ep3 = epi(3)
    for i_, x in enumerate(ep3):
        emit(x)
        if CDEL == 2 and i_ == len(ep3) - CDA: k.lds("ds_write_b32 v28, v29 offset:32")
    st()
    k(f"v_mov_b32 v28, {L_FLAG + 64}"); mr_wait(k, 28, 24)
    k(f"v_readfirstlane_b32 s{S_TAG}, v30")
    for j in range(6, 9): w2dma(k, j)
    k(f"s_lshl_b32 s71, s{S_RW}, 4"); k("v_mov_b32 v24, s71")
    k.wait_vm("hst"); publish(k, 81, 22)
    lds_wait1(k, 24, L_FLAG + 12, 25)
    k.label("L_G2")
    gen_G2(k, st)

def gen_Maux(k, st):
    k.srd(R_U, S_U, 2048*1024)
    k(f"s_lshl_b32 s76, s{S_XCD}, 2"); k(f"s_add_u32 s76, s76, s{S_IDX}")
    k("v_lshrrev_b32 v22, 4, v1"); k("v_bfe_u32 v23, v1, 1, 3"); k("v_xor_b32 v23, v23, v22")
    k("v_lshlrev_b32 v10, 10, v22"); k("v_lshl_add_u32 v10, v23, 5, v10"); k("v_and_b32 v23, 1, v1"); k("v_lshl_add_u32 v10, v23, 4, v10")
    k("v_xor_b32 v11, 0x80, v10")
    k(f"s_lshl_b32 s77, s{S_RW}, 8"); k("v_add_u32 v10, s77, v10"); k("v_add_u32 v11, s77, v11")
    k("s_lshl_b32 s77, s76, 16"); k(f"s_lshl_b32 s78, s{S_RW}, 14"); k(f"s_add_u32 s78, s78, {L_AUX}")
    for tq in range(16):
        k(f"s_add_u32 m0, s78, {tq*1024}"); k(f"s_add_u32 s79, s77, {tq*4096}")
        k.vmem(f"buffer_load_dwordx4 v{10 + ((tq>>1)&1)}, {sr(R_U,4)}, s79 offen lds", "dma")
    prefetch_g(k)
    k("v_lshlrev_b32 v12, 4, v22")
    k("v_bfe_u32 v23, v1, 2, 2"); k("v_lshl_add_u32 v24, v22, 3, v23"); k("v_lshlrev_b32 v13, 8, v24")
    k("v_and_b32 v24, 1, v22"); k("v_lshl_add_u32 v24, v24, 2, v23"); k("v_lshl_add_u32 v13, v24, 5, v13")
    k("v_and_b32 v24, 3, v1"); k("v_lshl_add_u32 v13, v24, 3, v13"); k("v_add_u32 v13, s78, v13")
    k("v_and_b32 v25, 15, v1")
    k("s_lshl_b32 s83, s76, 7"); k(f"s_add_u32 s83, s83, {LY.WS_UT}")
    k(f"s_lshl_b32 s79, s{S_RW}, 11"); k(f"s_add_u32 s79, s79, {L_AUX + 65536}")
    k("v_and_b32 v19, 7, v25"); k("v_xor_b32 v19, v19, v22"); k("v_lshlrev_b32 v16, 7, v25"); k("v_lshl_add_u32 v16, v19, 4, v16"); k("v_add_u32 v16, s79, v16")
    k("v_xor_b32 v20, 64, v16")
    k("v_add_u32 v17, s79, v8")
    k("v_lshrrev_b32 v18, 3, v1"); k("v_and_b32 v19, 7, v1"); k("v_xor_b32 v19, v19, v18")
    k(f"s_lshl_b32 s79, s{S_RW}, 7"); k("v_add_u32 v18, s79, v18"); k("v_lshlrev_b32 v18, 12, v18"); k("v_lshl_add_u32 v18, v19, 4, v18")
    st()
    k.wait_vm("dma")
    tag_issue(k, 26)
    st()
    for cb in range(8):
        k(f"v_xor_b32 v15, {32*cb}, v13")
        for a in range(2):
            base = 160 + (cb*2+a) * 4
            for s in range(2):
                k.lds(f"ds_read_b64_tr_b16 {vr(base+2*s,2)}, v15 offset:{a*8192 + s*1024}", ("t", cb, a))
    def ust(cb):
        for a in range(2):
            base = 160 + (cb*2+a) * 4
            k.wait_lg(("r", cb, a))
            k(f"s_add_u32 s81, s83, {cb*65536 + a*32768}")
            k.vmem(f"buffer_store_dwordx4 {vr(base,4)}, v18, {sr(R_WS,4)}, s81 offen sc1", "st")
    for cb in range(8):
        for a in range(2):
            base = 160 + (cb*2+a) * 4
            k.wait_lg(("t", cb, a))
            k.lds(f"ds_write_b128 v{20 if a else 16}, {vr(base,4)}")
        for a in range(2):
            k.lds(f"ds_read_b128 {vr(160 + (cb*2+a)*4,4)}, v17 offset:{1024*a}", ("r", cb, a))
        if cb: ust(cb - 1)
    ust(7)
    tag_check(k, 26)
    k(f"s_lshl_b32 s79, s{S_RW}, 5"); k("s_add_u32 s79, s79, s76"); k("s_lshl_b32 s79, s79, 7"); k(f"s_add_u32 s79, s79, {LY.WS_FU}")
    k.wait_all_vm()
    publish(k, 79, 26)
    for s in range(16):
        k.vmem(f"global_load_dwordx4 {vr(96+4*s,4)}, v12, {sr(S_GW,2)} offset:{64*s}", "gw")
    st()
    k("s_barrier")
    k(f"s_lshl_b32 s79, s{S_RW}, 12"); k(f"s_add_u32 s79, s79, {L_AUX}"); k("v_lshlrev_b32 v16, 8, v25"); k("v_add_u32 v16, s79, v16")
    k("v_and_b32 v23, 3, v25"); k("v_bfe_u32 v24, v25, 3, 1"); k("v_lshl_add_u32 v23, v24, 2, v23")
    k("v_lshrrev_b32 v24, 1, v22"); k("v_xor_b32 v23, v23, v24"); k("v_lshl_add_u32 v16, v23, 5, v16")
    k("v_and_b32 v24, 1, v22"); k("v_lshl_add_u32 v16, v24, 4, v16")
    for s3 in range(4):
        k(f"v_xor_b32 v17, {64*s3}, v16")
        for reg in range(4):
            k.lds(f"ds_read_b128 {vr(32+4*(4*reg+s3),4)}, v17 offset:{reg*16384}", "gx")
    for i in range(4): k(f"v_mov_b32 v{28+i}, 0x3f803f80")
    k.wait_all_lg(); k.wait_all_vm()
    for s in range(16):
        T = 160
        for j in range(4):
            x = 32+4*s+j; w = 96+4*s+j
            k(f"v_lshlrev_b32 v{T+4*j}, 16, v{x}"); k(f"v_and_b32 v{T+4*j+1}, 0xffff0000, v{x}")
            k(f"v_lshlrev_b32 v{T+4*j+2}, 16, v{w}"); k(f"v_and_b32 v{T+4*j+3}, 0xffff0000, v{w}")
        for j in range(4): k(f"v_pk_mul_f32 {vr(T+4*j,2)}, {vr(T+4*j,2)}, {vr(T+4*j+2,2)}")
        for j in range(4): k(f"v_cvt_pk_bf16_f32 v{32+4*s+j}, v{T+4*j}, v{T+4*j+1}")
        k.nop(2)
        k(f"v_mfma_f32_16x16x32_bf16 v[224:227], v[28:31], {vr(32+4*s,4)}, {'0' if s==0 else 'v[224:227]'}")
    k.nop(10)
    rbf(k, 224)
    k(f"v_mul_f32 v225, {LOG2E:#x}, v224"); k("v_exp_f32 v225, -v225"); k("s_nop 0")
    k("v_add_f32 v225, 1.0, v225"); k("v_rcp_f32 v225, v225"); k("s_nop 0")
    rbf(k, 225)
    k("s_lshl_b32 s79, s76, 8"); k(f"s_lshl_b32 s81, s{S_RW}, 6"); k("s_add_u32 s79, s79, s81"); k(f"s_add_u32 s79, s79, {LY.WS_G}")
    k("v_lshlrev_b32 v226, 2, v25")
    k.vmem(f"buffer_store_dword v225, v226, {sr(R_WS,4)}, s79 offen sc1", "st")
    k("s_lshl_b32 s78, s76, 2"); k(f"s_add_u32 s78, s78, s{S_RW}"); k("s_lshl_b32 s78, s78, 7"); k(f"s_add_u32 s78, s78, {LY.WS_FG}")
    k.wait_all_vm()
    publish(k, 78, 22)
    st()
    k("v_and_b32 v13, 3, v1"); k("v_lshlrev_b32 v13, 7, v13"); k("s_lshl_b32 s78, s76, 9"); k(f"s_add_u32 s78, s78, {LY.WS_FG}")
    poll(k, 13, 78, 12)
    for j in range(9): w2dma(k, j)
    k.wait_all_vm()
    st(); st()
    k("s_branch L_G2")

def main():
    COLD.clear(); _lbl[0] = 0
    k = Asm()
    k("s_cmp_ge_u32 s2, 256"); k("s_cbranch_scc1 L_end")
    if STAMPS: k("s_memrealtime s[96:97]")
    k("s_load_dwordx16 s[4:19], s[0:1], 0"); k("s_load_dwordx16 s[20:35], s[0:1], 64"); k("s_load_dwordx2 s[36:37], s[0:1], 128")
    k("v_and_b32 v1, 63, v0"); k("v_lshrrev_b32 v2, 6, v0")
    k("s_getpc_b64 s[90:91]"); k("s_and_b32 s90, s90, 0xffffff00")
    k("s_lshr_b32 s64, s2, 3"); k("s_lshl_b32 s64, s64, 4")
    k("v_and_b32 v4, 1, v0"); k("v_lshl_add_u32 v4, v2, 1, v4"); k("v_add_u32 v4, s64, v4"); k(f"v_min_u32 v4, {CODEL}, v4"); k("v_lshlrev_b32 v4, 7, v4")
    k.vmem("global_load_dword v253, v4, s[90:91]", "cpf")
    k(f"v_readfirstlane_b32 s{S_WAVE}, v2")
    k(f"s_and_b32 s{S_XCD}, s2, 7"); k(f"s_lshr_b32 s{S_IDX}, s2, 3")
    k(f"s_and_b32 s{S_RW}, s{S_WAVE}, 3")
    k(f"s_lshr_b32 s{S_CH}, s{S_RW}, 1"); k(f"s_and_b32 s{S_HALF}, s{S_RW}, 1")
    k(f"s_lshl_b32 s{S_CHAN}, s2, 1"); k(f"s_add_u32 s{S_CHAN}, s{S_CHAN}, s{S_CH}")
    k(f"s_max_u32 s65, s{S_IDX}, 4"); k("s_sub_u32 s65, s65, 4")
    k(f"s_mul_i32 s{S_MT}, s65, 37"); k(f"s_lshr_b32 s{S_MT}, s{S_MT}, 8")
    k(f"s_mul_i32 s64, s{S_MT}, 7"); k(f"s_sub_u32 s{S_FT}, s65, s64")
    k(f"s_lshr_b32 s64, s{S_XCD}, 1"); k("s_lshl_b32 s64, s64, 2"); k(f"s_add_u32 s{S_MT}, s{S_MT}, s64")
    k(f"s_and_b32 s64, s{S_XCD}, 1"); k("s_mul_i32 s64, s64, 7"); k(f"s_add_u32 s{S_FT}, s{S_FT}, s64")
    k(f"s_lshl_b32 s{S_TT}, s{S_XCD}, 2"); k(f"s_lshr_b32 s64, s{S_IDX}, 3"); k(f"s_add_u32 s{S_TT}, s{S_TT}, s64")
    k(f"s_and_b32 s{S_NT}, s{S_IDX}, 7")
    k(f"s_mul_i32 s{S_TABB}, s{S_RW}, {TABW}"); k(f"s_add_u32 s{S_TABB}, s{S_TABB}, {L_TAB}")
    k("s_waitcnt lgkmcnt(0)")
    param_loads(k)
    k("s_barrier")
    vm0 = copy.deepcopy(k.vm)
    k(f"s_cmp_ge_u32 s{S_WAVE}, 4"); k("s_cbranch_scc1 L_H")
    st = Stamper(k, STAMPS, 3, 0)
    if STAMPS: k("v_writelane_b32 v3, s96, 14")
    st(); gen_M(k, st)
    k.label("L_H"); k.reset_counters(); k.vm = copy.deepcopy(vm0)
    st = Stamper(k, STAMPS, 250, 1); st(); gen_H(k, st, vm0)
    k.label("L_Maux"); k.reset_counters(); k.vm = copy.deepcopy(vm0)
    st = Stamper(k, STAMPS, 3, 0); st.n = 1; gen_Maux(k, st)
    k.out.extend(COLD)
    k.label("L_end"); k("s_endpgm")
    name = "gated_mix__ssm_conv_s4__glu_gated_swiglu__prompt_kernel"
    hdr = open("gated_mix__ssm_conv_s4__glu_gated_swiglu__prompt.s.ref").read().split("; Override")[0]
    s = hdr + f"; @launch grid=(256,1,1) block=(512,1,1) lds={LDS_TOTAL}\n" + '.amdgcn_target "amdgcn-amd-amdhsa--gfx950"\n.text\n' + kernel_header(name) + k.text() + '.section .rodata,"a"\n' + kernel_desc(name, 256, 102, 256)
    open(sys.argv[1], "w").write(s)
def codesize(path):
    import subprocess, re
    subprocess.check_call(["clang", "-x", "assembler", "-target", "amdgcn-amd-amdhsa", "-mcpu=gfx950", "-c", path, "-o", "_sz.o"])
    o = subprocess.check_output(["llvm-objdump", "-h", "_sz.o"]).decode()
    return int(re.search(r"\.text\s+([0-9a-f]+)", o).group(1), 16)
main()
sz = codesize(sys.argv[1]); CODEL = (sz - 4) // 128
assert CODEL < 512
main()
print("code bytes", sz)
```

```python
import sys, struct, copy
from asmlib import *
import layout as LY
LOG2E = 0x3fb8aa3b
def opt(n, d):
    for a in sys.argv:
        if a.startswith(f"--{n}="): return int(a.split("=")[1])
    return d
STAMPS = "--stamps" in sys.argv
MPRIO = opt("mprio", 2); HP2 = opt("hp2", 3); NWR = opt("nwr", 11); AGI = opt("agi", 20); FJ = opt("fj", 9)
ROTQ = opt("rotq", 4); PRE2 = opt("pre2", 4); DPE = opt("dpe", 2); TAGE = opt("tage", 11); UFE = opt("ufe", 13); UTE = opt("ute", 15)
OMOD = {0: "", 1: " sc1", 2: " nt", 3: " sc0 sc1"}[opt("omod", 1)]; PKE = opt("pke", 1); OST = opt("ost", 1); RT = opt("rt6", 6); AGA = opt("aga", 2); CDEL = opt("cdel", 0); CDA = opt("cda", 30); WFS = opt("wfs", 6); G2F = opt("g2f", 0); CODEL = 300
def f2h(x): return "0x%08x" % struct.unpack("<I", struct.pack("<f", float(x)))[0]

S_U, S_ARE, S_AIM, S_BRE, S_BIM, S_CRE, S_CIM, S_LDT = 4, 6, 8, 10, 12, 14, 16, 18
S_DSK, S_W1, S_W3, S_W2, S_GW, S_OUT, S_DBG, S_WS = 20, 24, 26, 28, 30, 32, 34, 36
S_WAVE, S_XCD, S_IDX, S_MT, S_FT, S_TT, S_NT, S_RW = 38, 39, 40, 41, 42, 43, 44, 45
S_TAG = 46; S_CNT = 47
R_U, R_A, R_B, R_WS = 48, 52, 56, 60
S_TABB = 80; S_CH, S_HALF, S_CHAN = 84, 85, 86
STG = 24576; RB = 40960
L_FLAG = 0; L_TAB = 1024; L_B5 = 1024
ROWB = 272; TABW = 32 * ROWB
CPY = 4160; PL = 1536
L_X = RB + 4 * STG; L_UP = RB; W2SLOTS = 9; L_W2 = RB + STG; L_AUX = RB + STG
LDS_TOTAL = RB + 5 * STG
RND2 = [0, 0, 2, 4, 4, 4, 6, 8, 8]
SPIN_MAX = 40000; LSPIN = 0x100000
def sbuf(sg): return [1, 2, 3, 4, 0, 5][sg % 6]
def bufaddr(b): return L_B5 if b == 5 else RB + b * STG
def slot_off(sl): return (sl // 3) * STG + (sl % 3) * 2048

def rbf(k, v):
    k(f"v_cvt_pk_bf16_f32 v{v}, v{v}, v{v}"); k(f"v_and_b32 v{v}, 0xffff0000, v{v}")
_lbl = [0]
def newlabel(p):
    _lbl[0] += 1; return f"L_{p}_{_lbl[0]}"
COLD = []
def cold(k, branch, fn):
    L = newlabel("cold"); B = newlabel("back")
    k(f"{branch} {L}"); k.label(B)
    c = Asm(); c.label(L); fn(c); c(f"s_branch {B}"); COLD.extend(c.out)

def spin_tail(k, L, ready_scc1, limit):
    k(f"s_cselect_b32 s{S_CNT}, {limit}, s{S_CNT}"); k(f"s_add_u32 s{S_CNT}, s{S_CNT}, 1")
    k(f"s_cmp_lt_u32 s{S_CNT}, {limit}"); k(f"s_cbranch_scc1 {L}")
def get_tag(k, vt):
    L = newlabel("tag")
    k(f"v_mov_b32 v{vt+1}, 0"); k(f"s_mov_b32 s{S_CNT}, 0")
    k.label(L)
    k(f"global_load_dword v{vt}, v{vt+1}, {sr(S_DBG,2)} sc1"); k("s_waitcnt vmcnt(0)")
    k(f"v_readfirstlane_b32 s{S_TAG}, v{vt}"); k(f"s_cmp_lg_u32 s{S_TAG}, 0")
    spin_tail(k, L, True, SPIN_MAX)
def poll(k, voff, soff, vt):
    L = newlabel("poll")
    k(f"s_mov_b32 s{S_CNT}, 0")
    k.label(L)
    k(f"buffer_load_dword v{vt}, v{voff}, {sr(R_WS,4)}, s{soff} offen sc1"); k("s_waitcnt vmcnt(0)"); k.vm.all_done()
    k(f"v_cmp_ne_u32 vcc, s{S_TAG}, v{vt}"); k("s_cmp_eq_u64 vcc, 0")
    spin_tail(k, L, True, SPIN_MAX)
def tag_issue(k, vt):
    k(f"v_mov_b32 v{vt+1}, 0"); k.vmem(f"global_load_dword v{vt}, v{vt+1}, {sr(S_DBG,2)} sc1", "tag")
def tag_check(k, vt):
    k.wait_vm("tag"); k(f"v_readfirstlane_b32 s{S_TAG}, v{vt}"); k(f"s_cmp_lg_u32 s{S_TAG}, 0")
    cold(k, "s_cbranch_scc0", lambda c: get_tag(c, vt))
def flag_issue(k, voff, soff, vt, name):
    k.vmem(f"buffer_load_dword v{vt}, v{voff}, {sr(R_WS,4)}, s{soff} offen sc1", name)
def flag_check(k, voff, soff, vt, name):
    k.wait_vm(name); k(f"v_cmp_ne_u32 vcc, s{S_TAG}, v{vt}")
    cold(k, "s_cbranch_vccnz", lambda c: poll(c, voff, soff, vt))
def publish(k, soff, vt):
    k(f"v_mov_b32 v{vt}, s{S_TAG}"); k(f"v_lshlrev_b32 v{vt+1}, 2, v1")
    k("s_mov_b32 exec_hi, 0")
    k.vmem(f"buffer_store_dword v{vt}, v{vt+1}, {sr(R_WS,4)}, s{soff} offen sc1", "flag")
    k("s_mov_b32 exec_hi, -1")
def lds_wait1(k, va, off, vt):
    L = newlabel("lw")
    k(f"s_mov_b32 s{S_CNT}, 0")
    k.label(L)
    k(f"ds_read_b32 v{vt}, v{va} offset:{off}"); k("s_waitcnt lgkmcnt(0)"); k.lg.all_done()
    k(f"v_readfirstlane_b32 s70, v{vt}"); k("s_cmp_eq_u32 s70, 1")
    spin_tail(k, L, True, LSPIN)
def mr_wait(k, va, vt):
    L = newlabel("mr")
    k(f"s_mov_b32 s{S_CNT}, 0")
    k.label(L)
    k(f"ds_read_b128 {vr(vt,4)}, v{va}"); k("s_waitcnt lgkmcnt(0)"); k.lg.all_done()
    k(f"v_and_b32 v{vt}, v{vt}, v{vt+1}"); k(f"v_and_b32 v{vt+2}, v{vt+2}, v{vt+3}"); k(f"v_and_b32 v{vt}, v{vt}, v{vt+2}"); k("s_nop 0")
    k(f"v_readfirstlane_b32 s70, v{vt}"); k("s_cmp_eq_u32 s70, 1")
    spin_tail(k, L, True, LSPIN)

def merge(a, b):
    ta = max(1, sum(x[0] for x in a)); tb = max(1, sum(x[0] for x in b)); out = []; i = j = 0; wa = wb = 0
    while i < len(a) or j < len(b):
        if j >= len(b) or (i < len(a) and wa / ta <= wb / tb): out.append(a[i]); wa += a[i][0]; i += 1
        else: out.append(b[j]); wb += b[j][0]; j += 1
    return out

PRM = 232; KD = 128
def param_loads(k):
    k(f"s_lshl_b32 s69, s{S_CHAN}, 8"); k(f"s_lshl_b32 s70, s{S_HALF}, 7"); k("s_add_u32 s69, s69, s70")
    k("v_lshlrev_b32 v240, 1, v1"); k("v_add_u32 v240, s69, v240")
    for i in range(8): k(f"v_mov_b32 v{PRM+i}, 0")
    for i, sp in enumerate([S_ARE, S_AIM, S_BRE, S_BIM, S_CRE, S_CIM]):
        k.vmem(f"global_load_short_d16_hi v{PRM+i}, v240, {sr(sp,2)}", "p")
    k(f"s_lshl_b32 s70, s{S_CHAN}, 1"); k("v_mov_b32 v241, s70")
    k.vmem(f"global_load_short_d16_hi v{PRM+6}, v241, {sr(S_LDT,2)}", "p")
    k.vmem(f"global_load_short_d16_hi v{PRM+7}, v241, {sr(S_DSK,2)}", "p")

def kgen(k):
    atoms = []
    def A(w, fn): atoms.append((w, fn))
    Are, Aim, Bre, Bim, Cre, Cim, LDT, DSK = range(PRM, PRM + 8)
    W = {0: 120, 1: 122, 2: 124, 3: 126}
    E = {i: 32 + 2*(i-1) for i in range(1, 9)}; E128 = 48; E512 = 50; V32 = 52; E256 = 54
    PKS = [56, 146]
    TP = [180 + 2*i for i in range(8)]; VQ = [196 + 2*i for i in range(8)]; WQ = [212 + 2*i for i in range(8)]
    VF, AFR, RA = 72, 88, 242
    k("v_and_b32 v243, 15, v1"); k("v_lshrrev_b32 v244, 4, v1")
    k(f"v_mul_u32_u24 v{RA}, {ROWB}, v243"); k(f"v_lshl_add_u32 v{RA}, v244, 4, v{RA}"); k(f"v_add_u32 v{RA}, s{S_TABB}, v{RA}")
    k(f"s_mov_b32 m0, s{S_TABB}")
    def cmulb(lst):
        for d, x, y in lst: assert d != x and d != y
        def f():
            for d, x, y in lst: k(f"v_pk_mul_f32 {vr(d,2)}, {vr(x,2)}, {vr(y,2)} op_sel:[0,0] op_sel_hi:[0,1]")
            for d, x, y in lst: k(f"v_pk_fma_f32 {vr(d,2)}, {vr(x,2)}, {vr(y,2)}, {vr(d,2)} op_sel:[1,1,0] op_sel_hi:[1,0,1] neg_lo:[1,0,0]")
        A(2*len(lst), f)
    k(f"s_mov_b32 s76, {LOG2E:#x}"); k("s_mov_b32 s77, 0x32a57060")
    k(f"v_mul_f32 v243, s76, v{LDT}"); k(f"v_fma_f32 v244, v{LDT}, s76, -v243"); k(f"v_fma_f32 v244, v{LDT}, s77, v244")
    k("v_exp_f32 v243, v243"); k("v_mul_f32 v244, 0x3f317218, v244"); k("v_fma_f32 v243, v243, v244, v243")
    rbf(k, 243)
    for r in (Are, Aim, Bre, Bim): k(f"v_mul_f32 v{r}, v243, v{r}")
    k(f"v_mul_f32 v{Are}, s76, v{Are}"); k(f"v_mul_f32 v{Aim}, 0.15915494, v{Aim}")
    dl = [(E[8], 8), (E128, 128), (E[4], 4), (V32, 32), (E[1], 1), (E512, 512)]
    for i, (d, e) in enumerate(dl): k(f"v_mul_f32 v{TP[i]}, {f2h(e)}, v{Are}"); k(f"v_mul_f32 v{TP[i]+1}, {f2h(e)}, v{Aim}")
    for i, (d, e) in enumerate(dl): k(f"v_exp_f32 v{TP[i]}, v{TP[i]}"); k(f"v_fract_f32 v{TP[i]+1}, v{TP[i]+1}")
    for i, (d, e) in enumerate(dl): k(f"v_cos_f32 v{d}, v{TP[i]+1}"); k(f"v_sin_f32 v{d+1}, v{TP[i]+1}")
    k("s_nop 0")
    for i, (d, e) in enumerate(dl): k(f"v_mul_f32 v{d}, v{TP[i]}, v{d}"); k(f"v_mul_f32 v{d+1}, v{TP[i]}, v{d+1}")
    cur = [0]
    def packb(lst):
        PK = PKS[cur[0] & 1]
        def f():
            for slot, v, neg in lst: k(f"v_cvt_pk_bf16_f32 v{PK+slot}, v{v}, {'-' if neg else ''}v{v+1}")
        A(len(lst), f)
    def wr(row, reg): return (2, lambda: k.lds(f"ds_write_addtid_b32 v{reg} offset:{row*ROWB}"))
    cmulb([(W[0], Cre, Bre), (VQ[2], E[8], E[8]), (E256, E128, E128), (VQ[5], E[8], V32), (E[2], E[1], E[1]), (E[5], E[4], E[1])])
    cmulb([(W[1], W[0], E128), (VQ[3], VQ[2], E[8]), (VQ[6], VQ[2], V32), (W[2], W[0], E256), (E[3], E[2], E[1]), (E[6], E[4], E[2])])
    cmulb([(W[3], W[1], E256), (VQ[7], VQ[3], V32), (VQ[0], V32, V32), (VQ[1], VQ[5], V32), (E[7], E[4], E[3])])
    A(1, lambda: k(f"v_mov_b32 v{PKS[0]}, 0x3f80"))
    packb([(1, E[8], 0), (2, VQ[2], 0), (3, VQ[3], 0), (4, V32, 0), (5, VQ[5], 0), (6, VQ[6], 0), (7, VQ[7], 0)])
    cmulb([(VQ[2], VQ[6], V32), (VQ[3], VQ[7], V32), (VQ[4], VQ[0], V32), (VQ[5], VQ[1], V32)])
    cmulb([(VQ[6], VQ[2], V32), (VQ[7], VQ[3], V32)])
    packb([(8+i, VQ[i], 0) for i in range(8)])
    pend = [wr(j, PKS[0]+j) for j in range(16)] + [(4, lambda: [k.lds(f"ds_read_b128 {vr(VF+4*s,4)}, v{RA} offset:{64*s}") for s in range(4)])]
    def prods(items):
        dp = [(s_, w, True) for slots, w, x in items if x == 0 for s_ in slots]
        pr = [(slots, w, x) for slots, w, x in items if x]
        if dp: packb(dp)
        for i in range(0, len(pr), 8):
            b = pr[i:i+8]
            for h in range(0, len(b), 4): cmulb([(TP[h+j], w, E[x]) for j, (slots, w, x) in enumerate(b[h:h+4])])
            packb([(s_, TP[j], True) for j, (slots, w, x) in enumerate(b) for s_ in slots])
    def tile_compute(tau):
        items = []
        if tau < 2:
            for g in range(4):
                xs = [(4*tau + i) if g < 2 else RND2[4*tau + i] for i in range(4)]
                for x in sorted(set(xs)): items.append(([4*g + i for i in range(4) if xs[i] == x], W[g], x))
        elif tau == 2:
            cmulb([(WQ[g], W[g], E512) for g in range(4)])
            for g in range(4):
                items.append(([4*g], W[g], 8))
                for i, x in enumerate([0, 4, 8]): items.append(([4*g + 1 + i], WQ[g], x))
        else:
            cmulb([(WQ[4+g], WQ[g], E512) for g in range(4)])
            cmulb([(WQ[g], WQ[4+g], E512) for g in range(4)])
            for b in range(8):
                w = WQ[4+b] if b < 4 else WQ[b-4]
                items.append(([2*b], w, 0)); items.append(([2*b+1], w, 8))
        prods(items)
    def tile_mfma(tau):
        def f1():
            for s in range(4): k.lds(f"ds_read_b128 {vr(AFR+4*s,4)}, v{RA} offset:{16*ROWB + 64*s}", ("af", tau, s))
        def f2():
            dd = KD + 4*tau
            for s in range(4):
                k.wait_lg(("af", tau, s))
                k(f"v_mfma_f32_16x16x32_bf16 {vr(dd,4)}, {vr(AFR+4*s,4)}, {vr(VF+4*s,4)}, {'0' if s==0 else vr(dd,4)}")
        return [(6, f1), (8, f2)]
    for tau in range(4):
        cur[0] += 1
        n0 = len(atoms); tile_compute(tau); c_ = atoms[n0:]; del atoms[n0:]
        atoms.extend(merge(c_, pend))
        pend = [wr(16+j, PKS[cur[0] & 1]+j) for j in range(16)] + tile_mfma(tau)
    atoms.extend(pend)
    for w, f in atoms: f()
    k("v_lshlrev_b32 v243, 4, v1"); k(f"v_add_u32 v243, s{S_TABB}, v243")
    k.nop(7)
    for q in range(4): k.lds(f"ds_write_b128 v243, {vr(KD+4*q,4)} offset:{1024*q}")

def w2_addr(k, v, t1, t2):
    k.srd(R_A, S_W2, 1792*1024)
    k(f"v_lshrrev_b32 v{t1}, 3, v1"); k(f"v_lshlrev_b32 v{v}, 10, v{t1}")
    k(f"v_and_b32 v{t1}, 2, v{t1}"); k(f"v_bfe_u32 v{t2}, v1, 1, 2"); k(f"v_xor_b32 v{t1}, v{t1}, v{t2}"); k(f"v_lshl_add_u32 v{v}, v{t1}, 5, v{v}")
    k(f"v_and_b32 v{t1}, 1, v1"); k(f"v_lshl_add_u32 v{v}, v{t1}, 4, v{v}")
    k(f"s_lshl_b32 s64, s{S_NT}, 7"); k(f"s_mul_i32 s65, s{S_RW}, {448*1024}"); k("s_add_u32 s64, s64, s65"); k(f"v_add_u32 v{v}, s64, v{v}")
    k(f"s_mul_i32 s66, s{S_RW}, 6144"); k(f"s_add_u32 s66, s66, {L_W2}")
def w2dma(k, i):
    so = slot_off(i % W2SLOTS)
    for q in range(2):
        k(f"s_add_u32 m0, s66, {so + q*1024}"); k(f"s_mov_b32 s67, {(16*i + 8*q)*1024}")
        k.vmem(f"buffer_load_dwordx4 v2, {sr(R_A,4)}, s67 offen lds", ("w2", i))

def gen_H(k, st, vm0):
    D = KD; DX = 104; P = 148; DSK = PRM + 7; EB = 184
    k.srd(R_WS, S_WS, LY.WS_SIZE_USED)
    def common_setup():
        k(f"s_mul_i32 s68, s{S_CH}, {2*TABW}"); k(f"s_add_u32 s68, s68, {L_TAB}")
        k(f"s_lshl_b32 s70, s{S_RW}, 4"); k(f"s_add_u32 s70, s70, {L_FLAG}"); k("v_mov_b32 v29, s70"); k("v_xor_b32 v30, 16, v29")
        for i in range(4): k(f"v_mov_b32 v{176+i}, 0")
        k.lds("ds_write_b128 v29, v[176:179]")
        k(f"v_mov_b32 v28, {L_FLAG + 64}")
        k("v_lshlrev_b32 v22, 4, v1")
        k(f"s_lshl_b32 s78, s{S_RW}, 12"); k(f"s_add_u32 s78, s78, {L_X}"); k("v_add_u32 v24, s78, v22"); k("v_xor_b32 v25, 0x1000, v24")
        k(f"s_mul_i32 s71, s{S_RW}, {4*PL}"); k(f"s_add_u32 s71, s71, {L_UP}"); k("v_add_u32 v23, s71, v22")
    def hs_set(i):
        k.wait_all_lg(); k("v_mov_b32 v31, 1"); k.lds(f"ds_write_b32 v29, v31 offset:{4*i}")
    def hs_wait(i): lds_wait1(k, 30, 4*i, 31)
    def dsum():
        k("v_add_u32 v16, s68, v22")
        for q in range(4): k.lds(f"ds_read_b128 {vr(D+4*q,4)}, v16 offset:{1024*q}")
        for q in range(4): k.lds(f"ds_read_b128 {vr(DX+4*q,4)}, v16 offset:{TABW + 1024*q}")
        k.wait_all_lg()
        for r in range(16): k(f"v_add_f32 v{D+r}, v{D+r}, v{DX+r}")
    def eprep():
        k("v_and_b32 v16, 15, v1"); k("v_lshrrev_b32 v17, 4, v1")
        k("v_and_b32 v18, 1, v16"); k("v_cmp_eq_u32 vcc, 0, v18"); k("s_nop 1")
        k(f"v_cndmask_b32 v{D+16}, v{D+13}, v{D+12}, vcc"); k(f"v_cndmask_b32 v{D+17}, v{D+15}, v{D+14}, vcc")
        k(f"s_cmp_eq_u32 s{S_HALF}, 0"); k("s_cselect_b64 vcc, -1, 0")
        A0 = [D+i for i in range(9)]; A1 = [D+9]*3 + [D+10]*3 + [D+11]*3
        B0 = [D+12]*4 + [D+16] + [D+13]*4; B1 = [D+14]*4 + [D+17] + [D+15]*4
        for i in range(9): k(f"v_cndmask_b32 v{EB+i}, v{B0[i]}, v{A0[i]}, vcc")
        for i in range(9): k(f"v_cndmask_b32 v{EB+9+i}, v{B1[i]}, v{A1[i]}, vcc")
        k("v_lshlrev_b32 v19, 4, v16"); k(f"v_sub_u32 v19, {4080 - 16}, v19"); k("v_add_u32 v19, s68, v19")
        k(f"s_add_u32 s70, s{S_HALF}, 8"); k("v_lshlrev_b32 v20, s70, v17"); k("v_sub_u32 v20, v19, v20")
        k(f"s_lshl_b32 s70, s{S_HALF}, 11"); k("v_subrev_u32 v20, s70, v20")
        k(f"s_cmp_eq_u32 s{S_HALF}, 0"); k("s_cselect_b32 s70, 4, 1"); k("s_lshl_b32 s70, s70, 8"); k("v_subrev_u32 v21, s70, v20")
        k(f"v_mul_u32_u24 v26, {CPY}, v17"); k("v_lshl_add_u32 v26, v16, 2, v26"); k("v_add_u32 v26, s68, v26")
    def write_block(e, addr, P):
        for j, (lo, hi) in enumerate([(7,6),(5,4),(3,2),(1,0)]): k(f"v_cvt_pk_bf16_f32 v{P+j}, v{e+lo}, v{e+hi}")
        for j, (lo, hi) in enumerate([(8,7),(6,5),(4,3),(2,1)]): k(f"v_cvt_pk_bf16_f32 v{P+4+j}, v{e+lo}, v{e+hi}")
        k(f"v_mov_b32 v{P+8}, v{P+1}"); k(f"v_mov_b32 v{P+9}, v{P+2}"); k(f"v_mov_b32 v{P+10}, v{P+5}"); k(f"v_mov_b32 v{P+11}, v{P+6}")
        return [f"ds_write_b128 v{addr}, {vr(P,4)} offset:16",
                f"ds_write_b32 v{addr}, v{P} offset:{2*CPY + 12}", f"ds_write_b32 v{addr}, v{P+3} offset:{2*CPY + 24}",
                f"ds_write_b64 v{addr}, {vr(P+8,2)} offset:{2*CPY + 16}",
                f"ds_write_b32 v{addr}, v{P+4} offset:{CPY + 12}", f"ds_write_b32 v{addr}, v{P+7} offset:{CPY + 24}",
                f"ds_write_b64 v{addr}, {vr(P+4,2)} offset:{3*CPY + 8}", f"ds_write_b64 v{addr}, {vr(P+6,2)} offset:{3*CPY + 16}",
                f"ds_write_b64 v{addr}, {vr(P+10,2)} offset:{CPY + 16}"]
    WL = []
    def epack():
        WL.extend(write_block(EB, 20, 204)); WL.extend(write_block(EB + 9, 21, 216))
        k(f"v_cvt_pk_bf16_f32 v27, v{D}, v{D}")
    def ewrite():
        k(f"s_cmp_eq_u32 s{S_HALF}, 0"); k("s_cselect_b64 exec, -1, 0")
        k.lds(f"ds_write_b32 v26, v176 offset:{2*2044}")
        k("s_mov_b64 exec, -1")
        for w in WL: k.lds(w)
        k("v_mov_b32 v31, s68"); k("s_cselect_b64 exec, 1, 0")
        k.lds(f"ds_write_b16 v31, v27 offset:{CPY + 2*2046}"); k.lds(f"ds_write_b16 v31, v27 offset:{3*CPY + 2*2044}")
        k("s_mov_b64 exec, -1")
    def u_flag():
        tag_check(k, 244)
        k(f"v_mov_b32 v245, {L_FLAG + 80}"); k(f"v_mov_b32 v244, s{S_TAG}"); k.lds("ds_write_b32 v245, v244")
        k("v_and_b32 v246, 31, v1"); k("v_lshlrev_b32 v246, 7, v246")
        k(f"s_lshr_b32 s79, s{S_CHAN}, 7"); k("s_lshl_b32 s79, s79, 12"); k(f"s_add_u32 s79, s79, {LY.WS_FU}")
        k(f"s_lshl_b32 s90, s{S_CHAN}, 12"); k(f"s_add_u32 s90, s90, {LY.WS_UT}")
        flag_issue(k, 246, 79, 247, "fu")
    def uload():
        flag_check(k, 246, 79, 247, "fu")
        for p in range(4): k.vmem(f"buffer_load_dwordx4 {vr(160+4*p,4)}, v22, {sr(R_WS,4)}, s90 offen offset:{1024*p} sc1", "ut")
    def caddr():
        k("v_and_b32 v16, 31, v1"); k("v_lshrrev_b32 v17, 5, v1")
        k(f"v_mul_u32_u24 v249, {PL}, v17"); k("v_lshl_add_u32 v249, v16, 4, v249"); k("v_add_u32 v249, s71, v249")
        k("v_sub_u32 v18, 3, v16"); k("v_and_b32 v18, 3, v18"); k(f"v_mul_u32_u24 v18, {CPY - 2}, v18")
        k("v_sub_u32 v19, 31, v16"); k("v_lshl_add_u32 v19, v17, 3, v19"); k("v_lshl_add_u32 v18, v19, 1, v18")
        k(f"s_lshl_b32 s70, s{S_HALF}, 10"); k("s_sub_u32 s70, s68, s70"); k("v_add_u32 v18, s70, v18")
        k(f"s_lshl_b32 s70, s{S_HALF}, 8"); k("s_sub_u32 s70, 256, s70"); k("v_add_u32 v19, s70, v249")
        k("v_and_b32 v248, 3, v1"); k(f"v_mul_u32_u24 v248, {PL}, v248"); k("v_lshrrev_b32 v5, 2, v1"); k("v_lshl_add_u32 v248, v5, 4, v248"); k("v_add_u32 v248, s71, v248")
    def ustage():
        k.lds("ds_write_b128 v249, v[176:179]"); k.lds(f"ds_write_b128 v249, v[176:179] offset:{2*PL}")
        k.wait_vm("ut")
        for p in range(4): k.lds(f"ds_write_b128 v248, {vr(160+4*p,4)} offset:{p*256 + 512}")

    k(f"s_cmp_lt_u32 s{S_IDX}, 4"); k("s_cbranch_scc1 L_Haux")
    k.srd(R_U, S_U, 2048*1024); k.srd(R_A, S_W1, 512*3584); k.srd(R_B, S_W3, 512*3584)
    k("v_lshrrev_b32 v16, 4, v1"); k("v_bfe_u32 v17, v1, 1, 3"); k("v_xor_b32 v17, v17, v16")
    k("v_mul_u32_u24 v2, 3584, v16"); k("v_lshl_add_u32 v2, v17, 5, v2")
    k("v_and_b32 v17, 1, v1"); k("v_lshl_add_u32 v2, v17, 4, v2")
    k(f"s_lshl_b32 s70, s{S_FT}, 8"); k(f"s_mul_i32 s71, s{S_RW}, {8*3584}"); k("s_add_u32 s70, s70, s71")
    k("v_xor_b32 v3, 0x80, v2")
    k("v_add_u32 v2, s70, v2"); k("v_add_u32 v3, s70, v3")
    k("v_lshrrev_b32 v4, 2, v1"); k("v_lshlrev_b32 v4, 10, v4")
    k("v_and_b32 v17, 3, v1"); k("v_xor_b32 v17, v17, v16"); k("v_lshl_add_u32 v4, v17, 4, v4")
    k(f"s_lshl_b32 s70, s{S_MT}, 17"); k(f"s_lshl_b32 s71, s{S_RW}, 15"); k("s_add_u32 s70, s70, s71")
    k("v_add_u32 v4, s70, v4")
    k(f"s_lshl_b32 s72, s{S_RW}, 11")
    k(f"s_lshr_b32 s87, s{S_XCD}, 1"); k(f"s_mul_i32 s87, s87, {ROTQ}")
    def dma(sg):
        buf = bufaddr(sbuf(sg))
        k(f"s_add_u32 s88, s87, {sg}"); k("s_and_b32 s88, s88, 15")
        k(f"s_mul_i32 s89, s88, {32*3584}"); k("s_lshl_b32 s88, s88, 6")
        def one(lo, sb, so, v, srd):
            k(f"s_add_u32 m0, s72, {lo}"); k(f"s_add_u32 s73, s{sb}, {so}")
            k.vmem(f"buffer_load_dwordx4 v{v}, {sr(srd,4)}, s73 offen lds", ("w", sg))
        for m in range(2):
            for q in range(2): one(buf + m*8192 + q*1024, 89, q*4*3584, 2+m, R_A+4*m)
        for q in range(2): one(buf + 16384 + q*1024, 88, q*16*1024, 4, R_U)
    dma(0)
    k("s_barrier")
    common_setup(); k.lds("ds_write_b128 v28, v[176:179]"); k.lds("ds_write_b128 v28, v[176:179] offset:32")
    st()
    for sg in range(1, PRE2): dma(sg)
    st()
    nxt = PRE2
    for s in range(16):
        k.wait_vm(("w", s))
        if k.lg.outstanding() and s in (0, 1, 15): k.wait_all_lg()
        k("s_barrier")
        if s in (0, 8): st()
        cnt = 0
        while nxt < 16 and nxt <= max(4, s + 4) and cnt < DPE:
            dma(nxt); nxt += 1; cnt += 1
        if s == 0: dsum()
        if s == TAGE: tag_issue(k, 244)
        if s == 12: eprep(); epack(); w2_addr(k, 2, 16, 17)
        if s == UFE: u_flag(); caddr()
        if s == UTE: uload()
        if s in (14, 15):
            for j in range(3): w2dma(k, 3*(s-14) + j)
    assert nxt == 16
    k.label("L_Hjoin")
    ewrite(); hs_set(1); ustage(); hs_wait(1)
    if CDEL:
        k.wait_all_vm(); k("v_mov_b32 v31, 1"); k.lds("ds_write_b32 v29, v31 offset:12")
    if CDEL == 1: mr_wait(k, 28, 180)
    if CDEL == 2:
        k(f"s_lshl_b32 s73, s{S_RW}, 2"); k("v_mov_b32 v180, s73"); lds_wait1(k, 180, L_FLAG + 96, 181)
    st()
    AC0, AC1, FR = 32, 48, 64
    steps = [(dl, kh) for dl in range(16) for kh in range(2)]
    def rd(i):
        dl, kh = steps[i]; b = FR + (i % 3) * 16
        o1 = 2*(2016 - 32*dl + 16*kh); o2 = o1 - 2048
        k.lds(f"ds_read_b64 {vr(b,2)}, v18 offset:{o1}", i); k.lds(f"ds_read_b64 {vr(b+2,2)}, v18 offset:{o1+8}", i)
        k.lds(f"ds_read_b128 {vr(b+8,4)}, v19 offset:{2*kh*PL + (16-dl)*16}", i)
        k.lds(f"ds_read_b128 {vr(b+12,4)}, v19 offset:{2*kh*PL + (48-dl)*16}", i)
        k.lds(f"ds_read_b64 {vr(b+4,2)}, v18 offset:{o2}", i); k.lds(f"ds_read_b64 {vr(b+6,2)}, v18 offset:{o2+8}", i)
    NCS = opt('ncs', 32)
    rd(0); rd(1)
    for i in range(NCS):
        b = FR + (i % 3) * 16
        k.wait_lg(i)
        if i == WFS and not CDEL:
            k.wait_all_vm(); k("v_mov_b32 v31, 1"); k.lds("ds_write_b32 v29, v31 offset:12")
        if i + 2 < NCS: rd(i + 2)
        k(f"v_mfma_f32_32x32x16_bf16 {vr(AC0,16)}, {vr(b,4)}, {vr(b+8,4)}, {'0' if i==0 else vr(AC0,16)}")
        k(f"v_mfma_f32_32x32x16_bf16 {vr(AC1,16)}, {vr(b,4)}, {vr(b+12,4)}, {'0' if i==0 else vr(AC1,16)}")
        k(f"v_mfma_f32_32x32x16_bf16 {vr(AC1,16)}, {vr(b+4,4)}, {vr(b+8,4)}, {vr(AC1,16)}")
    if HP2: k(f"s_setprio {HP2}")
    k("v_lshlrev_b32 v26, 4, v16"); k("v_lshl_add_u32 v26, v17, 3, v26")
    k(f"s_lshl_b32 s70, s{S_HALF}, 9"); k("s_add_u32 s70, s70, s71"); k("v_add_u32 v26, s70, v26")
    for q in range(4): k.lds(f"ds_read_b64 {vr(FR+2*q,2)}, v26 offset:{q*PL + 512}", "uu")
    st()
    mr_wait(k, 28, 180)
    k(f"s_cmp_eq_u32 s{S_HALF}, 1"); k("s_cselect_b64 exec, -1, 0")
    for i in range(16): k(f"v_swap_b32 v{AC0+i}, v{AC1+i}")
    k("s_mov_b64 exec, -1")
    for q in range(4): k.lds(f"ds_write_b128 v24, {vr(AC1+4*q,4)} offset:{1024*q}")
    hs_set(2)
    for j in range(8):
        k(f"v_lshlrev_b32 v{80+2*j}, 16, v{FR+j}"); k(f"v_and_b32 v{81+2*j}, 0xffff0000, v{FR+j}")
    for j in range(16): k(f"v_mul_f32 v{80+j}, v{DSK}, v{80+j}")
    for j in range(8): k(f"v_cvt_pk_bf16_f32 v{FR+j}, v{80+2*j}, v{81+2*j}")
    for j in range(8):
        k(f"v_lshlrev_b32 v{80+2*j}, 16, v{FR+j}"); k(f"v_and_b32 v{81+2*j}, 0xffff0000, v{FR+j}")
    k("v_lshlrev_b32 v26, 6, v16"); k("v_lshl_add_u32 v26, v17, 3, v26"); k("v_add_u32 v26, s71, v26")
    k(f"s_lshl_b32 s74, s{S_CHAN}, 12"); k(f"s_lshl_b32 s73, s{S_HALF}, 11"); k("s_add_u32 s74, s74, s73"); k(f"s_add_u32 s74, s74, {LY.WS_AT}")
    k(f"s_lshr_b32 s72, s{S_CHAN}, 6"); k("s_lshl_b32 s72, s72, 7"); k(f"s_lshl_b32 s73, s{S_HALF}, 6"); k("s_add_u32 s72, s72, s73")
    k(f"s_and_b32 s73, s{S_CHAN}, 63"); k("s_add_u32 s72, s72, s73"); k("s_lshl_b32 s72, s72, 7"); k(f"s_add_u32 s72, s72, {LY.WS_FA}")
    hs_wait(2)
    st()
    for q in range(4): k.lds(f"ds_read_b128 {vr(AC1+4*q,4)}, v25 offset:{1024*q}", "x")
    k.wait_all_lg()
    for r in range(16): k(f"v_add_f32 v{AC0+r}, v{AC0+r}, v{AC1+r}")
    for j in range(8): k(f"v_cvt_pk_bf16_f32 v{AC1+j}, v{AC0+2*j}, v{AC0+2*j+1}")
    for j in range(8):
        k(f"v_lshlrev_b32 v{AC0+2*j}, 16, v{AC1+j}"); k(f"v_and_b32 v{AC0+2*j+1}, 0xffff0000, v{AC1+j}")
    for r in range(16): k(f"v_add_f32 v{AC0+r}, v{AC0+r}, v{80+r}")
    for j in range(8): k(f"v_cvt_pk_bf16_f32 v{AC1+j}, v{AC0+2*j}, v{AC0+2*j+1}")
    for q in range(4): k.lds(f"ds_write_b64 v26, {vr(AC1+2*q,2)} offset:{16*q}")
    for j in range(2): k.lds(f"ds_read_b128 {vr(FR+4*j,4)}, v23 offset:{1024*j}")
    k.wait_all_lg()
    for j in range(2): k.vmem(f"buffer_store_dwordx4 {vr(FR+4*j,4)}, v22, {sr(R_WS,4)}, s74 offen offset:{1024*j} sc1")
    st()
    k.wait_all_vm()
    publish(k, 72, 16)
    st()
    st.flush(S_RW, LY.WS_STAMP, S_WS)
    k("s_endpgm")
    k.label("L_Haux"); k.reset_counters(); k.vm = copy.deepcopy(vm0); WL.clear()
    Lt = newlabel("notag")
    k("s_cmp_lg_u32 s2, 0"); k(f"s_cbranch_scc1 {Lt}"); k(f"s_cmp_lg_u32 s{S_RW}, 3"); k(f"s_cbranch_scc1 {Lt}")
    k("s_memrealtime s[74:75]"); k("s_waitcnt lgkmcnt(0)"); k("s_or_b32 s74, s74, 1")
    k("v_mov_b32 v16, s74"); k("v_mov_b32 v17, 0"); k("s_mov_b64 exec, 1")
    k(f"global_store_dword v17, v16, {sr(S_DBG,2)} sc1"); k("s_mov_b64 exec, -1")
    k.label(Lt)
    common_setup()
    for i in range(4): k(f"v_mov_b32 v{8+i}, 1")
    k.lds("ds_write_b128 v28, v[8:11] offset:32")
    k.lds("ds_write_b128 v28, v[8:11]")
    k("s_waitcnt vmcnt(0) lgkmcnt(0)"); k.vm.all_done(); k.lg.all_done()
    k("s_branch L_kgen"); k.label("L_Haux_ret")
    tag_issue(k, 244)
    k("s_waitcnt lgkmcnt(0)"); k("s_barrier")
    k(f"s_lshl_b32 s70, s{S_XCD}, 2"); k(f"s_add_u32 s70, s70, s{S_IDX}"); k("s_lshl_b32 s70, s70, 2"); k(f"s_add_u32 s70, s70, s{S_RW}"); k("s_mul_i32 s70, s70, 112")
    k("v_min_u32 v5, 55, v1"); k("v_add_u32 v5, s70, v5"); k("v_lshlrev_b32 v5, 7, v5")
    k.vmem(f"global_load_dword v252, v5, {sr(S_W2,2)}", "pf"); k(f"v_add_u32 v5, {56*128}, v5")
    k.vmem(f"global_load_dword v252, v5, {sr(S_W2,2)}", "pf")
    dsum(); hs_set(0)
    u_flag(); eprep(); epack(); caddr(); uload(); hs_wait(0)
    k.wait_all_vm()
    k("s_branch L_Hjoin")

def prefetch_g(k):
    k(f"s_cmp_eq_u32 s{S_RW}, 0"); k(f"s_cselect_b32 s92, s{S_W1}, s{S_W3}"); k(f"s_cselect_b32 s93, s{S_W1+1}, s{S_W3+1}")
    k(f"s_cmp_ge_u32 s{S_RW}, 2"); k(f"s_cselect_b32 s92, s{S_U}, s92"); k(f"s_cselect_b32 s93, s{S_U+1}, s93"); k("s_cselect_b64 vcc, -1, 0")
    k(f"s_lshr_b32 s94, s{S_XCD}, 1"); k("s_lshl_b32 s94, s94, 5"); k(f"s_add_u32 s94, s94, s{S_IDX}"); k("s_lshl_b32 s94, s94, 2")
    k("v_lshrrev_b32 v9, 4, v1"); k("v_add_u32 v9, s94, v9"); k("v_mul_u32_u24 v9, 3584, v9")
    k("v_and_b32 v10, 15, v1"); k("v_min_u32 v10, 13, v10"); k("v_lshl_add_u32 v9, v10, 7, v9")
    k(f"s_and_b32 s94, s{S_XCD}, 1"); k("s_mul_i32 s94, s94, 1792"); k("v_add_u32 v9, s94, v9")
    k(f"s_lshl_b32 s94, s{S_XCD}, 5"); k(f"s_add_u32 s94, s94, s{S_IDX}"); k("s_lshl_b32 s94, s94, 13")
    k(f"s_and_b32 s95, s{S_RW}, 1"); k("s_lshl_b32 s95, s95, 12"); k("s_add_u32 s94, s94, s95")
    k("v_and_b32 v10, 31, v1"); k("v_lshlrev_b32 v10, 7, v10"); k("v_add_u32 v10, s94, v10")
    k("v_cndmask_b32 v9, v9, v10, vcc")
    k.vmem("global_load_dword v252, v9, s[92:93]", "pf")

def g2_setup(k):
    w2_addr(k, 2, 4, 5); k.srd(R_B, S_OUT, 2048*1024)
    k("v_bfe_u32 v4, v1, 2, 2"); k("v_lshrrev_b32 v5, 5, v1"); k("v_lshl_add_u32 v5, v5, 2, v4"); k("v_lshlrev_b32 v6, 7, v5")
    k("v_and_b32 v4, 2, v4"); k("v_bfe_u32 v5, v1, 4, 1"); k("v_xor_b32 v4, v4, v5"); k("v_lshl_add_u32 v6, v4, 5, v6")
    k("v_and_b32 v4, 3, v1"); k("v_lshl_add_u32 v6, v4, 3, v6")
    k(f"s_lshl_b32 s64, s{S_CH}, 6"); k("v_xor_b32 v6, s64, v6")
    k("v_xor_b32 v7, 64, v6"); k("v_add_u32 v6, s66, v6"); k("v_add_u32 v7, s66, v7")
    k("v_lshlrev_b32 v8, 4, v1")

def gen_G2(k, st):
    ACC = 24
    pool = list(range(88, 256, 8))
    wreg = {}; hreg = {}
    nd = [W2SLOTS]; nr = [0]
    def wread():
        i = nr[0]; b = pool.pop(0); wreg[i] = b
        k.wait_vm(("w2", i))
        for dt in range(2):
            for s2 in range(2):
                k.lds(f"ds_read_b64_tr_b16 {vr(b+4*dt+2*s2,2)}, v{6+dt} offset:{slot_off(i % W2SLOTS) + s2*1024}", ("wf", i))
        nr[0] += 1
    def more_dma():
        while nd[0] < 28 and nd[0] - W2SLOTS < nr[0] - 1:
            k.wait_lg(("wf", nd[0] - W2SLOTS)); w2dma(k, nd[0]); nd[0] += 1
    for j in range(6): wread()
    k("v_min_u32 v9, 6, v1"); k("v_lshlrev_b32 v9, 7, v9")
    k(f"s_lshl_b32 s82, s{S_TT}, 5"); k(f"s_mul_i32 s69, s{S_RW}, 7"); k("s_add_u32 s82, s82, s69"); k("s_lshl_b32 s82, s82, 7"); k(f"s_add_u32 s82, s82, {LY.WS_FH}")
    k(f"s_mul_i32 s68, s{S_TT}, 224"); k("s_lshl_b32 s69, s69, 2"); k("s_add_u32 s68, s68, s69"); k("s_lshl_b32 s68, s68, 10")
    k(f"s_mul_i32 s69, s{S_HALF}, {112*1024}"); k(f"s_sub_u32 s70, {112*1024}, s69"); k("s_add_u32 s69, s68, s69"); k("s_add_u32 s68, s68, s70")
    st()
    more_dma()
    for j in range(6, NWR):
        wread(); more_dma()
        if j == FJ: k.vmem(f"buffer_load_dword v10, v9, {sr(R_WS,4)}, s82 offen sc1", "fh")
    st()
    k.wait_vm("fh"); k(f"v_cmp_eq_u32 vcc, s{S_TAG}, v10"); k("s_nop 0"); k("s_mov_b32 s83, vcc_lo")
    def need_group(gi):
        def slow(c):
            L = newlabel("gp")
            c(f"s_mov_b32 s{S_CNT}, 0"); c.label(L)
            c(f"buffer_load_dword v10, v9, {sr(R_WS,4)}, s82 offen sc1"); c("s_waitcnt vmcnt(0)")
            c(f"v_cmp_eq_u32 vcc, s{S_TAG}, v10"); c("s_nop 0"); c("s_mov_b32 s83, vcc_lo"); c(f"s_bitcmp1_b32 s83, {gi}")
            spin_tail(c, L, True, SPIN_MAX)
        k(f"s_bitcmp1_b32 s83, {gi}"); cold(k, "s_cbranch_scc0", slow)
    nh = [0]
    def hload():
        i = nh[0]; b = pool.pop(0); hreg[i] = b
        if i % 4 == 0:
            need_group(i // 4)
            if i == 0: st()
            else: k("s_add_u32 s68, s68, 4096"); k("s_add_u32 s69, s69, 4096")
        for tk in range(2):
            k.vmem(f"buffer_load_dwordx4 {vr(b+4*tk,4)}, v8, {sr(R_WS,4)}, s{69-tk} offen offset:{(i%4)*1024} sc1", ("h", i))
        nh[0] += 1
    while pool: hload()
    k("v_and_b32 v20, 31, v1"); k("v_lshrrev_b32 v11, 5, v1")
    k(f"s_lshl_b32 s72, s{S_NT}, 7"); k(f"s_lshr_b32 s73, s{S_TT}, 4"); k("s_lshl_b32 s73, s73, 6"); k("s_add_u32 s72, s72, s73")
    k(f"s_lshl_b32 s73, s{S_CH}, 5"); k("s_add_u32 s72, s72, s73"); k("s_lshl_b32 s72, s72, 7"); k(f"s_add_u32 s72, s72, {LY.WS_FA - LY.WS_FH}")
    k("v_lshlrev_b32 v12, 7, v20"); k("v_add_u32 v12, s72, v12")
    k(f"s_lshl_b32 s72, s{S_TT}, 9"); k(f"s_add_u32 s72, s72, {LY.WS_FG - LY.WS_FH}")
    k("v_and_b32 v13, 3, v1"); k("v_lshlrev_b32 v13, 7, v13"); k("v_add_u32 v13, s72, v13")
    k("v_cmp_gt_u32 vcc, 32, v1"); k("s_nop 1"); k("v_cndmask_b32 v12, v13, v12, vcc")
    k(f"s_mov_b32 s76, {LY.WS_FH}")
    k(f"s_lshl_b32 s72, s{S_TT}, 6"); k(f"s_lshl_b32 s73, s{S_HALF}, 5"); k("s_add_u32 s72, s72, s73")
    k(f"s_lshl_b32 s74, s{S_NT}, 6"); k(f"s_lshl_b32 s73, s{S_CH}, 5"); k("s_add_u32 s74, s74, s73")
    k("v_add_u32 v21, s72, v20")
    k("v_lshlrev_b32 v15, 2, v21"); k("v_lshlrev_b32 v16, 1, v21"); k("v_lshl_add_u32 v16, v11, 14, v16")
    k("s_lshl_b32 s75, s74, 12"); k(f"s_add_u32 s75, s75, {LY.WS_AT}")
    k("v_add_u32 v4, s66, v8")
    for a in range(1, 4):
        k(f"s_xor_b32 s72, s{S_RW}, {a}"); k("s_mul_i32 s72, s72, 6144"); k(f"s_add_u32 s72, s72, {L_W2 + (a-1)*STG}"); k(f"v_add_u32 v{16+a}, s72, v8")
    k("v_lshlrev_b32 v5, 10, v21"); k("v_lshl_add_u32 v5, v11, 3, v5"); k("s_lshl_b32 s77, s74, 1")
    AV = [None]
    def ag_load():
        flag_check(k, 12, 76, 13, "fa")
        b0 = pool.pop(0); b1 = pool.pop(0); AV[0] = list(range(b0, b0+8)) + list(range(b1, b1+8))
        k(f"s_mov_b32 s73, {LY.WS_G}")
        k.vmem(f"buffer_load_dword v14, v15, {sr(R_WS,4)}, s73 offen sc1", "g")
        for r in range(16): k(f"v_mov_b32 v{AV[0][r]}, 0")
        for r in range(16):
            q, i = r >> 2, r & 3
            k(f"s_add_u32 s73, s75, {(8*q+i)*4096}")
            k.vmem(f"buffer_load_short_d16_hi v{AV[0][r]}, v16, {sr(R_WS,4)}, s73 offen sc1", "a")
    def mf(i, a):
        c = ACC + 16*a
        k(f"v_mfma_f32_32x32x16_bf16 {vr(c,16)}, {vr(wreg[i]+4*(a>>1),4)}, {vr(hreg[i]+4*(a&1),4)}, {'0' if i==0 else vr(c,16)}")
    NK = 28 - RT
    for i in range(NK):
        k.wait_both(("h", i), ("wf", i))
        if i in (1, 9, 18) and G2F: st()
        for a in ((3, 2, 1, 0) if i == 27 else (0, 1, 2, 3)): mf(i, a)
        pool.append(wreg[i]); pool.append(hreg[i])
        if nh[0] < 28: hload()
        if nr[0] < 28: wread(); more_dma()
        elif nh[0] < 28: hload()
        if i == AGI: flag_issue(k, 12, 76, 13, "fa")
        if i == min(26, AGI + 6): ag_load()
    if RT:
        assert nh[0] == 28 and nr[0] == 28
        k.wait_all_lg()
        pw = []
        for a in (3, 2, 1, 0):
            for n, i in enumerate(range(NK, 28)):
                k.wait_vm(("h", i)); mf(i, a)
                if n == 1 and pw: k.nop(10)
                if n >= 1 and pw: k.lds(pw.pop(0))
            for w in pw: k.lds(w)
            pw = [f"ds_write_b128 v4, {vr(ACC+16*a+4*q,4)} offset:{(a-1)*STG + 1024*q}" for q in range(4)] if a else []
            if a == AGA: ag_load()
        for i in range(NK, 28): pool.append(wreg[i]); pool.append(hreg[i])
    st()
    AVr = AV[0]
    regs = [r for b in sorted(pool) for r in range(b, b+8)]
    def take(n):
        for s0 in range(0, len(regs) - n + 1):
            if regs[s0] % 4 == 0 and regs[s0+n-1] == regs[s0] + n - 1:
                out = regs[s0]; del regs[s0:s0+n]; return out
        raise Exception("no regs")
    PR = [take(16) for _ in range(3)]; OP = take(8); OWN = ACC
    if not RT: k.nop(9)
    for a in ((3, 2, 1) if not RT else ()):
        for q in range(4): k.lds(f"ds_write_b128 v4, {vr(ACC+16*a+4*q,4)} offset:{(a-1)*STG + 1024*q}")
    k.wait_all_vm()
    k("v_sub_f32 v15, 1.0, v14"); rbf(k, 15)
    for r in range(16): k(f"v_mul_f32 v{AVr[r]}, v14, v{AVr[r]}")
    for j in range(8): k(f"v_cvt_pk_bf16_f32 v{AVr[2*j]}, v{AVr[2*j]}, v{AVr[2*j+1]}")
    for j in range(8): k(f"v_and_b32 v{AVr[2*j+1]}, 0xffff0000, v{AVr[2*j]}"); k(f"v_lshlrev_b32 v{AVr[2*j]}, 16, v{AVr[2*j]}")
    if OST:
        k("v_bfe_u32 v13, v20, 1, 2"); k("v_lshlrev_b32 v9, 6, v20"); k("v_lshl_add_u32 v9, v13, 4, v9"); k("v_lshl_add_u32 v9, v11, 3, v9"); k("v_add_u32 v9, s66, v9")
        for q in range(1, 4): k(f"v_xor_b32 v{9+q}, {16*q}, v9")
        k("v_lshrrev_b32 v5, 2, v1"); k("v_bfe_u32 v13, v1, 3, 2"); k("v_and_b32 v16, 3, v1"); k("v_xor_b32 v13, v13, v16")
        k(f"s_lshl_b32 s72, s{S_TT}, 6"); k(f"s_lshl_b32 s73, s{S_HALF}, 5"); k("s_add_u32 s72, s72, s73")
        k("v_add_u32 v5, s72, v5"); k("v_lshlrev_b32 v5, 10, v5"); k("v_lshl_add_u32 v5, v13, 4, v5"); k("s_add_u32 s78, s77, 16384")
    k.wait_all_lg(); k("s_barrier")
    st()
    for src in range(3):
        for q in range(4): k.lds(f"ds_read_b128 {vr(PR[src]+4*q,4)}, v{17+src} offset:{1024*q}", src)
    for src in range(3):
        k.wait_lg(src)
        if PKE:
            for r in range(0, 16, 2): k(f"v_pk_add_f32 {vr(OWN+r,2)}, {vr(OWN+r,2)}, {vr(PR[src]+r,2)}")
        else:
            for r in range(16): k(f"v_add_f32 v{OWN+r}, v{OWN+r}, v{PR[src]+r}")
    for j in range(8): k(f"v_cvt_pk_bf16_f32 v{OWN+2*j}, v{OWN+2*j}, v{OWN+2*j+1}")
    for j in range(8): k(f"v_and_b32 v{OWN+2*j+1}, 0xffff0000, v{OWN+2*j}"); k(f"v_lshlrev_b32 v{OWN+2*j}, 16, v{OWN+2*j}")
    if PKE:
        for r in range(0, 16, 2): k(f"v_pk_mul_f32 {vr(OWN+r,2)}, {vr(OWN+r,2)}, v[14:15] op_sel:[0,1] op_sel_hi:[1,1]")
    else:
        for r in range(16): k(f"v_mul_f32 v{OWN+r}, v15, v{OWN+r}")
    for j in range(8): k(f"v_cvt_pk_bf16_f32 v{OWN+2*j}, v{OWN+2*j}, v{OWN+2*j+1}")
    for j in range(8): k(f"v_and_b32 v{OWN+2*j+1}, 0xffff0000, v{OWN+2*j}"); k(f"v_lshlrev_b32 v{OWN+2*j}, 16, v{OWN+2*j}")
    if PKE:
        for r in range(0, 16, 2): k(f"v_pk_add_f32 {vr(OWN+r,2)}, {vr(OWN+r,2)}, {vr(AVr[r],2)}")
    else:
        for r in range(16): k(f"v_add_f32 v{OWN+r}, v{OWN+r}, v{AVr[r]}")
    for j in range(8): k(f"v_cvt_pk_bf16_f32 v{OP+j}, v{OWN+2*j}, v{OWN+2*j+1}")
    if OST == 0:
        for q in range(4):
            k.vmem(f"buffer_store_dwordx2 {vr(OP+2*q,2)}, v5, {sr(R_B,4)}, s77 offen offset:{16*q}{OMOD}")
    else:
        for q in range(4): k.lds(f"ds_write_b64 v{9 + q}, {vr(OP+2*q,2)} offset:4096")
        for j in range(2): k.lds(f"ds_read_b128 {vr(PR[0]+4*j,4)}, v4 offset:{4096 + 1024*j}", "o")
        k.wait_all_lg()
        for j in range(2):
            k.vmem(f"buffer_store_dwordx4 {vr(PR[0]+4*j,4)}, v5, {sr(R_B,4)}, s{77+j} offen{OMOD}")
    st()
    st.flush(S_RW, LY.WS_STAMP, S_WS)
    k("s_endpgm")

def gen_M(k, st):
    k.srd(R_WS, S_WS, LY.WS_SIZE_USED)
    g2_setup(k)
    k(f"s_cmp_lt_u32 s{S_IDX}, 4"); k("s_cbranch_scc1 L_Maux")
    k("s_barrier"); prefetch_g(k)
    k("v_bfe_u32 v22, v1, 4, 1"); k("v_lshrrev_b32 v23, 5, v1"); k("v_bfe_u32 v24, v1, 2, 2")
    k("v_lshlrev_b32 v25, 13, v22"); k("v_lshl_add_u32 v25, v23, 11, v25"); k("v_lshl_add_u32 v25, v24, 8, v25")
    k("v_lshl_add_u32 v26, v22, 2, v24"); k("v_lshl_add_u32 v25, v26, 5, v25")
    k("v_and_b32 v26, 3, v1"); k("v_lshl_add_u32 v25, v26, 3, v25")
    k(f"s_lshl_b32 s78, s{S_HALF}, 7"); k("v_xor_b32 v25, s78, v25"); k(f"v_add_u32 v25, {RB}, v25")
    for t in range(4):
        k(f"v_xor_b32 v{10+t}, {32*t}, v25"); k(f"v_add_u32 v{14+t}, {3*STG}, v{10+t}")
    k("v_and_b32 v25, 31, v1"); k("v_bfe_u32 v26, v1, 2, 2"); k("v_xor_b32 v26, v26, v23")
    k("v_lshlrev_b32 v25, 6, v25"); k("v_lshl_add_u32 v25, v26, 4, v25")
    k(f"s_lshl_b32 s78, s{S_CH}, 12"); k(f"s_add_u32 s78, s78, {RB + 16384}")
    k("v_xor_b32 v19, 32, v25"); k("v_add_u32 v18, s78, v25"); k("v_add_u32 v19, s78, v19")
    k(f"v_add_u32 v20, {3*STG}, v18"); k(f"v_add_u32 v21, {3*STG}, v19")
    for t in range(4): k(f"v_subrev_u32 v{22+t}, {RB - L_B5}, v{10+t}")
    for e in range(2): k(f"v_subrev_u32 v{26+e}, {RB - L_B5}, v{18+e}")
    k(f"s_lshl_b32 s78, s{S_MT}, 2"); k(f"s_lshl_b32 s79, s{S_CH}, 1"); k("s_add_u32 s78, s78, s79"); k("s_mul_i32 s78, s78, 112")
    k(f"s_lshl_b32 s79, s{S_FT}, 3"); k("s_add_u32 s78, s78, s79"); k(f"s_lshl_b32 s79, s{S_HALF}, 2"); k("s_add_u32 s78, s78, s79"); k("s_lshl_b32 s78, s78, 10")
    k(f"s_add_u32 s79, s78, {112*1024}")
    k(f"s_lshl_b32 s81, s{S_MT}, 1"); k(f"s_add_u32 s81, s81, s{S_CH}"); k("s_lshl_b32 s81, s81, 5")
    k(f"s_lshl_b32 s82, s{S_FT}, 1"); k("s_add_u32 s81, s81, s82"); k(f"s_add_u32 s81, s81, s{S_HALF}"); k("s_lshl_b32 s81, s81, 7")
    k(f"s_add_u32 s81, s81, {LY.WS_FH}")
    k(f"s_lshl_b32 s70, s{S_RW}, 2"); k(f"s_add_u32 s70, s70, {L_FLAG + 64}"); k("v_mov_b32 v28, s70"); k("v_mov_b32 v29, 1"); k(f"v_mov_b32 v30, {L_FLAG + 80}")
    k.wait_vm("p")
    st()
    k.label("L_kgen")
    kgen(k)
    k(f"s_cmp_ge_u32 s{S_WAVE}, 4"); k("s_cbranch_scc1 L_Haux_ret")
    ACC, AF, BF = 64, 32, 48
    def aread(kk, t, dst):
        sg = kk >> 1; e = kk & 1; b = sbuf(sg)
        reg = (10 if b < 3 else 14) + t; off = (b if b < 3 else b - 3) * STG
        if b == 5: reg = 22 + t; off = 0
        for s2 in range(2):
            k.lds(f"ds_read_b64_tr_b16 {vr(dst+2*s2,2)}, v{reg} offset:{off + e*4096 + s2*1024}", ("a", kk, t))
    def bread(kk, dst):
        sg = kk >> 1; e = kk & 1; b = sbuf(sg)
        reg = (18 if b < 3 else 20) + e; off = (b if b < 3 else b - 3) * STG
        if b == 5: reg = 26 + e; off = 0
        for tk in range(2):
            k.lds(f"ds_read_b128 {vr(dst+4*tk,4)}, v{reg} offset:{off + tk*2048}", ("b", kk))
    def mfma(t, tk, a, b, first):
        c = ACC + 16*(2*t+tk)
        k(f"v_mfma_f32_32x32x16_bf16 {vr(c,16)}, {vr(a,4)}, {vr(b,4)}, {'0' if first else vr(c,16)}")
    st()
    k.wait_all_lg(); k("s_barrier")
    st()
    TK = 28
    TB = {28: BF + 0, 29: BF + 8, 30: 192, 31: 200}
    TA = [{28+i: 208 + 4*i for i in range(4)}, {28+i: 224 + 4*i for i in range(4)}]
    bread(0, BF)
    for t in range(4): aread(0, t, AF+4*t)
    for kk in range(TK):
        if kk & 1: k("s_barrier")
        if kk == 16 and not G2F: st()
        bread(kk + 1, BF + 8*((kk+1) & 1))
        for t in range(4):
            k.wait_lg(lambda x: x == ("a", kk, t) or x == ("b", kk))
            for tk in range(2): mfma(t, tk, AF+4*t, BF+8*(kk&1)+4*tk, kk == 0)
            if kk + 1 < TK: aread(kk + 1, t, AF+4*t)
            elif t < 2: aread(28 + t, 0, TA[0][28+t])
    k("s_barrier")
    bread(29, TB[29]); aread(30, 0, TA[0][30]); bread(30, TB[30]); aread(31, 0, TA[0][31]); bread(31, TB[31])
    k.lds("ds_read_b32 v30, v30", "tg")
    if MPRIO: k(f"s_setprio {MPRIO}")
    TMP = 32
    def epi(t):
        L = []
        for tk in range(2):
            A = ACC + 16*(2*t+tk); T = TMP + 8*tk
            L += [f"v_mul_f32 v{T+r}, {LOG2E:#x}, v{A+r}" for r in range(8)]
            L += [f"v_exp_f32 v{T+r}, -v{T+r}" for r in range(8)]
            L += [f"v_mul_f32 v{A+r}, v{A+r}, v{A+8+r}" for r in range(8)]
            L += [f"v_add_f32 v{T+r}, 1.0, v{T+r}" for r in range(8)]
            L += [f"v_rcp_f32 v{T+r}, v{T+r}" for r in range(8)]
            L += ["s_nop 0"]
            L += [f"v_mul_f32 v{A+r}, v{A+r}, v{T+r}" for r in range(8)]
            L += [f"v_cvt_pk_bf16_f32 v{A+8+j}, v{A+2*j}, v{A+2*j+1}" for j in range(4)]
            L += [("st", f"buffer_store_dwordx4 {vr(A+8,4)}, v8, {sr(R_WS,4)}, s{78+tk} offen offset:{t*1024} sc1")]
        return L
    def emit(x):
        if isinstance(x, tuple): k.vmem(x[1], "hst")
        else: k(x)
    for t in range(4):
        ep = epi(t - 1) if t else []
        per = -(-len(ep) // 7)
        n = 0
        for i, kk in enumerate(range(28, 32)):
            for tk in range(2):
                k.wait_lg(lambda x: x == ("a", kk, t) or x == ("b", kk))
                mfma(t, tk, TA[t&1][kk], TB[kk]+4*tk, False)
                if tk == 0 and t < 3: aread(kk, t + 1, TA[(t+1)&1][kk])
                if n == 0 and ep: k.nop(10)
                else:
                    for x in ep[:per]: emit(x)
                    ep = ep[per:]
                n += 1
            if t == 3 and i == 0:
                k.wait_all_lg(); k.lds("ds_write_b32 v28, v29")
                st()
        for x in ep: emit(x)
    k.nop(10)
    ep3 = epi(3)
    for i_, x in enumerate(ep3):
        emit(x)
        if CDEL == 2 and i_ == len(ep3) - CDA: k.lds("ds_write_b32 v28, v29 offset:32")
    st()
    k(f"v_mov_b32 v28, {L_FLAG + 64}"); mr_wait(k, 28, 24)
    k(f"v_readfirstlane_b32 s{S_TAG}, v30")
    for j in range(6, 9): w2dma(k, j)
    k(f"s_lshl_b32 s71, s{S_RW}, 4"); k("v_mov_b32 v24, s71")
    k.wait_vm("hst"); publish(k, 81, 22)
    lds_wait1(k, 24, L_FLAG + 12, 25)
    k.label("L_G2")
    gen_G2(k, st)

def gen_Maux(k, st):
    k.srd(R_U, S_U, 2048*1024)
    k(f"s_lshl_b32 s76, s{S_XCD}, 2"); k(f"s_add_u32 s76, s76, s{S_IDX}")
    k("v_lshrrev_b32 v22, 4, v1"); k("v_bfe_u32 v23, v1, 1, 3"); k("v_xor_b32 v23, v23, v22")
    k("v_lshlrev_b32 v10, 10, v22"); k("v_lshl_add_u32 v10, v23, 5, v10"); k("v_and_b32 v23, 1, v1"); k("v_lshl_add_u32 v10, v23, 4, v10")
    k("v_xor_b32 v11, 0x80, v10")
    k(f"s_lshl_b32 s77, s{S_RW}, 8"); k("v_add_u32 v10, s77, v10"); k("v_add_u32 v11, s77, v11")
    k("s_lshl_b32 s77, s76, 16"); k(f"s_lshl_b32 s78, s{S_RW}, 14"); k(f"s_add_u32 s78, s78, {L_AUX}")
    for tq in range(16):
        k(f"s_add_u32 m0, s78, {tq*1024}"); k(f"s_add_u32 s79, s77, {tq*4096}")
        k.vmem(f"buffer_load_dwordx4 v{10 + ((tq>>1)&1)}, {sr(R_U,4)}, s79 offen lds", "dma")
    prefetch_g(k)
    k("v_lshlrev_b32 v12, 4, v22")
    k("v_bfe_u32 v23, v1, 2, 2"); k("v_lshl_add_u32 v24, v22, 3, v23"); k("v_lshlrev_b32 v13, 8, v24")
    k("v_and_b32 v24, 1, v22"); k("v_lshl_add_u32 v24, v24, 2, v23"); k("v_lshl_add_u32 v13, v24, 5, v13")
    k("v_and_b32 v24, 3, v1"); k("v_lshl_add_u32 v13, v24, 3, v13"); k("v_add_u32 v13, s78, v13")
    k("v_and_b32 v25, 15, v1")
    k("s_lshl_b32 s83, s76, 7"); k(f"s_add_u32 s83, s83, {LY.WS_UT}")
    k(f"s_lshl_b32 s79, s{S_RW}, 11"); k(f"s_add_u32 s79, s79, {L_AUX + 65536}")
    k("v_and_b32 v19, 7, v25"); k("v_xor_b32 v19, v19, v22"); k("v_lshlrev_b32 v16, 7, v25"); k("v_lshl_add_u32 v16, v19, 4, v16"); k("v_add_u32 v16, s79, v16")
    k("v_xor_b32 v20, 64, v16")
    k("v_add_u32 v17, s79, v8")
    k("v_lshrrev_b32 v18, 3, v1"); k("v_and_b32 v19, 7, v1"); k("v_xor_b32 v19, v19, v18")
    k(f"s_lshl_b32 s79, s{S_RW}, 7"); k("v_add_u32 v18, s79, v18"); k("v_lshlrev_b32 v18, 12, v18"); k("v_lshl_add_u32 v18, v19, 4, v18")
    st()
    k.wait_vm("dma")
    tag_issue(k, 26)
    st()
    for cb in range(8):
        k(f"v_xor_b32 v15, {32*cb}, v13")
        for a in range(2):
            base = 160 + (cb*2+a) * 4
            for s in range(2):
                k.lds(f"ds_read_b64_tr_b16 {vr(base+2*s,2)}, v15 offset:{a*8192 + s*1024}", ("t", cb, a))
    def ust(cb):
        for a in range(2):
            base = 160 + (cb*2+a) * 4
            k.wait_lg(("r", cb, a))
            k(f"s_add_u32 s81, s83, {cb*65536 + a*32768}")
            k.vmem(f"buffer_store_dwordx4 {vr(base,4)}, v18, {sr(R_WS,4)}, s81 offen sc1", "st")
    for cb in range(8):
        for a in range(2):
            base = 160 + (cb*2+a) * 4
            k.wait_lg(("t", cb, a))
            k.lds(f"ds_write_b128 v{20 if a else 16}, {vr(base,4)}")
        for a in range(2):
            k.lds(f"ds_read_b128 {vr(160 + (cb*2+a)*4,4)}, v17 offset:{1024*a}", ("r", cb, a))
        if cb: ust(cb - 1)
    ust(7)
    tag_check(k, 26)
    k(f"s_lshl_b32 s79, s{S_RW}, 5"); k("s_add_u32 s79, s79, s76"); k("s_lshl_b32 s79, s79, 7"); k(f"s_add_u32 s79, s79, {LY.WS_FU}")
    k.wait_all_vm()
    publish(k, 79, 26)
    for s in range(16):
        k.vmem(f"global_load_dwordx4 {vr(96+4*s,4)}, v12, {sr(S_GW,2)} offset:{64*s}", "gw")
    st()
    k("s_barrier")
    k(f"s_lshl_b32 s79, s{S_RW}, 12"); k(f"s_add_u32 s79, s79, {L_AUX}"); k("v_lshlrev_b32 v16, 8, v25"); k("v_add_u32 v16, s79, v16")
    k("v_and_b32 v23, 3, v25"); k("v_bfe_u32 v24, v25, 3, 1"); k("v_lshl_add_u32 v23, v24, 2, v23")
    k("v_lshrrev_b32 v24, 1, v22"); k("v_xor_b32 v23, v23, v24"); k("v_lshl_add_u32 v16, v23, 5, v16")
    k("v_and_b32 v24, 1, v22"); k("v_lshl_add_u32 v16, v24, 4, v16")
    for s3 in range(4):
        k(f"v_xor_b32 v17, {64*s3}, v16")
        for reg in range(4):
            k.lds(f"ds_read_b128 {vr(32+4*(4*reg+s3),4)}, v17 offset:{reg*16384}", "gx")
    for i in range(4): k(f"v_mov_b32 v{28+i}, 0x3f803f80")
    k.wait_all_lg(); k.wait_all_vm()
    for s in range(16):
        T = 160
        for j in range(4):
            x = 32+4*s+j; w = 96+4*s+j
            k(f"v_lshlrev_b32 v{T+4*j}, 16, v{x}"); k(f"v_and_b32 v{T+4*j+1}, 0xffff0000, v{x}")
            k(f"v_lshlrev_b32 v{T+4*j+2}, 16, v{w}"); k(f"v_and_b32 v{T+4*j+3}, 0xffff0000, v{w}")
        for j in range(4): k(f"v_pk_mul_f32 {vr(T+4*j,2)}, {vr(T+4*j,2)}, {vr(T+4*j+2,2)}")
        for j in range(4): k(f"v_cvt_pk_bf16_f32 v{32+4*s+j}, v{T+4*j}, v{T+4*j+1}")
        k.nop(2)
        k(f"v_mfma_f32_16x16x32_bf16 v[224:227], v[28:31], {vr(32+4*s,4)}, {'0' if s==0 else 'v[224:227]'}")
    k.nop(10)
    rbf(k, 224)
    k(f"v_mul_f32 v225, {LOG2E:#x}, v224"); k("v_exp_f32 v225, -v225"); k("s_nop 0")
    k("v_add_f32 v225, 1.0, v225"); k("v_rcp_f32 v225, v225"); k("s_nop 0")
    rbf(k, 225)
    k("s_lshl_b32 s79, s76, 8"); k(f"s_lshl_b32 s81, s{S_RW}, 6"); k("s_add_u32 s79, s79, s81"); k(f"s_add_u32 s79, s79, {LY.WS_G}")
    k("v_lshlrev_b32 v226, 2, v25")
    k.vmem(f"buffer_store_dword v225, v226, {sr(R_WS,4)}, s79 offen sc1", "st")
    k("s_lshl_b32 s78, s76, 2"); k(f"s_add_u32 s78, s78, s{S_RW}"); k("s_lshl_b32 s78, s78, 7"); k(f"s_add_u32 s78, s78, {LY.WS_FG}")
    k.wait_all_vm()
    publish(k, 78, 22)
    st()
    k("v_and_b32 v13, 3, v1"); k("v_lshlrev_b32 v13, 7, v13"); k("s_lshl_b32 s78, s76, 9"); k(f"s_add_u32 s78, s78, {LY.WS_FG}")
    poll(k, 13, 78, 12)
    for j in range(9): w2dma(k, j)
    k.wait_all_vm()
    st(); st()
    k("s_branch L_G2")

DOC = '; Single fused launch, 256 workgroups x 8 waves (generated by the author\'s own python generator).\n'
def main():
    COLD.clear(); _lbl[0] = 0
    k = Asm()
    k("s_cmp_ge_u32 s2, 256"); k("s_cbranch_scc1 L_end")
    if STAMPS: k("s_memrealtime s[96:97]")
    k("s_load_dwordx16 s[4:19], s[0:1], 0"); k("s_load_dwordx16 s[20:35], s[0:1], 64"); k("s_load_dwordx2 s[36:37], s[0:1], 128")
    k("v_and_b32 v1, 63, v0"); k("v_lshrrev_b32 v2, 6, v0")
    k("s_getpc_b64 s[90:91]"); k("s_and_b32 s90, s90, 0xffffff00")
    k("s_lshr_b32 s64, s2, 3"); k("s_lshl_b32 s64, s64, 4")
    k("v_and_b32 v4, 1, v0"); k("v_lshl_add_u32 v4, v2, 1, v4"); k("v_add_u32 v4, s64, v4"); k(f"v_min_u32 v4, {CODEL}, v4"); k("v_lshlrev_b32 v4, 7, v4")
    k.vmem("global_load_dword v253, v4, s[90:91]", "cpf")
    k(f"v_readfirstlane_b32 s{S_WAVE}, v2")
    k(f"s_and_b32 s{S_XCD}, s2, 7"); k(f"s_lshr_b32 s{S_IDX}, s2, 3")
    k(f"s_and_b32 s{S_RW}, s{S_WAVE}, 3")
    k(f"s_lshr_b32 s{S_CH}, s{S_RW}, 1"); k(f"s_and_b32 s{S_HALF}, s{S_RW}, 1")
    k(f"s_lshl_b32 s{S_CHAN}, s2, 1"); k(f"s_add_u32 s{S_CHAN}, s{S_CHAN}, s{S_CH}")
    k(f"s_max_u32 s65, s{S_IDX}, 4"); k("s_sub_u32 s65, s65, 4")
    k(f"s_mul_i32 s{S_MT}, s65, 37"); k(f"s_lshr_b32 s{S_MT}, s{S_MT}, 8")
    k(f"s_mul_i32 s64, s{S_MT}, 7"); k(f"s_sub_u32 s{S_FT}, s65, s64")
    k(f"s_lshr_b32 s64, s{S_XCD}, 1"); k("s_lshl_b32 s64, s64, 2"); k(f"s_add_u32 s{S_MT}, s{S_MT}, s64")
    k(f"s_and_b32 s64, s{S_XCD}, 1"); k("s_mul_i32 s64, s64, 7"); k(f"s_add_u32 s{S_FT}, s{S_FT}, s64")
    k(f"s_lshl_b32 s{S_TT}, s{S_XCD}, 2"); k(f"s_lshr_b32 s64, s{S_IDX}, 3"); k(f"s_add_u32 s{S_TT}, s{S_TT}, s64")
    k(f"s_and_b32 s{S_NT}, s{S_IDX}, 7")
    k(f"s_mul_i32 s{S_TABB}, s{S_RW}, {TABW}"); k(f"s_add_u32 s{S_TABB}, s{S_TABB}, {L_TAB}")
    k("s_waitcnt lgkmcnt(0)")
    param_loads(k)
    k("s_barrier")
    vm0 = copy.deepcopy(k.vm)
    k(f"s_cmp_ge_u32 s{S_WAVE}, 4"); k("s_cbranch_scc1 L_H")
    st = Stamper(k, STAMPS, 3, 0)
    if STAMPS: k("v_writelane_b32 v3, s96, 14")
    st(); gen_M(k, st)
    k.label("L_H"); k.reset_counters(); k.vm = copy.deepcopy(vm0)
    st = Stamper(k, STAMPS, 250, 1); st(); gen_H(k, st, vm0)
    k.label("L_Maux"); k.reset_counters(); k.vm = copy.deepcopy(vm0)
    st = Stamper(k, STAMPS, 3, 0); st.n = 1; gen_Maux(k, st)
    k.out.extend(COLD)
    k.label("L_end"); k("s_endpgm")
    name = "gated_mix__ssm_conv_s4__glu_gated_swiglu__prompt_kernel"
    hdr = open("gated_mix__ssm_conv_s4__glu_gated_swiglu__prompt.s.ref").read().split("; Override")[0]
    s = hdr + DOC + f"; @launch grid=(256,1,1) block=(512,1,1) lds={LDS_TOTAL}\n" + '.amdgcn_target "amdgcn-amd-amdhsa--gfx950"\n.text\n' + kernel_header(name) + k.text() + '.section .rodata,"a"\n' + kernel_desc(name, 256, 102, 256)
    open(sys.argv[1], "w").write(s)
def codesize(path):
    import subprocess, re
    subprocess.check_call(["clang", "-x", "assembler", "-target", "amdgcn-amd-amdhsa", "-mcpu=gfx950", "-c", path, "-o", "_sz.o"])
    o = subprocess.check_output(["llvm-objdump", "-h", "_sz.o"]).decode()
    return int(re.search(r"\.text\s+([0-9a-f]+)", o).group(1), 16)
main()
sz = codesize(sys.argv[1]); CODEL = (sz - 4) // 128
assert CODEL < 512
main()
print("code bytes", sz)
```

```python
import sys, struct, copy
from asmlib import *
import layout as LY
LOG2E = 0x3fb8aa3b
def opt(n, d):
    for a in sys.argv:
        if a.startswith(f"--{n}="): return int(a.split("=")[1])
    return d
STAMPS = "--stamps" in sys.argv
MPRIO = opt("mprio", 2); HP2 = opt("hp2", 3); NWR = opt("nwr", 11); AGI = opt("agi", 20); FJ = opt("fj", 9)
ROTQ = opt("rotq", 4); PRE2 = opt("pre2", 4); DPE = opt("dpe", 2); TAGE = opt("tage", 11); UFE = opt("ufe", 13); UTE = opt("ute", 15)
OMOD = {0: "", 1: " sc1", 2: " nt", 3: " sc0 sc1"}[opt("omod", 1)]; PKE = opt("pke", 1); OST = opt("ost", 1); RT = opt("rt6", 6); AGA = opt("aga", 2); WARM = opt("warm", 1); NOCPF = opt("nocpf", 0); NOPF = opt("nopf", 0); CDEL = opt("cdel", 0); CDA = opt("cda", 30); WFS = opt("wfs", 6); G2F = opt("g2f", 0); CODEL = 300
def f2h(x): return "0x%08x" % struct.unpack("<I", struct.pack("<f", float(x)))[0]

S_U, S_ARE, S_AIM, S_BRE, S_BIM, S_CRE, S_CIM, S_LDT = 4, 6, 8, 10, 12, 14, 16, 18
S_DSK, S_W1, S_W3, S_W2, S_GW, S_OUT, S_DBG, S_WS = 20, 24, 26, 28, 30, 32, 34, 36
S_WAVE, S_XCD, S_IDX, S_MT, S_FT, S_TT, S_NT, S_RW = 38, 39, 40, 41, 42, 43, 44, 45
S_TAG = 46; S_CNT = 47
R_U, R_A, R_B, R_WS = 48, 52, 56, 60
S_TABB = 80; S_CH, S_HALF, S_CHAN = 84, 85, 86
STG = 24576; RB = 40960
L_FLAG = 0; L_TAB = 1024; L_B5 = 1024
ROWB = 272; TABW = 32 * ROWB
CPY = 4160; PL = 1536
L_X = RB + 4 * STG; L_UP = RB; W2SLOTS = 9; L_W2 = RB + STG; L_AUX = RB + STG
LDS_TOTAL = RB + 5 * STG
RND2 = [0, 0, 2, 4, 4, 4, 6, 8, 8]
SPIN_MAX = 40000; LSPIN = 0x100000
def sbuf(sg): return [1, 2, 3, 4, 0, 5][sg % 6]
def bufaddr(b): return L_B5 if b == 5 else RB + b * STG
def slot_off(sl): return (sl // 3) * STG + (sl % 3) * 2048

def rbf(k, v):
    k(f"v_cvt_pk_bf16_f32 v{v}, v{v}, v{v}"); k(f"v_and_b32 v{v}, 0xffff0000, v{v}")
_lbl = [0]
def newlabel(p):
    _lbl[0] += 1; return f"L_{p}_{_lbl[0]}"
COLD = []
def cold(k, branch, fn):
    L = newlabel("cold"); B = newlabel("back")
    k(f"{branch} {L}"); k.label(B)
    c = Asm(); c.label(L); fn(c); c(f"s_branch {B}"); COLD.extend(c.out)

def spin_tail(k, L, ready_scc1, limit):
    k(f"s_cselect_b32 s{S_CNT}, {limit}, s{S_CNT}"); k(f"s_add_u32 s{S_CNT}, s{S_CNT}, 1")
    k(f"s_cmp_lt_u32 s{S_CNT}, {limit}"); k(f"s_cbranch_scc1 {L}")
def get_tag(k, vt):
    L = newlabel("tag")
    k(f"v_mov_b32 v{vt+1}, 0"); k(f"s_mov_b32 s{S_CNT}, 0")
    k.label(L)
    k(f"global_load_dword v{vt}, v{vt+1}, {sr(S_DBG,2)} sc1"); k("s_waitcnt vmcnt(0)")
    k(f"v_readfirstlane_b32 s{S_TAG}, v{vt}"); k(f"s_cmp_lg_u32 s{S_TAG}, 0")
    spin_tail(k, L, True, SPIN_MAX)
def poll(k, voff, soff, vt):
    L = newlabel("poll")
    k(f"s_mov_b32 s{S_CNT}, 0")
    k.label(L)
    k(f"buffer_load_dword v{vt}, v{voff}, {sr(R_WS,4)}, s{soff} offen sc1"); k("s_waitcnt vmcnt(0)"); k.vm.all_done()
    k(f"v_cmp_ne_u32 vcc, s{S_TAG}, v{vt}"); k("s_cmp_eq_u64 vcc, 0")
    spin_tail(k, L, True, SPIN_MAX)
def tag_issue(k, vt):
    k(f"v_mov_b32 v{vt+1}, 0"); k.vmem(f"global_load_dword v{vt}, v{vt+1}, {sr(S_DBG,2)} sc1", "tag")
def tag_check(k, vt):
    k.wait_vm("tag"); k(f"v_readfirstlane_b32 s{S_TAG}, v{vt}"); k(f"s_cmp_lg_u32 s{S_TAG}, 0")
    cold(k, "s_cbranch_scc0", lambda c: get_tag(c, vt))
def flag_issue(k, voff, soff, vt, name):
    k.vmem(f"buffer_load_dword v{vt}, v{voff}, {sr(R_WS,4)}, s{soff} offen sc1", name)
def flag_check(k, voff, soff, vt, name):
    k.wait_vm(name); k(f"v_cmp_ne_u32 vcc, s{S_TAG}, v{vt}")
    cold(k, "s_cbranch_vccnz", lambda c: poll(c, voff, soff, vt))
def publish(k, soff, vt):
    k(f"v_mov_b32 v{vt}, s{S_TAG}"); k(f"v_lshlrev_b32 v{vt+1}, 2, v1")
    k("s_mov_b32 exec_hi, 0")
    k.vmem(f"buffer_store_dword v{vt}, v{vt+1}, {sr(R_WS,4)}, s{soff} offen sc1", "flag")
    k("s_mov_b32 exec_hi, -1")
def lds_wait1(k, va, off, vt):
    L = newlabel("lw")
    k(f"s_mov_b32 s{S_CNT}, 0")
    k.label(L)
    k(f"ds_read_b32 v{vt}, v{va} offset:{off}"); k("s_waitcnt lgkmcnt(0)"); k.lg.all_done()
    k(f"v_readfirstlane_b32 s70, v{vt}"); k("s_cmp_eq_u32 s70, 1")
    spin_tail(k, L, True, LSPIN)
def mr_wait(k, va, vt):
    L = newlabel("mr")
    k(f"s_mov_b32 s{S_CNT}, 0")
    k.label(L)
    k(f"ds_read_b128 {vr(vt,4)}, v{va}"); k("s_waitcnt lgkmcnt(0)"); k.lg.all_done()
    k(f"v_and_b32 v{vt}, v{vt}, v{vt+1}"); k(f"v_and_b32 v{vt+2}, v{vt+2}, v{vt+3}"); k(f"v_and_b32 v{vt}, v{vt}, v{vt+2}"); k("s_nop 0")
    k(f"v_readfirstlane_b32 s70, v{vt}"); k("s_cmp_eq_u32 s70, 1")
    spin_tail(k, L, True, LSPIN)

def merge(a, b):
    ta = max(1, sum(x[0] for x in a)); tb = max(1, sum(x[0] for x in b)); out = []; i = j = 0; wa = wb = 0
    while i < len(a) or j < len(b):
        if j >= len(b) or (i < len(a) and wa / ta <= wb / tb): out.append(a[i]); wa += a[i][0]; i += 1
        else: out.append(b[j]); wb += b[j][0]; j += 1
    return out

PRM = 232; KD = 128
def param_loads(k):
    k(f"s_lshl_b32 s69, s{S_CHAN}, 8"); k(f"s_lshl_b32 s70, s{S_HALF}, 7"); k("s_add_u32 s69, s69, s70")
    k("v_lshlrev_b32 v240, 1, v1"); k("v_add_u32 v240, s69, v240")
    for i in range(8): k(f"v_mov_b32 v{PRM+i}, 0")
    for i, sp in enumerate([S_ARE, S_AIM, S_BRE, S_BIM, S_CRE, S_CIM]):
        k.vmem(f"global_load_short_d16_hi v{PRM+i}, v240, {sr(sp,2)}", "p")
    k(f"s_lshl_b32 s70, s{S_CHAN}, 1"); k("v_mov_b32 v241, s70")
    k.vmem(f"global_load_short_d16_hi v{PRM+6}, v241, {sr(S_LDT,2)}", "p")
    k.vmem(f"global_load_short_d16_hi v{PRM+7}, v241, {sr(S_DSK,2)}", "p")

def kgen(k):
    atoms = []
    def A(w, fn): atoms.append((w, fn))
    Are, Aim, Bre, Bim, Cre, Cim, LDT, DSK = range(PRM, PRM + 8)
    W = {0: 120, 1: 122, 2: 124, 3: 126}
    E = {i: 32 + 2*(i-1) for i in range(1, 9)}; E128 = 48; E512 = 50; V32 = 52; E256 = 54
    PKS = [56, 146]
    TP = [180 + 2*i for i in range(8)]; VQ = [196 + 2*i for i in range(8)]; WQ = [212 + 2*i for i in range(8)]
    VF, AFR, RA = 72, 88, 242
    k("v_and_b32 v243, 15, v1"); k("v_lshrrev_b32 v244, 4, v1")
    k(f"v_mul_u32_u24 v{RA}, {ROWB}, v243"); k(f"v_lshl_add_u32 v{RA}, v244, 4, v{RA}"); k(f"v_add_u32 v{RA}, s{S_TABB}, v{RA}")
    k(f"s_mov_b32 m0, s{S_TABB}")
    def cmulb(lst):
        for d, x, y in lst: assert d != x and d != y
        def f():
            for d, x, y in lst: k(f"v_pk_mul_f32 {vr(d,2)}, {vr(x,2)}, {vr(y,2)} op_sel:[0,0] op_sel_hi:[0,1]")
            for d, x, y in lst: k(f"v_pk_fma_f32 {vr(d,2)}, {vr(x,2)}, {vr(y,2)}, {vr(d,2)} op_sel:[1,1,0] op_sel_hi:[1,0,1] neg_lo:[1,0,0]")
        A(2*len(lst), f)
    k(f"s_mov_b32 s76, {LOG2E:#x}"); k("s_mov_b32 s77, 0x32a57060")
    k(f"v_mul_f32 v243, s76, v{LDT}"); k(f"v_fma_f32 v244, v{LDT}, s76, -v243"); k(f"v_fma_f32 v244, v{LDT}, s77, v244")
    k("v_exp_f32 v243, v243"); k("v_mul_f32 v244, 0x3f317218, v244"); k("v_fma_f32 v243, v243, v244, v243")
    rbf(k, 243)
    for r in (Are, Aim, Bre, Bim): k(f"v_mul_f32 v{r}, v243, v{r}")
    k(f"v_mul_f32 v{Are}, s76, v{Are}"); k(f"v_mul_f32 v{Aim}, 0.15915494, v{Aim}")
    dl = [(E[8], 8), (E128, 128), (E[4], 4), (V32, 32), (E[1], 1), (E512, 512)]
    for i, (d, e) in enumerate(dl): k(f"v_mul_f32 v{TP[i]}, {f2h(e)}, v{Are}"); k(f"v_mul_f32 v{TP[i]+1}, {f2h(e)}, v{Aim}")
    for i, (d, e) in enumerate(dl): k(f"v_exp_f32 v{TP[i]}, v{TP[i]}"); k(f"v_fract_f32 v{TP[i]+1}, v{TP[i]+1}")
    for i, (d, e) in enumerate(dl): k(f"v_cos_f32 v{d}, v{TP[i]+1}"); k(f"v_sin_f32 v{d+1}, v{TP[i]+1}")
    k("s_nop 0")
    for i, (d, e) in enumerate(dl): k(f"v_mul_f32 v{d}, v{TP[i]}, v{d}"); k(f"v_mul_f32 v{d+1}, v{TP[i]}, v{d+1}")
    cur = [0]
    def packb(lst):
        PK = PKS[cur[0] & 1]
        def f():
            for slot, v, neg in lst: k(f"v_cvt_pk_bf16_f32 v{PK+slot}, v{v}, {'-' if neg else ''}v{v+1}")
        A(len(lst), f)
    def wr(row, reg): return (2, lambda: k.lds(f"ds_write_addtid_b32 v{reg} offset:{row*ROWB}"))
    cmulb([(W[0], Cre, Bre), (VQ[2], E[8], E[8]), (E256, E128, E128), (VQ[5], E[8], V32), (E[2], E[1], E[1]), (E[5], E[4], E[1])])
    cmulb([(W[1], W[0], E128), (VQ[3], VQ[2], E[8]), (VQ[6], VQ[2], V32), (W[2], W[0], E256), (E[3], E[2], E[1]), (E[6], E[4], E[2])])
    cmulb([(W[3], W[1], E256), (VQ[7], VQ[3], V32), (VQ[0], V32, V32), (VQ[1], VQ[5], V32), (E[7], E[4], E[3])])
    A(1, lambda: k(f"v_mov_b32 v{PKS[0]}, 0x3f80"))
    packb([(1, E[8], 0), (2, VQ[2], 0), (3, VQ[3], 0), (4, V32, 0), (5, VQ[5], 0), (6, VQ[6], 0), (7, VQ[7], 0)])
    cmulb([(VQ[2], VQ[6], V32), (VQ[3], VQ[7], V32), (VQ[4], VQ[0], V32), (VQ[5], VQ[1], V32)])
    cmulb([(VQ[6], VQ[2], V32), (VQ[7], VQ[3], V32)])
    packb([(8+i, VQ[i], 0) for i in range(8)])
    pend = [wr(j, PKS[0]+j) for j in range(16)] + [(4, lambda: [k.lds(f"ds_read_b128 {vr(VF+4*s,4)}, v{RA} offset:{64*s}") for s in range(4)])]
    def prods(items):
        dp = [(s_, w, True) for slots, w, x in items if x == 0 for s_ in slots]
        pr = [(slots, w, x) for slots, w, x in items if x]
        if dp: packb(dp)
        for i in range(0, len(pr), 8):
            b = pr[i:i+8]
            for h in range(0, len(b), 4): cmulb([(TP[h+j], w, E[x]) for j, (slots, w, x) in enumerate(b[h:h+4])])
            packb([(s_, TP[j], True) for j, (slots, w, x) in enumerate(b) for s_ in slots])
    def tile_compute(tau):
        items = []
        if tau < 2:
            for g in range(4):
                xs = [(4*tau + i) if g < 2 else RND2[4*tau + i] for i in range(4)]
                for x in sorted(set(xs)): items.append(([4*g + i for i in range(4) if xs[i] == x], W[g], x))
        elif tau == 2:
            cmulb([(WQ[g], W[g], E512) for g in range(4)])
            for g in range(4):
                items.append(([4*g], W[g], 8))
                for i, x in enumerate([0, 4, 8]): items.append(([4*g + 1 + i], WQ[g], x))
        else:
            cmulb([(WQ[4+g], WQ[g], E512) for g in range(4)])
            cmulb([(WQ[g], WQ[4+g], E512) for g in range(4)])
            for b in range(8):
                w = WQ[4+b] if b < 4 else WQ[b-4]
                items.append(([2*b], w, 0)); items.append(([2*b+1], w, 8))
        prods(items)
    def tile_mfma(tau):
        def f1():
            for s in range(4): k.lds(f"ds_read_b128 {vr(AFR+4*s,4)}, v{RA} offset:{16*ROWB + 64*s}", ("af", tau, s))
        def f2():
            dd = KD + 4*tau
            for s in range(4):
                k.wait_lg(("af", tau, s))
                k(f"v_mfma_f32_16x16x32_bf16 {vr(dd,4)}, {vr(AFR+4*s,4)}, {vr(VF+4*s,4)}, {'0' if s==0 else vr(dd,4)}")
        return [(6, f1), (8, f2)]
    for tau in range(4):
        cur[0] += 1
        n0 = len(atoms); tile_compute(tau); c_ = atoms[n0:]; del atoms[n0:]
        atoms.extend(merge(c_, pend))
        pend = [wr(16+j, PKS[cur[0] & 1]+j) for j in range(16)] + tile_mfma(tau)
    atoms.extend(pend)
    for w, f in atoms: f()
    k("v_lshlrev_b32 v243, 4, v1"); k(f"v_add_u32 v243, s{S_TABB}, v243")
    k.nop(7)
    for q in range(4): k.lds(f"ds_write_b128 v243, {vr(KD+4*q,4)} offset:{1024*q}")

def w2_addr(k, v, t1, t2):
    k.srd(R_A, S_W2, 1792*1024)
    k(f"v_lshrrev_b32 v{t1}, 3, v1"); k(f"v_lshlrev_b32 v{v}, 10, v{t1}")
    k(f"v_and_b32 v{t1}, 2, v{t1}"); k(f"v_bfe_u32 v{t2}, v1, 1, 2"); k(f"v_xor_b32 v{t1}, v{t1}, v{t2}"); k(f"v_lshl_add_u32 v{v}, v{t1}, 5, v{v}")
    k(f"v_and_b32 v{t1}, 1, v1"); k(f"v_lshl_add_u32 v{v}, v{t1}, 4, v{v}")
    k(f"s_lshl_b32 s64, s{S_NT}, 7"); k(f"s_mul_i32 s65, s{S_RW}, {448*1024}"); k("s_add_u32 s64, s64, s65"); k(f"v_add_u32 v{v}, s64, v{v}")
    k(f"s_mul_i32 s66, s{S_RW}, 6144"); k(f"s_add_u32 s66, s66, {L_W2}")
def w2dma(k, i):
    so = slot_off(i % W2SLOTS)
    for q in range(2):
        k(f"s_add_u32 m0, s66, {so + q*1024}"); k(f"s_mov_b32 s67, {(16*i + 8*q)*1024}")
        k.vmem(f"buffer_load_dwordx4 v2, {sr(R_A,4)}, s67 offen lds", ("w2", i))

def gen_H(k, st, vm0):
    D = KD; DX = 104; P = 148; DSK = PRM + 7; EB = 184
    k.srd(R_WS, S_WS, LY.WS_SIZE_USED)
    def common_setup():
        k(f"s_mul_i32 s68, s{S_CH}, {2*TABW}"); k(f"s_add_u32 s68, s68, {L_TAB}")
        k(f"s_lshl_b32 s70, s{S_RW}, 4"); k(f"s_add_u32 s70, s70, {L_FLAG}"); k("v_mov_b32 v29, s70"); k("v_xor_b32 v30, 16, v29")
        for i in range(4): k(f"v_mov_b32 v{176+i}, 0")
        k.lds("ds_write_b128 v29, v[176:179]")
        k(f"v_mov_b32 v28, {L_FLAG + 64}")
        k("v_lshlrev_b32 v22, 4, v1")
        k(f"s_lshl_b32 s78, s{S_RW}, 12"); k(f"s_add_u32 s78, s78, {L_X}"); k("v_add_u32 v24, s78, v22"); k("v_xor_b32 v25, 0x1000, v24")
        k(f"s_mul_i32 s71, s{S_RW}, {4*PL}"); k(f"s_add_u32 s71, s71, {L_UP}"); k("v_add_u32 v23, s71, v22")
    def hs_set(i):
        k.wait_all_lg(); k("v_mov_b32 v31, 1"); k.lds(f"ds_write_b32 v29, v31 offset:{4*i}")
    def hs_wait(i): lds_wait1(k, 30, 4*i, 31)
    def dsum():
        k("v_add_u32 v16, s68, v22")
        for q in range(4): k.lds(f"ds_read_b128 {vr(D+4*q,4)}, v16 offset:{1024*q}")
        for q in range(4): k.lds(f"ds_read_b128 {vr(DX+4*q,4)}, v16 offset:{TABW + 1024*q}")
        k.wait_all_lg()
        for r in range(16): k(f"v_add_f32 v{D+r}, v{D+r}, v{DX+r}")
    def eprep():
        k("v_and_b32 v16, 15, v1"); k("v_lshrrev_b32 v17, 4, v1")
        k("v_and_b32 v18, 1, v16"); k("v_cmp_eq_u32 vcc, 0, v18"); k("s_nop 1")
        k(f"v_cndmask_b32 v{D+16}, v{D+13}, v{D+12}, vcc"); k(f"v_cndmask_b32 v{D+17}, v{D+15}, v{D+14}, vcc")
        k(f"s_cmp_eq_u32 s{S_HALF}, 0"); k("s_cselect_b64 vcc, -1, 0")
        A0 = [D+i for i in range(9)]; A1 = [D+9]*3 + [D+10]*3 + [D+11]*3
        B0 = [D+12]*4 + [D+16] + [D+13]*4; B1 = [D+14]*4 + [D+17] + [D+15]*4
        for i in range(9): k(f"v_cndmask_b32 v{EB+i}, v{B0[i]}, v{A0[i]}, vcc")
        for i in range(9): k(f"v_cndmask_b32 v{EB+9+i}, v{B1[i]}, v{A1[i]}, vcc")
        k("v_lshlrev_b32 v19, 4, v16"); k(f"v_sub_u32 v19, {4080 - 16}, v19"); k("v_add_u32 v19, s68, v19")
        k(f"s_add_u32 s70, s{S_HALF}, 8"); k("v_lshlrev_b32 v20, s70, v17"); k("v_sub_u32 v20, v19, v20")
        k(f"s_lshl_b32 s70, s{S_HALF}, 11"); k("v_subrev_u32 v20, s70, v20")
        k(f"s_cmp_eq_u32 s{S_HALF}, 0"); k("s_cselect_b32 s70, 4, 1"); k("s_lshl_b32 s70, s70, 8"); k("v_subrev_u32 v21, s70, v20")
        k(f"v_mul_u32_u24 v26, {CPY}, v17"); k("v_lshl_add_u32 v26, v16, 2, v26"); k("v_add_u32 v26, s68, v26")
    def write_block(e, addr, P):
        for j, (lo, hi) in enumerate([(7,6),(5,4),(3,2),(1,0)]): k(f"v_cvt_pk_bf16_f32 v{P+j}, v{e+lo}, v{e+hi}")
        for j, (lo, hi) in enumerate([(8,7),(6,5),(4,3),(2,1)]): k(f"v_cvt_pk_bf16_f32 v{P+4+j}, v{e+lo}, v{e+hi}")
        k(f"v_mov_b32 v{P+8}, v{P+1}"); k(f"v_mov_b32 v{P+9}, v{P+2}"); k(f"v_mov_b32 v{P+10}, v{P+5}"); k(f"v_mov_b32 v{P+11}, v{P+6}")
        return [f"ds_write_b128 v{addr}, {vr(P,4)} offset:16",
                f"ds_write_b32 v{addr}, v{P} offset:{2*CPY + 12}", f"ds_write_b32 v{addr}, v{P+3} offset:{2*CPY + 24}",
                f"ds_write_b64 v{addr}, {vr(P+8,2)} offset:{2*CPY + 16}",
                f"ds_write_b32 v{addr}, v{P+4} offset:{CPY + 12}", f"ds_write_b32 v{addr}, v{P+7} offset:{CPY + 24}",
                f"ds_write_b64 v{addr}, {vr(P+4,2)} offset:{3*CPY + 8}", f"ds_write_b64 v{addr}, {vr(P+6,2)} offset:{3*CPY + 16}",
                f"ds_write_b64 v{addr}, {vr(P+10,2)} offset:{CPY + 16}"]
    WL = []
    def epack():
        WL.extend(write_block(EB, 20, 204)); WL.extend(write_block(EB + 9, 21, 216))
        k(f"v_cvt_pk_bf16_f32 v27, v{D}, v{D}")
    def ewrite():
        k(f"s_cmp_eq_u32 s{S_HALF}, 0"); k("s_cselect_b64 exec, -1, 0")
        k.lds(f"ds_write_b32 v26, v176 offset:{2*2044}")
        k("s_mov_b64 exec, -1")
        for w in WL: k.lds(w)
        k("v_mov_b32 v31, s68"); k("s_cselect_b64 exec, 1, 0")
        k.lds(f"ds_write_b16 v31, v27 offset:{CPY + 2*2046}"); k.lds(f"ds_write_b16 v31, v27 offset:{3*CPY + 2*2044}")
        k("s_mov_b64 exec, -1")
    def u_flag():
        tag_check(k, 244)
        k(f"v_mov_b32 v245, {L_FLAG + 80}"); k(f"v_mov_b32 v244, s{S_TAG}"); k.lds("ds_write_b32 v245, v244")
        k("v_and_b32 v246, 31, v1"); k("v_lshlrev_b32 v246, 7, v246")
        k(f"s_lshr_b32 s79, s{S_CHAN}, 7"); k("s_lshl_b32 s79, s79, 12"); k(f"s_add_u32 s79, s79, {LY.WS_FU}")
        k(f"s_lshl_b32 s90, s{S_CHAN}, 12"); k(f"s_add_u32 s90, s90, {LY.WS_UT}")
        flag_issue(k, 246, 79, 247, "fu")
    def uload():
        flag_check(k, 246, 79, 247, "fu")
        for p in range(4): k.vmem(f"buffer_load_dwordx4 {vr(160+4*p,4)}, v22, {sr(R_WS,4)}, s90 offen offset:{1024*p} sc1", "ut")
    def caddr():
        k("v_and_b32 v16, 31, v1"); k("v_lshrrev_b32 v17, 5, v1")
        k(f"v_mul_u32_u24 v249, {PL}, v17"); k("v_lshl_add_u32 v249, v16, 4, v249"); k("v_add_u32 v249, s71, v249")
        k("v_sub_u32 v18, 3, v16"); k("v_and_b32 v18, 3, v18"); k(f"v_mul_u32_u24 v18, {CPY - 2}, v18")
        k("v_sub_u32 v19, 31, v16"); k("v_lshl_add_u32 v19, v17, 3, v19"); k("v_lshl_add_u32 v18, v19, 1, v18")
        k(f"s_lshl_b32 s70, s{S_HALF}, 10"); k("s_sub_u32 s70, s68, s70"); k("v_add_u32 v18, s70, v18")
        k(f"s_lshl_b32 s70, s{S_HALF}, 8"); k("s_sub_u32 s70, 256, s70"); k("v_add_u32 v19, s70, v249")
        k("v_and_b32 v248, 3, v1"); k(f"v_mul_u32_u24 v248, {PL}, v248"); k("v_lshrrev_b32 v5, 2, v1"); k("v_lshl_add_u32 v248, v5, 4, v248"); k("v_add_u32 v248, s71, v248")
    def ustage():
        k.lds("ds_write_b128 v249, v[176:179]"); k.lds(f"ds_write_b128 v249, v[176:179] offset:{2*PL}")
        k.wait_vm("ut")
        for p in range(4): k.lds(f"ds_write_b128 v248, {vr(160+4*p,4)} offset:{p*256 + 512}")

    k(f"s_cmp_lt_u32 s{S_IDX}, 4"); k("s_cbranch_scc1 L_Haux")
    k.srd(R_U, S_U, 2048*1024); k.srd(R_A, S_W1, 512*3584); k.srd(R_B, S_W3, 512*3584)
    k("v_lshrrev_b32 v16, 4, v1"); k("v_bfe_u32 v17, v1, 1, 3"); k("v_xor_b32 v17, v17, v16")
    k("v_mul_u32_u24 v2, 3584, v16"); k("v_lshl_add_u32 v2, v17, 5, v2")
    k("v_and_b32 v17, 1, v1"); k("v_lshl_add_u32 v2, v17, 4, v2")
    k(f"s_lshl_b32 s70, s{S_FT}, 8"); k(f"s_mul_i32 s71, s{S_RW}, {8*3584}"); k("s_add_u32 s70, s70, s71")
    k("v_xor_b32 v3, 0x80, v2")
    k("v_add_u32 v2, s70, v2"); k("v_add_u32 v3, s70, v3")
    k("v_lshrrev_b32 v4, 2, v1"); k("v_lshlrev_b32 v4, 10, v4")
    k("v_and_b32 v17, 3, v1"); k("v_xor_b32 v17, v17, v16"); k("v_lshl_add_u32 v4, v17, 4, v4")
    k(f"s_lshl_b32 s70, s{S_MT}, 17"); k(f"s_lshl_b32 s71, s{S_RW}, 15"); k("s_add_u32 s70, s70, s71")
    k("v_add_u32 v4, s70, v4")
    k(f"s_lshl_b32 s72, s{S_RW}, 11")
    k(f"s_lshr_b32 s87, s{S_XCD}, 1"); k(f"s_mul_i32 s87, s87, {ROTQ}")
    def dma(sg):
        buf = bufaddr(sbuf(sg))
        k(f"s_add_u32 s88, s87, {sg}"); k("s_and_b32 s88, s88, 15")
        k(f"s_mul_i32 s89, s88, {32*3584}"); k("s_lshl_b32 s88, s88, 6")
        def one(lo, sb, so, v, srd):
            k(f"s_add_u32 m0, s72, {lo}"); k(f"s_add_u32 s73, s{sb}, {so}")
            k.vmem(f"buffer_load_dwordx4 v{v}, {sr(srd,4)}, s73 offen lds", ("w", sg))
        for m in range(2):
            for q in range(2): one(buf + m*8192 + q*1024, 89, q*4*3584, 2+m, R_A+4*m)
        for q in range(2): one(buf + 16384 + q*1024, 88, q*16*1024, 4, R_U)
    dma(0)
    k("s_barrier")
    common_setup(); k.lds("ds_write_b128 v28, v[176:179]"); k.lds("ds_write_b128 v28, v[176:179] offset:32")
    st()
    for sg in range(1, PRE2): dma(sg)
    st()
    nxt = PRE2
    for s in range(16):
        k.wait_vm(("w", s))
        if k.lg.outstanding() and s in (0, 1, 15): k.wait_all_lg()
        k("s_barrier")
        if s in (0, 8): st()
        cnt = 0
        while nxt < 16 and nxt <= max(4, s + 4) and cnt < DPE:
            dma(nxt); nxt += 1; cnt += 1
        if s == 0: dsum()
        if s == TAGE: tag_issue(k, 244)
        if s == 12: eprep(); epack(); w2_addr(k, 2, 16, 17)
        if s == UFE: u_flag(); caddr()
        if s == UTE: uload()
        if s in (14, 15):
            for j in range(3): w2dma(k, 3*(s-14) + j)
    assert nxt == 16
    k.label("L_Hjoin")
    ewrite(); hs_set(1); ustage(); hs_wait(1)
    if CDEL:
        k.wait_all_vm(); k("v_mov_b32 v31, 1"); k.lds("ds_write_b32 v29, v31 offset:12")
    if CDEL == 1: mr_wait(k, 28, 180)
    if CDEL == 2:
        k(f"s_lshl_b32 s73, s{S_RW}, 2"); k("v_mov_b32 v180, s73"); lds_wait1(k, 180, L_FLAG + 96, 181)
    st()
    AC0, AC1, FR = 32, 48, 64
    steps = [(dl, kh) for dl in range(16) for kh in range(2)]
    def rd(i):
        dl, kh = steps[i]; b = FR + (i % 3) * 16
        o1 = 2*(2016 - 32*dl + 16*kh); o2 = o1 - 2048
        k.lds(f"ds_read_b64 {vr(b,2)}, v18 offset:{o1}", i); k.lds(f"ds_read_b64 {vr(b+2,2)}, v18 offset:{o1+8}", i)
        k.lds(f"ds_read_b128 {vr(b+8,4)}, v19 offset:{2*kh*PL + (16-dl)*16}", i)
        k.lds(f"ds_read_b128 {vr(b+12,4)}, v19 offset:{2*kh*PL + (48-dl)*16}", i)
        k.lds(f"ds_read_b64 {vr(b+4,2)}, v18 offset:{o2}", i); k.lds(f"ds_read_b64 {vr(b+6,2)}, v18 offset:{o2+8}", i)
    NCS = opt('ncs', 32)
    rd(0); rd(1)
    for i in range(NCS):
        b = FR + (i % 3) * 16
        k.wait_lg(i)
        if i == WFS and not CDEL:
            k.wait_all_vm(); k("v_mov_b32 v31, 1"); k.lds("ds_write_b32 v29, v31 offset:12")
        if i + 2 < NCS: rd(i + 2)
        k(f"v_mfma_f32_32x32x16_bf16 {vr(AC0,16)}, {vr(b,4)}, {vr(b+8,4)}, {'0' if i==0 else vr(AC0,16)}")
        k(f"v_mfma_f32_32x32x16_bf16 {vr(AC1,16)}, {vr(b,4)}, {vr(b+12,4)}, {'0' if i==0 else vr(AC1,16)}")
        k(f"v_mfma_f32_32x32x16_bf16 {vr(AC1,16)}, {vr(b+4,4)}, {vr(b+8,4)}, {vr(AC1,16)}")
    if HP2: k(f"s_setprio {HP2}")
    k("v_lshlrev_b32 v26, 4, v16"); k("v_lshl_add_u32 v26, v17, 3, v26")
    k(f"s_lshl_b32 s70, s{S_HALF}, 9"); k("s_add_u32 s70, s70, s71"); k("v_add_u32 v26, s70, v26")
    for q in range(4): k.lds(f"ds_read_b64 {vr(FR+2*q,2)}, v26 offset:{q*PL + 512}", "uu")
    st()
    mr_wait(k, 28, 180)
    k(f"s_cmp_eq_u32 s{S_HALF}, 1"); k("s_cselect_b64 exec, -1, 0")
    for i in range(16): k(f"v_swap_b32 v{AC0+i}, v{AC1+i}")
    k("s_mov_b64 exec, -1")
    for q in range(4): k.lds(f"ds_write_b128 v24, {vr(AC1+4*q,4)} offset:{1024*q}")
    hs_set(2)
    for j in range(8):
        k(f"v_lshlrev_b32 v{80+2*j}, 16, v{FR+j}"); k(f"v_and_b32 v{81+2*j}, 0xffff0000, v{FR+j}")
    for j in range(16): k(f"v_mul_f32 v{80+j}, v{DSK}, v{80+j}")
    for j in range(8): k(f"v_cvt_pk_bf16_f32 v{FR+j}, v{80+2*j}, v{81+2*j}")
    for j in range(8):
        k(f"v_lshlrev_b32 v{80+2*j}, 16, v{FR+j}"); k(f"v_and_b32 v{81+2*j}, 0xffff0000, v{FR+j}")
    k("v_lshlrev_b32 v26, 6, v16"); k("v_lshl_add_u32 v26, v17, 3, v26"); k("v_add_u32 v26, s71, v26")
    k(f"s_lshl_b32 s74, s{S_CHAN}, 12"); k(f"s_lshl_b32 s73, s{S_HALF}, 11"); k("s_add_u32 s74, s74, s73"); k(f"s_add_u32 s74, s74, {LY.WS_AT}")
    k(f"s_lshr_b32 s72, s{S_CHAN}, 6"); k("s_lshl_b32 s72, s72, 7"); k(f"s_lshl_b32 s73, s{S_HALF}, 6"); k("s_add_u32 s72, s72, s73")
    k(f"s_and_b32 s73, s{S_CHAN}, 63"); k("s_add_u32 s72, s72, s73"); k("s_lshl_b32 s72, s72, 7"); k(f"s_add_u32 s72, s72, {LY.WS_FA}")
    hs_wait(2)
    st()
    for q in range(4): k.lds(f"ds_read_b128 {vr(AC1+4*q,4)}, v25 offset:{1024*q}", "x")
    k.wait_all_lg()
    for r in range(16): k(f"v_add_f32 v{AC0+r}, v{AC0+r}, v{AC1+r}")
    for j in range(8): k(f"v_cvt_pk_bf16_f32 v{AC1+j}, v{AC0+2*j}, v{AC0+2*j+1}")
    for j in range(8):
        k(f"v_lshlrev_b32 v{AC0+2*j}, 16, v{AC1+j}"); k(f"v_and_b32 v{AC0+2*j+1}, 0xffff0000, v{AC1+j}")
    for r in range(16): k(f"v_add_f32 v{AC0+r}, v{AC0+r}, v{80+r}")
    for j in range(8): k(f"v_cvt_pk_bf16_f32 v{AC1+j}, v{AC0+2*j}, v{AC0+2*j+1}")
    for q in range(4): k.lds(f"ds_write_b64 v26, {vr(AC1+2*q,2)} offset:{16*q}")
    for j in range(2): k.lds(f"ds_read_b128 {vr(FR+4*j,4)}, v23 offset:{1024*j}")
    k.wait_all_lg()
    for j in range(2): k.vmem(f"buffer_store_dwordx4 {vr(FR+4*j,4)}, v22, {sr(R_WS,4)}, s74 offen offset:{1024*j} sc1")
    st()
    k.wait_all_vm()
    publish(k, 72, 16)
    st()
    st.flush(S_RW, LY.WS_STAMP, S_WS)
    k("s_endpgm")
    k.label("L_Haux"); k.reset_counters(); k.vm = copy.deepcopy(vm0); WL.clear()
    Lt = newlabel("notag")
    k("s_cmp_lg_u32 s2, 0"); k(f"s_cbranch_scc1 {Lt}"); k(f"s_cmp_lg_u32 s{S_RW}, 3"); k(f"s_cbranch_scc1 {Lt}")
    k("s_memrealtime s[74:75]"); k("s_waitcnt lgkmcnt(0)"); k("s_or_b32 s74, s74, 1")
    k("v_mov_b32 v16, s74"); k("v_mov_b32 v17, 0"); k("s_mov_b64 exec, 1")
    k(f"global_store_dword v17, v16, {sr(S_DBG,2)} sc1"); k("s_mov_b64 exec, -1")
    k.label(Lt)
    common_setup()
    for i in range(4): k(f"v_mov_b32 v{8+i}, 1")
    k.lds("ds_write_b128 v28, v[8:11] offset:32")
    k.lds("ds_write_b128 v28, v[8:11]")
    k("s_waitcnt vmcnt(0) lgkmcnt(0)"); k.vm.all_done(); k.lg.all_done()
    k("s_branch L_kgen"); k.label("L_Haux_ret")
    tag_issue(k, 244)
    k("s_waitcnt lgkmcnt(0)"); k("s_barrier")
    k(f"s_lshl_b32 s70, s{S_XCD}, 2"); k(f"s_add_u32 s70, s70, s{S_IDX}"); k("s_lshl_b32 s70, s70, 2"); k(f"s_add_u32 s70, s70, s{S_RW}"); k("s_mul_i32 s70, s70, 112")
    k("v_min_u32 v5, 55, v1"); k("v_add_u32 v5, s70, v5"); k("v_lshlrev_b32 v5, 7, v5")
    k.vmem(f"global_load_dword v252, v5, {sr(S_W2,2)}", "pf"); k(f"v_add_u32 v5, {56*128}, v5")
    k.vmem(f"global_load_dword v252, v5, {sr(S_W2,2)}", "pf")
    dsum(); hs_set(0)
    u_flag(); eprep(); epack(); caddr(); uload(); hs_wait(0)
    k.wait_all_vm()
    k("s_branch L_Hjoin")

def prefetch_g(k):
    k(f"s_cmp_eq_u32 s{S_RW}, 0"); k(f"s_cselect_b32 s92, s{S_W1}, s{S_W3}"); k(f"s_cselect_b32 s93, s{S_W1+1}, s{S_W3+1}")
    k(f"s_cmp_ge_u32 s{S_RW}, 2"); k(f"s_cselect_b32 s92, s{S_U}, s92"); k(f"s_cselect_b32 s93, s{S_U+1}, s93"); k("s_cselect_b64 vcc, -1, 0")
    k(f"s_lshr_b32 s94, s{S_XCD}, 1"); k("s_lshl_b32 s94, s94, 5"); k(f"s_add_u32 s94, s94, s{S_IDX}"); k("s_lshl_b32 s94, s94, 2")
    k("v_lshrrev_b32 v9, 4, v1"); k("v_add_u32 v9, s94, v9"); k("v_mul_u32_u24 v9, 3584, v9")
    k("v_and_b32 v10, 15, v1"); k("v_min_u32 v10, 13, v10"); k("v_lshl_add_u32 v9, v10, 7, v9")
    k(f"s_and_b32 s94, s{S_XCD}, 1"); k("s_mul_i32 s94, s94, 1792"); k("v_add_u32 v9, s94, v9")
    k(f"s_lshl_b32 s94, s{S_XCD}, 5"); k(f"s_add_u32 s94, s94, s{S_IDX}"); k("s_lshl_b32 s94, s94, 13")
    k(f"s_and_b32 s95, s{S_RW}, 1"); k("s_lshl_b32 s95, s95, 12"); k("s_add_u32 s94, s94, s95")
    k("v_and_b32 v10, 31, v1"); k("v_lshlrev_b32 v10, 7, v10"); k("v_add_u32 v10, s94, v10")
    k("v_cndmask_b32 v9, v9, v10, vcc")
    if not NOPF: k.vmem("global_load_dword v252, v9, s[92:93]", "pf")

def g2_setup(k):
    w2_addr(k, 2, 4, 5); k.srd(R_B, S_OUT, 2048*1024)
    k("v_bfe_u32 v4, v1, 2, 2"); k("v_lshrrev_b32 v5, 5, v1"); k("v_lshl_add_u32 v5, v5, 2, v4"); k("v_lshlrev_b32 v6, 7, v5")
    k("v_and_b32 v4, 2, v4"); k("v_bfe_u32 v5, v1, 4, 1"); k("v_xor_b32 v4, v4, v5"); k("v_lshl_add_u32 v6, v4, 5, v6")
    k("v_and_b32 v4, 3, v1"); k("v_lshl_add_u32 v6, v4, 3, v6")
    k(f"s_lshl_b32 s64, s{S_CH}, 6"); k("v_xor_b32 v6, s64, v6")
    k("v_xor_b32 v7, 64, v6"); k("v_add_u32 v6, s66, v6"); k("v_add_u32 v7, s66, v7")
    k("v_lshlrev_b32 v8, 4, v1")

def gen_G2(k, st):
    ACC = 24
    pool = list(range(88, 256, 8))
    wreg = {}; hreg = {}
    nd = [W2SLOTS]; nr = [0]
    def wread():
        i = nr[0]; b = pool.pop(0); wreg[i] = b
        k.wait_vm(("w2", i))
        for dt in range(2):
            for s2 in range(2):
                k.lds(f"ds_read_b64_tr_b16 {vr(b+4*dt+2*s2,2)}, v{6+dt} offset:{slot_off(i % W2SLOTS) + s2*1024}", ("wf", i))
        nr[0] += 1
    def more_dma():
        while nd[0] < 28 and nd[0] - W2SLOTS < nr[0] - 1:
            k.wait_lg(("wf", nd[0] - W2SLOTS)); w2dma(k, nd[0]); nd[0] += 1
    for j in range(6): wread()
    k("v_min_u32 v9, 6, v1"); k("v_lshlrev_b32 v9, 7, v9")
    k(f"s_lshl_b32 s82, s{S_TT}, 5"); k(f"s_mul_i32 s69, s{S_RW}, 7"); k("s_add_u32 s82, s82, s69"); k("s_lshl_b32 s82, s82, 7"); k(f"s_add_u32 s82, s82, {LY.WS_FH}")
    k(f"s_mul_i32 s68, s{S_TT}, 224"); k("s_lshl_b32 s69, s69, 2"); k("s_add_u32 s68, s68, s69"); k("s_lshl_b32 s68, s68, 10")
    k(f"s_mul_i32 s69, s{S_HALF}, {112*1024}"); k(f"s_sub_u32 s70, {112*1024}, s69"); k("s_add_u32 s69, s68, s69"); k("s_add_u32 s68, s68, s70")
    st()
    more_dma()
    for j in range(6, NWR):
        wread(); more_dma()
        if j == FJ: k.vmem(f"buffer_load_dword v10, v9, {sr(R_WS,4)}, s82 offen sc1", "fh")
    st()
    k.wait_vm("fh"); k(f"v_cmp_eq_u32 vcc, s{S_TAG}, v10"); k("s_nop 0"); k("s_mov_b32 s83, vcc_lo")
    def need_group(gi):
        def slow(c):
            L = newlabel("gp")
            c(f"s_mov_b32 s{S_CNT}, 0"); c.label(L)
            c(f"buffer_load_dword v10, v9, {sr(R_WS,4)}, s82 offen sc1"); c("s_waitcnt vmcnt(0)")
            c(f"v_cmp_eq_u32 vcc, s{S_TAG}, v10"); c("s_nop 0"); c("s_mov_b32 s83, vcc_lo"); c(f"s_bitcmp1_b32 s83, {gi}")
            spin_tail(c, L, True, SPIN_MAX)
        k(f"s_bitcmp1_b32 s83, {gi}"); cold(k, "s_cbranch_scc0", slow)
    nh = [0]
    def hload():
        i = nh[0]; b = pool.pop(0); hreg[i] = b
        if i % 4 == 0:
            need_group(i // 4)
            if i == 0: st()
            else: k("s_add_u32 s68, s68, 4096"); k("s_add_u32 s69, s69, 4096")
        for tk in range(2):
            k.vmem(f"buffer_load_dwordx4 {vr(b+4*tk,4)}, v8, {sr(R_WS,4)}, s{69-tk} offen offset:{(i%4)*1024} sc1", ("h", i))
        nh[0] += 1
    while pool: hload()
    k("v_and_b32 v20, 31, v1"); k("v_lshrrev_b32 v11, 5, v1")
    k(f"s_lshl_b32 s72, s{S_NT}, 7"); k(f"s_lshr_b32 s73, s{S_TT}, 4"); k("s_lshl_b32 s73, s73, 6"); k("s_add_u32 s72, s72, s73")
    k(f"s_lshl_b32 s73, s{S_CH}, 5"); k("s_add_u32 s72, s72, s73"); k("s_lshl_b32 s72, s72, 7"); k(f"s_add_u32 s72, s72, {LY.WS_FA - LY.WS_FH}")
    k("v_lshlrev_b32 v12, 7, v20"); k("v_add_u32 v12, s72, v12")
    k(f"s_lshl_b32 s72, s{S_TT}, 9"); k(f"s_add_u32 s72, s72, {LY.WS_FG - LY.WS_FH}")
    k("v_and_b32 v13, 3, v1"); k("v_lshlrev_b32 v13, 7, v13"); k("v_add_u32 v13, s72, v13")
    k("v_cmp_gt_u32 vcc, 32, v1"); k("s_nop 1"); k("v_cndmask_b32 v12, v13, v12, vcc")
    k(f"s_mov_b32 s76, {LY.WS_FH}")
    k(f"s_lshl_b32 s72, s{S_TT}, 6"); k(f"s_lshl_b32 s73, s{S_HALF}, 5"); k("s_add_u32 s72, s72, s73")
    k(f"s_lshl_b32 s74, s{S_NT}, 6"); k(f"s_lshl_b32 s73, s{S_CH}, 5"); k("s_add_u32 s74, s74, s73")
    k("v_add_u32 v21, s72, v20")
    k("v_lshlrev_b32 v15, 2, v21"); k("v_lshlrev_b32 v16, 1, v21"); k("v_lshl_add_u32 v16, v11, 14, v16")
    k("s_lshl_b32 s75, s74, 12"); k(f"s_add_u32 s75, s75, {LY.WS_AT}")
    k("v_add_u32 v4, s66, v8")
    for a in range(1, 4):
        k(f"s_xor_b32 s72, s{S_RW}, {a}"); k("s_mul_i32 s72, s72, 6144"); k(f"s_add_u32 s72, s72, {L_W2 + (a-1)*STG}"); k(f"v_add_u32 v{16+a}, s72, v8")
    k("v_lshlrev_b32 v5, 10, v21"); k("v_lshl_add_u32 v5, v11, 3, v5"); k("s_lshl_b32 s77, s74, 1")
    AV = [None]
    def ag_load():
        flag_check(k, 12, 76, 13, "fa")
        b0 = pool.pop(0); b1 = pool.pop(0); AV[0] = list(range(b0, b0+8)) + list(range(b1, b1+8))
        k(f"s_mov_b32 s73, {LY.WS_G}")
        k.vmem(f"buffer_load_dword v14, v15, {sr(R_WS,4)}, s73 offen sc1", "g")
        for r in range(16): k(f"v_mov_b32 v{AV[0][r]}, 0")
        for r in range(16):
            q, i = r >> 2, r & 3
            k(f"s_add_u32 s73, s75, {(8*q+i)*4096}")
            k.vmem(f"buffer_load_short_d16_hi v{AV[0][r]}, v16, {sr(R_WS,4)}, s73 offen sc1", "a")
    def mf(i, a):
        c = ACC + 16*a
        k(f"v_mfma_f32_32x32x16_bf16 {vr(c,16)}, {vr(wreg[i]+4*(a>>1),4)}, {vr(hreg[i]+4*(a&1),4)}, {'0' if i==0 else vr(c,16)}")
    NK = 28 - RT
    for i in range(NK):
        k.wait_both(("h", i), ("wf", i))
        if i in (1, 9, 18) and G2F: st()
        for a in ((3, 2, 1, 0) if i == 27 else (0, 1, 2, 3)): mf(i, a)
        pool.append(wreg[i]); pool.append(hreg[i])
        if nh[0] < 28: hload()
        if nr[0] < 28: wread(); more_dma()
        elif nh[0] < 28: hload()
        if i == AGI: flag_issue(k, 12, 76, 13, "fa")
        if i == min(26, AGI + 6): ag_load()
    if RT:
        assert nh[0] == 28 and nr[0] == 28
        k.wait_all_lg()
        pw = []
        for a in (3, 2, 1, 0):
            for n, i in enumerate(range(NK, 28)):
                k.wait_vm(("h", i)); mf(i, a)
                if n == 1 and pw: k.nop(10)
                if n >= 1 and pw: k.lds(pw.pop(0))
            for w in pw: k.lds(w)
            pw = [f"ds_write_b128 v4, {vr(ACC+16*a+4*q,4)} offset:{(a-1)*STG + 1024*q}" for q in range(4)] if a else []
            if a == AGA: ag_load()
        for i in range(NK, 28): pool.append(wreg[i]); pool.append(hreg[i])
    st()
    AVr = AV[0]
    regs = [r for b in sorted(pool) for r in range(b, b+8)]
    def take(n):
        for s0 in range(0, len(regs) - n + 1):
            if regs[s0] % 4 == 0 and regs[s0+n-1] == regs[s0] + n - 1:
                out = regs[s0]; del regs[s0:s0+n]; return out
        raise Exception("no regs")
    PR = [take(16) for _ in range(3)]; OP = take(8); OWN = ACC
    if not RT: k.nop(9)
    for a in ((3, 2, 1) if not RT else ()):
        for q in range(4): k.lds(f"ds_write_b128 v4, {vr(ACC+16*a+4*q,4)} offset:{(a-1)*STG + 1024*q}")
    k.wait_all_vm()
    k("v_sub_f32 v15, 1.0, v14"); rbf(k, 15)
    for r in range(16): k(f"v_mul_f32 v{AVr[r]}, v14, v{AVr[r]}")
    for j in range(8): k(f"v_cvt_pk_bf16_f32 v{AVr[2*j]}, v{AVr[2*j]}, v{AVr[2*j+1]}")
    for j in range(8): k(f"v_and_b32 v{AVr[2*j+1]}, 0xffff0000, v{AVr[2*j]}"); k(f"v_lshlrev_b32 v{AVr[2*j]}, 16, v{AVr[2*j]}")
    if OST:
        k("v_bfe_u32 v13, v20, 1, 2"); k("v_lshlrev_b32 v9, 6, v20"); k("v_lshl_add_u32 v9, v13, 4, v9"); k("v_lshl_add_u32 v9, v11, 3, v9"); k("v_add_u32 v9, s66, v9")
        for q in range(1, 4): k(f"v_xor_b32 v{9+q}, {16*q}, v9")
        k("v_lshrrev_b32 v5, 2, v1"); k("v_bfe_u32 v13, v1, 3, 2"); k("v_and_b32 v16, 3, v1"); k("v_xor_b32 v13, v13, v16")
        k(f"s_lshl_b32 s72, s{S_TT}, 6"); k(f"s_lshl_b32 s73, s{S_HALF}, 5"); k("s_add_u32 s72, s72, s73")
        k("v_add_u32 v5, s72, v5"); k("v_lshlrev_b32 v5, 10, v5"); k("v_lshl_add_u32 v5, v13, 4, v5"); k("s_add_u32 s78, s77, 16384")
    k.wait_all_lg(); k("s_barrier")
    st()
    for src in range(3):
        for q in range(4): k.lds(f"ds_read_b128 {vr(PR[src]+4*q,4)}, v{17+src} offset:{1024*q}", src)
    for src in range(3):
        k.wait_lg(src)
        if PKE:
            for r in range(0, 16, 2): k(f"v_pk_add_f32 {vr(OWN+r,2)}, {vr(OWN+r,2)}, {vr(PR[src]+r,2)}")
        else:
            for r in range(16): k(f"v_add_f32 v{OWN+r}, v{OWN+r}, v{PR[src]+r}")
    for j in range(8): k(f"v_cvt_pk_bf16_f32 v{OWN+2*j}, v{OWN+2*j}, v{OWN+2*j+1}")
    for j in range(8): k(f"v_and_b32 v{OWN+2*j+1}, 0xffff0000, v{OWN+2*j}"); k(f"v_lshlrev_b32 v{OWN+2*j}, 16, v{OWN+2*j}")
    if PKE:
        for r in range(0, 16, 2): k(f"v_pk_mul_f32 {vr(OWN+r,2)}, {vr(OWN+r,2)}, v[14:15] op_sel:[0,1] op_sel_hi:[1,1]")
    else:
        for r in range(16): k(f"v_mul_f32 v{OWN+r}, v15, v{OWN+r}")
    for j in range(8): k(f"v_cvt_pk_bf16_f32 v{OWN+2*j}, v{OWN+2*j}, v{OWN+2*j+1}")
    for j in range(8): k(f"v_and_b32 v{OWN+2*j+1}, 0xffff0000, v{OWN+2*j}"); k(f"v_lshlrev_b32 v{OWN+2*j}, 16, v{OWN+2*j}")
    if PKE:
        for r in range(0, 16, 2): k(f"v_pk_add_f32 {vr(OWN+r,2)}, {vr(OWN+r,2)}, {vr(AVr[r],2)}")
    else:
        for r in range(16): k(f"v_add_f32 v{OWN+r}, v{OWN+r}, v{AVr[r]}")
    for j in range(8): k(f"v_cvt_pk_bf16_f32 v{OP+j}, v{OWN+2*j}, v{OWN+2*j+1}")
    if OST == 0:
        for q in range(4):
            k.vmem(f"buffer_store_dwordx2 {vr(OP+2*q,2)}, v5, {sr(R_B,4)}, s77 offen offset:{16*q}{OMOD}")
    else:
        for q in range(4): k.lds(f"ds_write_b64 v{9 + q}, {vr(OP+2*q,2)} offset:4096")
        for j in range(2): k.lds(f"ds_read_b128 {vr(PR[0]+4*j,4)}, v4 offset:{4096 + 1024*j}", "o")
        k.wait_all_lg()
        for j in range(2):
            k.vmem(f"buffer_store_dwordx4 {vr(PR[0]+4*j,4)}, v5, {sr(R_B,4)}, s{77+j} offen{OMOD}")
    st()
    st.flush(S_RW, LY.WS_STAMP, S_WS)
    k("s_endpgm")

def gen_M(k, st):
    k.srd(R_WS, S_WS, LY.WS_SIZE_USED)
    g2_setup(k)
    k(f"s_cmp_lt_u32 s{S_IDX}, 4"); k("s_cbranch_scc1 L_Maux")
    k("s_barrier"); prefetch_g(k)
    k("v_bfe_u32 v22, v1, 4, 1"); k("v_lshrrev_b32 v23, 5, v1"); k("v_bfe_u32 v24, v1, 2, 2")
    k("v_lshlrev_b32 v25, 13, v22"); k("v_lshl_add_u32 v25, v23, 11, v25"); k("v_lshl_add_u32 v25, v24, 8, v25")
    k("v_lshl_add_u32 v26, v22, 2, v24"); k("v_lshl_add_u32 v25, v26, 5, v25")
    k("v_and_b32 v26, 3, v1"); k("v_lshl_add_u32 v25, v26, 3, v25")
    k(f"s_lshl_b32 s78, s{S_HALF}, 7"); k("v_xor_b32 v25, s78, v25"); k(f"v_add_u32 v25, {RB}, v25")
    for t in range(4):
        k(f"v_xor_b32 v{10+t}, {32*t}, v25"); k(f"v_add_u32 v{14+t}, {3*STG}, v{10+t}")
    k("v_and_b32 v25, 31, v1"); k("v_bfe_u32 v26, v1, 2, 2"); k("v_xor_b32 v26, v26, v23")
    k("v_lshlrev_b32 v25, 6, v25"); k("v_lshl_add_u32 v25, v26, 4, v25")
    k(f"s_lshl_b32 s78, s{S_CH}, 12"); k(f"s_add_u32 s78, s78, {RB + 16384}")
    k("v_xor_b32 v19, 32, v25"); k("v_add_u32 v18, s78, v25"); k("v_add_u32 v19, s78, v19")
    k(f"v_add_u32 v20, {3*STG}, v18"); k(f"v_add_u32 v21, {3*STG}, v19")
    for t in range(4): k(f"v_subrev_u32 v{22+t}, {RB - L_B5}, v{10+t}")
    for e in range(2): k(f"v_subrev_u32 v{26+e}, {RB - L_B5}, v{18+e}")
    k(f"s_lshl_b32 s78, s{S_MT}, 2"); k(f"s_lshl_b32 s79, s{S_CH}, 1"); k("s_add_u32 s78, s78, s79"); k("s_mul_i32 s78, s78, 112")
    k(f"s_lshl_b32 s79, s{S_FT}, 3"); k("s_add_u32 s78, s78, s79"); k(f"s_lshl_b32 s79, s{S_HALF}, 2"); k("s_add_u32 s78, s78, s79"); k("s_lshl_b32 s78, s78, 10")
    k(f"s_add_u32 s79, s78, {112*1024}")
    k(f"s_lshl_b32 s81, s{S_MT}, 1"); k(f"s_add_u32 s81, s81, s{S_CH}"); k("s_lshl_b32 s81, s81, 5")
    k(f"s_lshl_b32 s82, s{S_FT}, 1"); k("s_add_u32 s81, s81, s82"); k(f"s_add_u32 s81, s81, s{S_HALF}"); k("s_lshl_b32 s81, s81, 7")
    k(f"s_add_u32 s81, s81, {LY.WS_FH}")
    k(f"s_lshl_b32 s70, s{S_RW}, 2"); k(f"s_add_u32 s70, s70, {L_FLAG + 64}"); k("v_mov_b32 v28, s70"); k("v_mov_b32 v29, 1"); k(f"v_mov_b32 v30, {L_FLAG + 80}")
    if WARM:
        k("v_mov_b32 v31, 0"); k("v_lshlrev_b32 v9, 2, v1"); k("s_mov_b32 exec_hi, 0")
        k.vmem(f"buffer_store_dword v31, v9, {sr(R_WS,4)}, s81 offen sc1", "wm")
        k.vmem(f"buffer_store_dword v31, v9, {sr(R_WS,4)}, s78 offen sc1", "wm")
        k(f"s_lshr_b32 s72, s{S_CHAN}, 6"); k("s_lshl_b32 s72, s72, 7"); k(f"s_lshl_b32 s73, s{S_HALF}, 6"); k("s_add_u32 s72, s72, s73")
        k(f"s_and_b32 s73, s{S_CHAN}, 63"); k("s_add_u32 s72, s72, s73"); k("s_lshl_b32 s72, s72, 7"); k(f"s_add_u32 s72, s72, {LY.WS_FA}")
        k.vmem(f"buffer_store_dword v31, v9, {sr(R_WS,4)}, s72 offen sc1", "wm")
        k(f"s_lshl_b32 s72, s{S_CHAN}, 12"); k(f"s_lshl_b32 s73, s{S_HALF}, 11"); k("s_add_u32 s72, s72, s73"); k(f"s_add_u32 s72, s72, {LY.WS_AT}")
        k.vmem(f"buffer_store_dword v31, v9, {sr(R_WS,4)}, s72 offen sc1", "wm")
        k("s_mov_b32 exec_hi, -1")
        k(f"s_lshl_b32 s72, s{S_TT}, 16"); k(f"s_lshl_b32 s73, s{S_NT}, 7"); k("s_add_u32 s72, s72, s73")
        k.vmem(f"buffer_load_dword v251, v31, {sr(R_B,4)}, s72 offen", "wm")
    k.wait_vm("p")
    st()
    k.label("L_kgen")
    kgen(k)
    k(f"s_cmp_ge_u32 s{S_WAVE}, 4"); k("s_cbranch_scc1 L_Haux_ret")
    ACC, AF, BF = 64, 32, 48
    def aread(kk, t, dst):
        sg = kk >> 1; e = kk & 1; b = sbuf(sg)
        reg = (10 if b < 3 else 14) + t; off = (b if b < 3 else b - 3) * STG
        if b == 5: reg = 22 + t; off = 0
        for s2 in range(2):
            k.lds(f"ds_read_b64_tr_b16 {vr(dst+2*s2,2)}, v{reg} offset:{off + e*4096 + s2*1024}", ("a", kk, t))
    def bread(kk, dst):
        sg = kk >> 1; e = kk & 1; b = sbuf(sg)
        reg = (18 if b < 3 else 20) + e; off = (b if b < 3 else b - 3) * STG
        if b == 5: reg = 26 + e; off = 0
        for tk in range(2):
            k.lds(f"ds_read_b128 {vr(dst+4*tk,4)}, v{reg} offset:{off + tk*2048}", ("b", kk))
    def mfma(t, tk, a, b, first):
        c = ACC + 16*(2*t+tk)
        k(f"v_mfma_f32_32x32x16_bf16 {vr(c,16)}, {vr(a,4)}, {vr(b,4)}, {'0' if first else vr(c,16)}")
    st()
    if WARM: k.wait_all_vm()
    k.wait_all_lg(); k("s_barrier")
    st()
    TK = 28
    TB = {28: BF + 0, 29: BF + 8, 30: 192, 31: 200}
    TA = [{28+i: 208 + 4*i for i in range(4)}, {28+i: 224 + 4*i for i in range(4)}]
    bread(0, BF)
    for t in range(4): aread(0, t, AF+4*t)
    for kk in range(TK):
        if kk & 1: k("s_barrier")
        if kk == 16 and not G2F: st()
        bread(kk + 1, BF + 8*((kk+1) & 1))
        for t in range(4):
            k.wait_lg(lambda x: x == ("a", kk, t) or x == ("b", kk))
            for tk in range(2): mfma(t, tk, AF+4*t, BF+8*(kk&1)+4*tk, kk == 0)
            if kk + 1 < TK: aread(kk + 1, t, AF+4*t)
            elif t < 2: aread(28 + t, 0, TA[0][28+t])
    k("s_barrier")
    bread(29, TB[29]); aread(30, 0, TA[0][30]); bread(30, TB[30]); aread(31, 0, TA[0][31]); bread(31, TB[31])
    k.lds("ds_read_b32 v30, v30", "tg")
    if MPRIO: k(f"s_setprio {MPRIO}")
    TMP = 32
    def epi(t):
        L = []
        for tk in range(2):
            A = ACC + 16*(2*t+tk); T = TMP + 8*tk
            L += [f"v_mul_f32 v{T+r}, {LOG2E:#x}, v{A+r}" for r in range(8)]
            L += [f"v_exp_f32 v{T+r}, -v{T+r}" for r in range(8)]
            L += [f"v_mul_f32 v{A+r}, v{A+r}, v{A+8+r}" for r in range(8)]
            L += [f"v_add_f32 v{T+r}, 1.0, v{T+r}" for r in range(8)]
            L += [f"v_rcp_f32 v{T+r}, v{T+r}" for r in range(8)]
            L += ["s_nop 0"]
            L += [f"v_mul_f32 v{A+r}, v{A+r}, v{T+r}" for r in range(8)]
            L += [f"v_cvt_pk_bf16_f32 v{A+8+j}, v{A+2*j}, v{A+2*j+1}" for j in range(4)]
            L += [("st", f"buffer_store_dwordx4 {vr(A+8,4)}, v8, {sr(R_WS,4)}, s{78+tk} offen offset:{t*1024} sc1")]
        return L
    def emit(x):
        if isinstance(x, tuple): k.vmem(x[1], "hst")
        else: k(x)
    for t in range(4):
        ep = epi(t - 1) if t else []
        per = -(-len(ep) // 7)
        n = 0
        for i, kk in enumerate(range(28, 32)):
            for tk in range(2):
                k.wait_lg(lambda x: x == ("a", kk, t) or x == ("b", kk))
                mfma(t, tk, TA[t&1][kk], TB[kk]+4*tk, False)
                if tk == 0 and t < 3: aread(kk, t + 1, TA[(t+1)&1][kk])
                if n == 0 and ep: k.nop(10)
                else:
                    for x in ep[:per]: emit(x)
                    ep = ep[per:]
                n += 1
            if t == 3 and i == 0:
                k.wait_all_lg(); k.lds("ds_write_b32 v28, v29")
                st()
        for x in ep: emit(x)
    k.nop(10)
    ep3 = epi(3)
    for i_, x in enumerate(ep3):
        emit(x)
        if CDEL == 2 and i_ == len(ep3) - CDA: k.lds("ds_write_b32 v28, v29 offset:32")
    st()
    k(f"v_mov_b32 v28, {L_FLAG + 64}"); mr_wait(k, 28, 24)
    k(f"v_readfirstlane_b32 s{S_TAG}, v30")
    for j in range(6, 9): w2dma(k, j)
    k(f"s_lshl_b32 s71, s{S_RW}, 4"); k("v_mov_b32 v24, s71")
    k.wait_vm("hst"); publish(k, 81, 22)
    lds_wait1(k, 24, L_FLAG + 12, 25)
    k.label("L_G2")
    gen_G2(k, st)

def gen_Maux(k, st):
    k.srd(R_U, S_U, 2048*1024)
    k(f"s_lshl_b32 s76, s{S_XCD}, 2"); k(f"s_add_u32 s76, s76, s{S_IDX}")
    k("v_lshrrev_b32 v22, 4, v1"); k("v_bfe_u32 v23, v1, 1, 3"); k("v_xor_b32 v23, v23, v22")
    k("v_lshlrev_b32 v10, 10, v22"); k("v_lshl_add_u32 v10, v23, 5, v10"); k("v_and_b32 v23, 1, v1"); k("v_lshl_add_u32 v10, v23, 4, v10")
    k("v_xor_b32 v11, 0x80, v10")
    k(f"s_lshl_b32 s77, s{S_RW}, 8"); k("v_add_u32 v10, s77, v10"); k("v_add_u32 v11, s77, v11")
    k("s_lshl_b32 s77, s76, 16"); k(f"s_lshl_b32 s78, s{S_RW}, 14"); k(f"s_add_u32 s78, s78, {L_AUX}")
    for tq in range(16):
        k(f"s_add_u32 m0, s78, {tq*1024}"); k(f"s_add_u32 s79, s77, {tq*4096}")
        k.vmem(f"buffer_load_dwordx4 v{10 + ((tq>>1)&1)}, {sr(R_U,4)}, s79 offen lds", "dma")
    prefetch_g(k)
    k("v_lshlrev_b32 v12, 4, v22")
    k("v_bfe_u32 v23, v1, 2, 2"); k("v_lshl_add_u32 v24, v22, 3, v23"); k("v_lshlrev_b32 v13, 8, v24")
    k("v_and_b32 v24, 1, v22"); k("v_lshl_add_u32 v24, v24, 2, v23"); k("v_lshl_add_u32 v13, v24, 5, v13")
    k("v_and_b32 v24, 3, v1"); k("v_lshl_add_u32 v13, v24, 3, v13"); k("v_add_u32 v13, s78, v13")
    k("v_and_b32 v25, 15, v1")
    k("s_lshl_b32 s83, s76, 7"); k(f"s_add_u32 s83, s83, {LY.WS_UT}")
    k(f"s_lshl_b32 s79, s{S_RW}, 11"); k(f"s_add_u32 s79, s79, {L_AUX + 65536}")
    k("v_and_b32 v19, 7, v25"); k("v_xor_b32 v19, v19, v22"); k("v_lshlrev_b32 v16, 7, v25"); k("v_lshl_add_u32 v16, v19, 4, v16"); k("v_add_u32 v16, s79, v16")
    k("v_xor_b32 v20, 64, v16")
    k("v_add_u32 v17, s79, v8")
    k("v_lshrrev_b32 v18, 3, v1"); k("v_and_b32 v19, 7, v1"); k("v_xor_b32 v19, v19, v18")
    k(f"s_lshl_b32 s79, s{S_RW}, 7"); k("v_add_u32 v18, s79, v18"); k("v_lshlrev_b32 v18, 12, v18"); k("v_lshl_add_u32 v18, v19, 4, v18")
    st()
    k.wait_vm("dma")
    tag_issue(k, 26)
    st()
    for cb in range(8):
        k(f"v_xor_b32 v15, {32*cb}, v13")
        for a in range(2):
            base = 160 + (cb*2+a) * 4
            for s in range(2):
                k.lds(f"ds_read_b64_tr_b16 {vr(base+2*s,2)}, v15 offset:{a*8192 + s*1024}", ("t", cb, a))
    def ust(cb):
        for a in range(2):
            base = 160 + (cb*2+a) * 4
            k.wait_lg(("r", cb, a))
            k(f"s_add_u32 s81, s83, {cb*65536 + a*32768}")
            k.vmem(f"buffer_store_dwordx4 {vr(base,4)}, v18, {sr(R_WS,4)}, s81 offen sc1", "st")
    for cb in range(8):
        for a in range(2):
            base = 160 + (cb*2+a) * 4
            k.wait_lg(("t", cb, a))
            k.lds(f"ds_write_b128 v{20 if a else 16}, {vr(base,4)}")
        for a in range(2):
            k.lds(f"ds_read_b128 {vr(160 + (cb*2+a)*4,4)}, v17 offset:{1024*a}", ("r", cb, a))
        if cb: ust(cb - 1)
    ust(7)
    tag_check(k, 26)
    k(f"s_lshl_b32 s79, s{S_RW}, 5"); k("s_add_u32 s79, s79, s76"); k("s_lshl_b32 s79, s79, 7"); k(f"s_add_u32 s79, s79, {LY.WS_FU}")
    k.wait_all_vm()
    publish(k, 79, 26)
    for s in range(16):
        k.vmem(f"global_load_dwordx4 {vr(96+4*s,4)}, v12, {sr(S_GW,2)} offset:{64*s}", "gw")
    st()
    k("s_barrier")
    k(f"s_lshl_b32 s79, s{S_RW}, 12"); k(f"s_add_u32 s79, s79, {L_AUX}"); k("v_lshlrev_b32 v16, 8, v25"); k("v_add_u32 v16, s79, v16")
    k("v_and_b32 v23, 3, v25"); k("v_bfe_u32 v24, v25, 3, 1"); k("v_lshl_add_u32 v23, v24, 2, v23")
    k("v_lshrrev_b32 v24, 1, v22"); k("v_xor_b32 v23, v23, v24"); k("v_lshl_add_u32 v16, v23, 5, v16")
    k("v_and_b32 v24, 1, v22"); k("v_lshl_add_u32 v16, v24, 4, v16")
    for s3 in range(4):
        k(f"v_xor_b32 v17, {64*s3}, v16")
        for reg in range(4):
            k.lds(f"ds_read_b128 {vr(32+4*(4*reg+s3),4)}, v17 offset:{reg*16384}", "gx")
    for i in range(4): k(f"v_mov_b32 v{28+i}, 0x3f803f80")
    k.wait_all_lg(); k.wait_all_vm()
    for s in range(16):
        T = 160
        for j in range(4):
            x = 32+4*s+j; w = 96+4*s+j
            k(f"v_lshlrev_b32 v{T+4*j}, 16, v{x}"); k(f"v_and_b32 v{T+4*j+1}, 0xffff0000, v{x}")
            k(f"v_lshlrev_b32 v{T+4*j+2}, 16, v{w}"); k(f"v_and_b32 v{T+4*j+3}, 0xffff0000, v{w}")
        for j in range(4): k(f"v_pk_mul_f32 {vr(T+4*j,2)}, {vr(T+4*j,2)}, {vr(T+4*j+2,2)}")
        for j in range(4): k(f"v_cvt_pk_bf16_f32 v{32+4*s+j}, v{T+4*j}, v{T+4*j+1}")
        k.nop(2)
        k(f"v_mfma_f32_16x16x32_bf16 v[224:227], v[28:31], {vr(32+4*s,4)}, {'0' if s==0 else 'v[224:227]'}")
    k.nop(10)
    rbf(k, 224)
    k(f"v_mul_f32 v225, {LOG2E:#x}, v224"); k("v_exp_f32 v225, -v225"); k("s_nop 0")
    k("v_add_f32 v225, 1.0, v225"); k("v_rcp_f32 v225, v225"); k("s_nop 0")
    rbf(k, 225)
    k("s_lshl_b32 s79, s76, 8"); k(f"s_lshl_b32 s81, s{S_RW}, 6"); k("s_add_u32 s79, s79, s81"); k(f"s_add_u32 s79, s79, {LY.WS_G}")
    k("v_lshlrev_b32 v226, 2, v25")
    k.vmem(f"buffer_store_dword v225, v226, {sr(R_WS,4)}, s79 offen sc1", "st")
    k("s_lshl_b32 s78, s76, 2"); k(f"s_add_u32 s78, s78, s{S_RW}"); k("s_lshl_b32 s78, s78, 7"); k(f"s_add_u32 s78, s78, {LY.WS_FG}")
    k.wait_all_vm()
    publish(k, 78, 22)
    st()
    k("v_and_b32 v13, 3, v1"); k("v_lshlrev_b32 v13, 7, v13"); k("s_lshl_b32 s78, s76, 9"); k(f"s_add_u32 s78, s78, {LY.WS_FG}")
    poll(k, 13, 78, 12)
    for j in range(9): w2dma(k, j)
    k.wait_all_vm()
    st(); st()
    k("s_branch L_G2")

DOC = '; Single fused launch, 256 workgroups x 8 waves (generated by the author\'s own python generator).\n'
def main():
    COLD.clear(); _lbl[0] = 0
    k = Asm()
    k("s_cmp_ge_u32 s2, 256"); k("s_cbranch_scc1 L_end")
    if STAMPS: k("s_memrealtime s[96:97]")
    k("s_load_dwordx16 s[4:19], s[0:1], 0"); k("s_load_dwordx16 s[20:35], s[0:1], 64"); k("s_load_dwordx2 s[36:37], s[0:1], 128")
    k("v_and_b32 v1, 63, v0"); k("v_lshrrev_b32 v2, 6, v0")
    k("s_getpc_b64 s[90:91]"); k("s_and_b32 s90, s90, 0xffffff00")
    k("s_lshr_b32 s64, s2, 3"); k("s_lshl_b32 s64, s64, 4")
    k("v_and_b32 v4, 1, v0"); k("v_lshl_add_u32 v4, v2, 1, v4"); k("v_add_u32 v4, s64, v4"); k(f"v_min_u32 v4, {CODEL}, v4"); k("v_lshlrev_b32 v4, 7, v4")
    if not NOCPF: k.vmem("global_load_dword v253, v4, s[90:91]", "cpf")
    k(f"v_readfirstlane_b32 s{S_WAVE}, v2")
    k(f"s_and_b32 s{S_XCD}, s2, 7"); k(f"s_lshr_b32 s{S_IDX}, s2, 3")
    k(f"s_and_b32 s{S_RW}, s{S_WAVE}, 3")
    k(f"s_lshr_b32 s{S_CH}, s{S_RW}, 1"); k(f"s_and_b32 s{S_HALF}, s{S_RW}, 1")
    k(f"s_lshl_b32 s{S_CHAN}, s2, 1"); k(f"s_add_u32 s{S_CHAN}, s{S_CHAN}, s{S_CH}")
    k(f"s_max_u32 s65, s{S_IDX}, 4"); k("s_sub_u32 s65, s65, 4")
    k(f"s_mul_i32 s{S_MT}, s65, 37"); k(f"s_lshr_b32 s{S_MT}, s{S_MT}, 8")
    k(f"s_mul_i32 s64, s{S_MT}, 7"); k(f"s_sub_u32 s{S_FT}, s65, s64")
    k(f"s_lshr_b32 s64, s{S_XCD}, 1"); k("s_lshl_b32 s64, s64, 2"); k(f"s_add_u32 s{S_MT}, s{S_MT}, s64")
    k(f"s_and_b32 s64, s{S_XCD}, 1"); k("s_mul_i32 s64, s64, 7"); k(f"s_add_u32 s{S_FT}, s{S_FT}, s64")
    k(f"s_lshl_b32 s{S_TT}, s{S_XCD}, 2"); k(f"s_lshr_b32 s64, s{S_IDX}, 3"); k(f"s_add_u32 s{S_TT}, s{S_TT}, s64")
    k(f"s_and_b32 s{S_NT}, s{S_IDX}, 7")
    k(f"s_mul_i32 s{S_TABB}, s{S_RW}, {TABW}"); k(f"s_add_u32 s{S_TABB}, s{S_TABB}, {L_TAB}")
    k("s_waitcnt lgkmcnt(0)")
    param_loads(k)
    k("s_barrier")
    vm0 = copy.deepcopy(k.vm)
    k(f"s_cmp_ge_u32 s{S_WAVE}, 4"); k("s_cbranch_scc1 L_H")
    st = Stamper(k, STAMPS, 3, 0)
    if STAMPS: k("v_writelane_b32 v3, s96, 14")
    st(); gen_M(k, st)
    k.label("L_H"); k.reset_counters(); k.vm = copy.deepcopy(vm0)
    st = Stamper(k, STAMPS, 250, 1); st(); gen_H(k, st, vm0)
    k.label("L_Maux"); k.reset_counters(); k.vm = copy.deepcopy(vm0)
    st = Stamper(k, STAMPS, 3, 0); st.n = 1; gen_Maux(k, st)
    k.out.extend(COLD)
    k.label("L_end"); k("s_endpgm")
    name = "gated_mix__ssm_conv_s4__glu_gated_swiglu__prompt_kernel"
    hdr = open("gated_mix__ssm_conv_s4__glu_gated_swiglu__prompt.s.ref").read().split("; Override")[0]
    s = hdr + DOC + f"; @launch grid=(256,1,1) block=(512,1,1) lds={LDS_TOTAL}\n" + '.amdgcn_target "amdgcn-amd-amdhsa--gfx950"\n.text\n' + kernel_header(name) + k.text() + '.section .rodata,"a"\n' + kernel_desc(name, 256, 102, 256)
    open(sys.argv[1], "w").write(s)
def codesize(path):
    import subprocess, re
    subprocess.check_call(["clang", "-x", "assembler", "-target", "amdgcn-amd-amdhsa", "-mcpu=gfx950", "-c", path, "-o", "_sz.o"])
    o = subprocess.check_output(["llvm-objdump", "-h", "_sz.o"]).decode()
    return int(re.search(r"\.text\s+([0-9a-f]+)", o).group(1), 16)
main()
sz = codesize(sys.argv[1]); CODEL = (sz - 4) // 128
assert CODEL < 512
main()
print("code bytes", sz)
```

```python
import sys, struct, copy
from asmlib import *
import layout as LY
LOG2E = 0x3fb8aa3b
def opt(n, d):
    for a in sys.argv:
        if a.startswith(f"--{n}="): return int(a.split("=")[1])
    return d
STAMPS = "--stamps" in sys.argv
MPRIO = opt("mprio", 2); HP2 = opt("hp2", 3); NWR = opt("nwr", 11); AGI = opt("agi", 20); FJ = opt("fj", 9)
ROTQ = opt("rotq", 4); PRE2 = opt("pre2", 5); DPE = opt("dpe", 2); TAGE = opt("tage", 11); UFE = opt("ufe", 13); UTE = opt("ute", 15)
OMOD = {0: "", 1: " sc1", 2: " nt", 3: " sc0 sc1"}[opt("omod", 1)]; PKE = opt("pke", 1); OST = opt("ost", 1); RT = opt("rt6", 6); AGA = opt("aga", 2); WARM = opt("warm", 0); NOCPF = opt("nocpf", 0); NOPF = opt("nopf", 1); CDEL = opt("cdel", 0); CDA = opt("cda", 30); WFS = opt("wfs", 6); G2F = opt("g2f", 0); CODEL = 300
def f2h(x): return "0x%08x" % struct.unpack("<I", struct.pack("<f", float(x)))[0]

S_U, S_ARE, S_AIM, S_BRE, S_BIM, S_CRE, S_CIM, S_LDT = 4, 6, 8, 10, 12, 14, 16, 18
S_DSK, S_W1, S_W3, S_W2, S_GW, S_OUT, S_DBG, S_WS = 20, 24, 26, 28, 30, 32, 34, 36
S_WAVE, S_XCD, S_IDX, S_MT, S_FT, S_TT, S_NT, S_RW = 38, 39, 40, 41, 42, 43, 44, 45
S_TAG = 46; S_CNT = 47
R_U, R_A, R_B, R_WS = 48, 52, 56, 60
S_TABB = 80; S_CH, S_HALF, S_CHAN = 84, 85, 86
STG = 24576; RB = 40960
L_FLAG = 0; L_TAB = 1024; L_B5 = 1024
ROWB = 272; TABW = 32 * ROWB
CPY = 4160; PL = 1536
L_X = RB + 4 * STG; L_UP = RB; W2SLOTS = 9; L_W2 = RB + STG; L_AUX = RB + STG
LDS_TOTAL = RB + 5 * STG
RND2 = [0, 0, 2, 4, 4, 4, 6, 8, 8]
SPIN_MAX = 40000; LSPIN = 0x100000
def sbuf(sg): return [1, 2, 3, 4, 0, 5][sg % 6]
def bufaddr(b): return L_B5 if b == 5 else RB + b * STG
def slot_off(sl): return (sl // 3) * STG + (sl % 3) * 2048

def rbf(k, v):
    k(f"v_cvt_pk_bf16_f32 v{v}, v{v}, v{v}"); k(f"v_and_b32 v{v}, 0xffff0000, v{v}")
_lbl = [0]
def newlabel(p):
    _lbl[0] += 1; return f"L_{p}_{_lbl[0]}"
COLD = []
def cold(k, branch, fn):
    L = newlabel("cold"); B = newlabel("back")
    k(f"{branch} {L}"); k.label(B)
    c = Asm(); c.label(L); fn(c); c(f"s_branch {B}"); COLD.extend(c.out)

def spin_tail(k, L, ready_scc1, limit):
    k(f"s_cselect_b32 s{S_CNT}, {limit}, s{S_CNT}"); k(f"s_add_u32 s{S_CNT}, s{S_CNT}, 1")
    k(f"s_cmp_lt_u32 s{S_CNT}, {limit}"); k(f"s_cbranch_scc1 {L}")
def get_tag(k, vt):
    L = newlabel("tag")
    k(f"v_mov_b32 v{vt+1}, 0"); k(f"s_mov_b32 s{S_CNT}, 0")
    k.label(L)
    k(f"global_load_dword v{vt}, v{vt+1}, {sr(S_DBG,2)} sc1"); k("s_waitcnt vmcnt(0)")
    k(f"v_readfirstlane_b32 s{S_TAG}, v{vt}"); k(f"s_cmp_lg_u32 s{S_TAG}, 0")
    spin_tail(k, L, True, SPIN_MAX)
def poll(k, voff, soff, vt):
    L = newlabel("poll")
    k(f"s_mov_b32 s{S_CNT}, 0")
    k.label(L)
    k(f"buffer_load_dword v{vt}, v{voff}, {sr(R_WS,4)}, s{soff} offen sc1"); k("s_waitcnt vmcnt(0)"); k.vm.all_done()
    k(f"v_cmp_ne_u32 vcc, s{S_TAG}, v{vt}"); k("s_cmp_eq_u64 vcc, 0")
    spin_tail(k, L, True, SPIN_MAX)
def tag_issue(k, vt):
    k(f"v_mov_b32 v{vt+1}, 0"); k.vmem(f"global_load_dword v{vt}, v{vt+1}, {sr(S_DBG,2)} sc1", "tag")
def tag_check(k, vt):
    k.wait_vm("tag"); k(f"v_readfirstlane_b32 s{S_TAG}, v{vt}"); k(f"s_cmp_lg_u32 s{S_TAG}, 0")
    cold(k, "s_cbranch_scc0", lambda c: get_tag(c, vt))
def flag_issue(k, voff, soff, vt, name):
    k.vmem(f"buffer_load_dword v{vt}, v{voff}, {sr(R_WS,4)}, s{soff} offen sc1", name)
def flag_check(k, voff, soff, vt, name):
    k.wait_vm(name); k(f"v_cmp_ne_u32 vcc, s{S_TAG}, v{vt}")
    cold(k, "s_cbranch_vccnz", lambda c: poll(c, voff, soff, vt))
def publish(k, soff, vt):
    k(f"v_mov_b32 v{vt}, s{S_TAG}"); k(f"v_lshlrev_b32 v{vt+1}, 2, v1")
    k("s_mov_b32 exec_hi, 0")
    k.vmem(f"buffer_store_dword v{vt}, v{vt+1}, {sr(R_WS,4)}, s{soff} offen sc1", "flag")
    k("s_mov_b32 exec_hi, -1")
def lds_wait1(k, va, off, vt):
    L = newlabel("lw")
    k(f"s_mov_b32 s{S_CNT}, 0")
    k.label(L)
    k(f"ds_read_b32 v{vt}, v{va} offset:{off}"); k("s_waitcnt lgkmcnt(0)"); k.lg.all_done()
    k(f"v_readfirstlane_b32 s70, v{vt}"); k("s_cmp_eq_u32 s70, 1")
    spin_tail(k, L, True, LSPIN)
def mr_wait(k, va, vt):
    L = newlabel("mr")
    k(f"s_mov_b32 s{S_CNT}, 0")
    k.label(L)
    k(f"ds_read_b128 {vr(vt,4)}, v{va}"); k("s_waitcnt lgkmcnt(0)"); k.lg.all_done()
    k(f"v_and_b32 v{vt}, v{vt}, v{vt+1}"); k(f"v_and_b32 v{vt+2}, v{vt+2}, v{vt+3}"); k(f"v_and_b32 v{vt}, v{vt}, v{vt+2}"); k("s_nop 0")
    k(f"v_readfirstlane_b32 s70, v{vt}"); k("s_cmp_eq_u32 s70, 1")
    spin_tail(k, L, True, LSPIN)

def merge(a, b):
    ta = max(1, sum(x[0] for x in a)); tb = max(1, sum(x[0] for x in b)); out = []; i = j = 0; wa = wb = 0
    while i < len(a) or j < len(b):
        if j >= len(b) or (i < len(a) and wa / ta <= wb / tb): out.append(a[i]); wa += a[i][0]; i += 1
        else: out.append(b[j]); wb += b[j][0]; j += 1
    return out

PRM = 232; KD = 128
def param_loads(k):
    k(f"s_lshl_b32 s69, s{S_CHAN}, 8"); k(f"s_lshl_b32 s70, s{S_HALF}, 7"); k("s_add_u32 s69, s69, s70")
    k("v_lshlrev_b32 v240, 1, v1"); k("v_add_u32 v240, s69, v240")
    for i in range(8): k(f"v_mov_b32 v{PRM+i}, 0")
    for i, sp in enumerate([S_ARE, S_AIM, S_BRE, S_BIM, S_CRE, S_CIM]):
        k.vmem(f"global_load_short_d16_hi v{PRM+i}, v240, {sr(sp,2)}", "p")
    k(f"s_lshl_b32 s70, s{S_CHAN}, 1"); k("v_mov_b32 v241, s70")
    k.vmem(f"global_load_short_d16_hi v{PRM+6}, v241, {sr(S_LDT,2)}", "p")
    k.vmem(f"global_load_short_d16_hi v{PRM+7}, v241, {sr(S_DSK,2)}", "p")

def kgen(k):
    atoms = []
    def A(w, fn): atoms.append((w, fn))
    Are, Aim, Bre, Bim, Cre, Cim, LDT, DSK = range(PRM, PRM + 8)
    W = {0: 120, 1: 122, 2: 124, 3: 126}
    E = {i: 32 + 2*(i-1) for i in range(1, 9)}; E128 = 48; E512 = 50; V32 = 52; E256 = 54
    PKS = [56, 146]
    TP = [180 + 2*i for i in range(8)]; VQ = [196 + 2*i for i in range(8)]; WQ = [212 + 2*i for i in range(8)]
    VF, AFR, RA = 72, 88, 242
    k("v_and_b32 v243, 15, v1"); k("v_lshrrev_b32 v244, 4, v1")
    k(f"v_mul_u32_u24 v{RA}, {ROWB}, v243"); k(f"v_lshl_add_u32 v{RA}, v244, 4, v{RA}"); k(f"v_add_u32 v{RA}, s{S_TABB}, v{RA}")
    k(f"s_mov_b32 m0, s{S_TABB}")
    def cmulb(lst):
        for d, x, y in lst: assert d != x and d != y
        def f():
            for d, x, y in lst: k(f"v_pk_mul_f32 {vr(d,2)}, {vr(x,2)}, {vr(y,2)} op_sel:[0,0] op_sel_hi:[0,1]")
            for d, x, y in lst: k(f"v_pk_fma_f32 {vr(d,2)}, {vr(x,2)}, {vr(y,2)}, {vr(d,2)} op_sel:[1,1,0] op_sel_hi:[1,0,1] neg_lo:[1,0,0]")
        A(2*len(lst), f)
    k(f"s_mov_b32 s76, {LOG2E:#x}"); k("s_mov_b32 s77, 0x32a57060")
    k(f"v_mul_f32 v243, s76, v{LDT}"); k(f"v_fma_f32 v244, v{LDT}, s76, -v243"); k(f"v_fma_f32 v244, v{LDT}, s77, v244")
    k("v_exp_f32 v243, v243"); k("v_mul_f32 v244, 0x3f317218, v244"); k("v_fma_f32 v243, v243, v244, v243")
    rbf(k, 243)
    for r in (Are, Aim, Bre, Bim): k(f"v_mul_f32 v{r}, v243, v{r}")
    k(f"v_mul_f32 v{Are}, s76, v{Are}"); k(f"v_mul_f32 v{Aim}, 0.15915494, v{Aim}")
    dl = [(E[8], 8), (E128, 128), (E[4], 4), (V32, 32), (E[1], 1), (E512, 512)]
    for i, (d, e) in enumerate(dl): k(f"v_mul_f32 v{TP[i]}, {f2h(e)}, v{Are}"); k(f"v_mul_f32 v{TP[i]+1}, {f2h(e)}, v{Aim}")
    for i, (d, e) in enumerate(dl): k(f"v_exp_f32 v{TP[i]}, v{TP[i]}"); k(f"v_fract_f32 v{TP[i]+1}, v{TP[i]+1}")
    for i, (d, e) in enumerate(dl): k(f"v_cos_f32 v{d}, v{TP[i]+1}"); k(f"v_sin_f32 v{d+1}, v{TP[i]+1}")
    k("s_nop 0")
    for i, (d, e) in enumerate(dl): k(f"v_mul_f32 v{d}, v{TP[i]}, v{d}"); k(f"v_mul_f32 v{d+1}, v{TP[i]}, v{d+1}")
    cur = [0]
    def packb(lst):
        PK = PKS[cur[0] & 1]
        def f():
            for slot, v, neg in lst: k(f"v_cvt_pk_bf16_f32 v{PK+slot}, v{v}, {'-' if neg else ''}v{v+1}")
        A(len(lst), f)
    def wr(row, reg): return (2, lambda: k.lds(f"ds_write_addtid_b32 v{reg} offset:{row*ROWB}"))
    cmulb([(W[0], Cre, Bre), (VQ[2], E[8], E[8]), (E256, E128, E128), (VQ[5], E[8], V32), (E[2], E[1], E[1]), (E[5], E[4], E[1])])
    cmulb([(W[1], W[0], E128), (VQ[3], VQ[2], E[8]), (VQ[6], VQ[2], V32), (W[2], W[0], E256), (E[3], E[2], E[1]), (E[6], E[4], E[2])])
    cmulb([(W[3], W[1], E256), (VQ[7], VQ[3], V32), (VQ[0], V32, V32), (VQ[1], VQ[5], V32), (E[7], E[4], E[3])])
    A(1, lambda: k(f"v_mov_b32 v{PKS[0]}, 0x3f80"))
    packb([(1, E[8], 0), (2, VQ[2], 0), (3, VQ[3], 0), (4, V32, 0), (5, VQ[5], 0), (6, VQ[6], 0), (7, VQ[7], 0)])
    cmulb([(VQ[2], VQ[6], V32), (VQ[3], VQ[7], V32), (VQ[4], VQ[0], V32), (VQ[5], VQ[1], V32)])
    cmulb([(VQ[6], VQ[2], V32), (VQ[7], VQ[3], V32)])
    packb([(8+i, VQ[i], 0) for i in range(8)])
    pend = [wr(j, PKS[0]+j) for j in range(16)] + [(4, lambda: [k.lds(f"ds_read_b128 {vr(VF+4*s,4)}, v{RA} offset:{64*s}") for s in range(4)])]
    def prods(items):
        dp = [(s_, w, True) for slots, w, x in items if x == 0 for s_ in slots]
        pr = [(slots, w, x) for slots, w, x in items if x]
        if dp: packb(dp)
        for i in range(0, len(pr), 8):
            b = pr[i:i+8]
            for h in range(0, len(b), 4): cmulb([(TP[h+j], w, E[x]) for j, (slots, w, x) in enumerate(b[h:h+4])])
            packb([(s_, TP[j], True) for j, (slots, w, x) in enumerate(b) for s_ in slots])
    def tile_compute(tau):
        items = []
        if tau < 2:
            for g in range(4):
                xs = [(4*tau + i) if g < 2 else RND2[4*tau + i] for i in range(4)]
                for x in sorted(set(xs)): items.append(([4*g + i for i in range(4) if xs[i] == x], W[g], x))
        elif tau == 2:
            cmulb([(WQ[g], W[g], E512) for g in range(4)])
            for g in range(4):
                items.append(([4*g], W[g], 8))
                for i, x in enumerate([0, 4, 8]): items.append(([4*g + 1 + i], WQ[g], x))
        else:
            cmulb([(WQ[4+g], WQ[g], E512) for g in range(4)])
            cmulb([(WQ[g], WQ[4+g], E512) for g in range(4)])
            for b in range(8):
                w = WQ[4+b] if b < 4 else WQ[b-4]
                items.append(([2*b], w, 0)); items.append(([2*b+1], w, 8))
        prods(items)
    def tile_mfma(tau):
        def f1():
            for s in range(4): k.lds(f"ds_read_b128 {vr(AFR+4*s,4)}, v{RA} offset:{16*ROWB + 64*s}", ("af", tau, s))
        def f2():
            dd = KD + 4*tau
            for s in range(4):
                k.wait_lg(("af", tau, s))
                k(f"v_mfma_f32_16x16x32_bf16 {vr(dd,4)}, {vr(AFR+4*s,4)}, {vr(VF+4*s,4)}, {'0' if s==0 else vr(dd,4)}")
        return [(6, f1), (8, f2)]
    for tau in range(4):
        cur[0] += 1
        n0 = len(atoms); tile_compute(tau); c_ = atoms[n0:]; del atoms[n0:]
        atoms.extend(merge(c_, pend))
        pend = [wr(16+j, PKS[cur[0] & 1]+j) for j in range(16)] + tile_mfma(tau)
    atoms.extend(pend)
    for w, f in atoms: f()
    k("v_lshlrev_b32 v243, 4, v1"); k(f"v_add_u32 v243, s{S_TABB}, v243")
    k.nop(7)
    for q in range(4): k.lds(f"ds_write_b128 v243, {vr(KD+4*q,4)} offset:{1024*q}")

def w2_addr(k, v, t1, t2):
    k.srd(R_A, S_W2, 1792*1024)
    k(f"v_lshrrev_b32 v{t1}, 3, v1"); k(f"v_lshlrev_b32 v{v}, 10, v{t1}")
    k(f"v_and_b32 v{t1}, 2, v{t1}"); k(f"v_bfe_u32 v{t2}, v1, 1, 2"); k(f"v_xor_b32 v{t1}, v{t1}, v{t2}"); k(f"v_lshl_add_u32 v{v}, v{t1}, 5, v{v}")
    k(f"v_and_b32 v{t1}, 1, v1"); k(f"v_lshl_add_u32 v{v}, v{t1}, 4, v{v}")
    k(f"s_lshl_b32 s64, s{S_NT}, 7"); k(f"s_mul_i32 s65, s{S_RW}, {448*1024}"); k("s_add_u32 s64, s64, s65"); k(f"v_add_u32 v{v}, s64, v{v}")
    k(f"s_mul_i32 s66, s{S_RW}, 6144"); k(f"s_add_u32 s66, s66, {L_W2}")
def w2dma(k, i):
    so = slot_off(i % W2SLOTS)
    for q in range(2):
        k(f"s_add_u32 m0, s66, {so + q*1024}"); k(f"s_mov_b32 s67, {(16*i + 8*q)*1024}")
        k.vmem(f"buffer_load_dwordx4 v2, {sr(R_A,4)}, s67 offen lds", ("w2", i))

def gen_H(k, st, vm0):
    D = KD; DX = 104; P = 148; DSK = PRM + 7; EB = 184
    k.srd(R_WS, S_WS, LY.WS_SIZE_USED)
    def common_setup():
        k(f"s_mul_i32 s68, s{S_CH}, {2*TABW}"); k(f"s_add_u32 s68, s68, {L_TAB}")
        k(f"s_lshl_b32 s70, s{S_RW}, 4"); k(f"s_add_u32 s70, s70, {L_FLAG}"); k("v_mov_b32 v29, s70"); k("v_xor_b32 v30, 16, v29")
        for i in range(4): k(f"v_mov_b32 v{176+i}, 0")
        k.lds("ds_write_b128 v29, v[176:179]")
        k(f"v_mov_b32 v28, {L_FLAG + 64}")
        k("v_lshlrev_b32 v22, 4, v1")
        k(f"s_lshl_b32 s78, s{S_RW}, 12"); k(f"s_add_u32 s78, s78, {L_X}"); k("v_add_u32 v24, s78, v22"); k("v_xor_b32 v25, 0x1000, v24")
        k(f"s_mul_i32 s71, s{S_RW}, {4*PL}"); k(f"s_add_u32 s71, s71, {L_UP}"); k("v_add_u32 v23, s71, v22")
    def hs_set(i):
        k.wait_all_lg(); k("v_mov_b32 v31, 1"); k.lds(f"ds_write_b32 v29, v31 offset:{4*i}")
    def hs_wait(i): lds_wait1(k, 30, 4*i, 31)
    def dsum():
        k("v_add_u32 v16, s68, v22")
        for q in range(4): k.lds(f"ds_read_b128 {vr(D+4*q,4)}, v16 offset:{1024*q}")
        for q in range(4): k.lds(f"ds_read_b128 {vr(DX+4*q,4)}, v16 offset:{TABW + 1024*q}")
        k.wait_all_lg()
        for r in range(16): k(f"v_add_f32 v{D+r}, v{D+r}, v{DX+r}")
    def eprep():
        k("v_and_b32 v16, 15, v1"); k("v_lshrrev_b32 v17, 4, v1")
        k("v_and_b32 v18, 1, v16"); k("v_cmp_eq_u32 vcc, 0, v18"); k("s_nop 1")
        k(f"v_cndmask_b32 v{D+16}, v{D+13}, v{D+12}, vcc"); k(f"v_cndmask_b32 v{D+17}, v{D+15}, v{D+14}, vcc")
        k(f"s_cmp_eq_u32 s{S_HALF}, 0"); k("s_cselect_b64 vcc, -1, 0")
        A0 = [D+i for i in range(9)]; A1 = [D+9]*3 + [D+10]*3 + [D+11]*3
        B0 = [D+12]*4 + [D+16] + [D+13]*4; B1 = [D+14]*4 + [D+17] + [D+15]*4
        for i in range(9): k(f"v_cndmask_b32 v{EB+i}, v{B0[i]}, v{A0[i]}, vcc")
        for i in range(9): k(f"v_cndmask_b32 v{EB+9+i}, v{B1[i]}, v{A1[i]}, vcc")
        k("v_lshlrev_b32 v19, 4, v16"); k(f"v_sub_u32 v19, {4080 - 16}, v19"); k("v_add_u32 v19, s68, v19")
        k(f"s_add_u32 s70, s{S_HALF}, 8"); k("v_lshlrev_b32 v20, s70, v17"); k("v_sub_u32 v20, v19, v20")
        k(f"s_lshl_b32 s70, s{S_HALF}, 11"); k("v_subrev_u32 v20, s70, v20")
        k(f"s_cmp_eq_u32 s{S_HALF}, 0"); k("s_cselect_b32 s70, 4, 1"); k("s_lshl_b32 s70, s70, 8"); k("v_subrev_u32 v21, s70, v20")
        k(f"v_mul_u32_u24 v26, {CPY}, v17"); k("v_lshl_add_u32 v26, v16, 2, v26"); k("v_add_u32 v26, s68, v26")
    def write_block(e, addr, P):
        for j, (lo, hi) in enumerate([(7,6),(5,4),(3,2),(1,0)]): k(f"v_cvt_pk_bf16_f32 v{P+j}, v{e+lo}, v{e+hi}")
        for j, (lo, hi) in enumerate([(8,7),(6,5),(4,3),(2,1)]): k(f"v_cvt_pk_bf16_f32 v{P+4+j}, v{e+lo}, v{e+hi}")
        k(f"v_mov_b32 v{P+8}, v{P+1}"); k(f"v_mov_b32 v{P+9}, v{P+2}"); k(f"v_mov_b32 v{P+10}, v{P+5}"); k(f"v_mov_b32 v{P+11}, v{P+6}")
        return [f"ds_write_b128 v{addr}, {vr(P,4)} offset:16",
                f"ds_write_b32 v{addr}, v{P} offset:{2*CPY + 12}", f"ds_write_b32 v{addr}, v{P+3} offset:{2*CPY + 24}",
                f"ds_write_b64 v{addr}, {vr(P+8,2)} offset:{2*CPY + 16}",
                f"ds_write_b32 v{addr}, v{P+4} offset:{CPY + 12}", f"ds_write_b32 v{addr}, v{P+7} offset:{CPY + 24}",
                f"ds_write_b64 v{addr}, {vr(P+4,2)} offset:{3*CPY + 8}", f"ds_write_b64 v{addr}, {vr(P+6,2)} offset:{3*CPY + 16}",
                f"ds_write_b64 v{addr}, {vr(P+10,2)} offset:{CPY + 16}"]
    WL = []
    def epack():
        WL.extend(write_block(EB, 20, 204)); WL.extend(write_block(EB + 9, 21, 216))
        k(f"v_cvt_pk_bf16_f32 v27, v{D}, v{D}")
    def ewrite():
        k(f"s_cmp_eq_u32 s{S_HALF}, 0"); k("s_cselect_b64 exec, -1, 0")
        k.lds(f"ds_write_b32 v26, v176 offset:{2*2044}")
        k("s_mov_b64 exec, -1")
        for w in WL: k.lds(w)
        k("v_mov_b32 v31, s68"); k("s_cselect_b64 exec, 1, 0")
        k.lds(f"ds_write_b16 v31, v27 offset:{CPY + 2*2046}"); k.lds(f"ds_write_b16 v31, v27 offset:{3*CPY + 2*2044}")
        k("s_mov_b64 exec, -1")
    def u_flag():
        tag_check(k, 244)
        k(f"v_mov_b32 v245, {L_FLAG + 80}"); k(f"v_mov_b32 v244, s{S_TAG}"); k.lds("ds_write_b32 v245, v244")
        k("v_and_b32 v246, 31, v1"); k("v_lshlrev_b32 v246, 7, v246")
        k(f"s_lshr_b32 s79, s{S_CHAN}, 7"); k("s_lshl_b32 s79, s79, 12"); k(f"s_add_u32 s79, s79, {LY.WS_FU}")
        k(f"s_lshl_b32 s90, s{S_CHAN}, 12"); k(f"s_add_u32 s90, s90, {LY.WS_UT}")
        flag_issue(k, 246, 79, 247, "fu")
    def uload():
        flag_check(k, 246, 79, 247, "fu")
        for p in range(4): k.vmem(f"buffer_load_dwordx4 {vr(160+4*p,4)}, v22, {sr(R_WS,4)}, s90 offen offset:{1024*p} sc1", "ut")
    def caddr():
        k("v_and_b32 v16, 31, v1"); k("v_lshrrev_b32 v17, 5, v1")
        k(f"v_mul_u32_u24 v249, {PL}, v17"); k("v_lshl_add_u32 v249, v16, 4, v249"); k("v_add_u32 v249, s71, v249")
        k("v_sub_u32 v18, 3, v16"); k("v_and_b32 v18, 3, v18"); k(f"v_mul_u32_u24 v18, {CPY - 2}, v18")
        k("v_sub_u32 v19, 31, v16"); k("v_lshl_add_u32 v19, v17, 3, v19"); k("v_lshl_add_u32 v18, v19, 1, v18")
        k(f"s_lshl_b32 s70, s{S_HALF}, 10"); k("s_sub_u32 s70, s68, s70"); k("v_add_u32 v18, s70, v18")
        k(f"s_lshl_b32 s70, s{S_HALF}, 8"); k("s_sub_u32 s70, 256, s70"); k("v_add_u32 v19, s70, v249")
        k("v_and_b32 v248, 3, v1"); k(f"v_mul_u32_u24 v248, {PL}, v248"); k("v_lshrrev_b32 v5, 2, v1"); k("v_lshl_add_u32 v248, v5, 4, v248"); k("v_add_u32 v248, s71, v248")
    def ustage():
        k.lds("ds_write_b128 v249, v[176:179]"); k.lds(f"ds_write_b128 v249, v[176:179] offset:{2*PL}")
        k.wait_vm("ut")
        for p in range(4): k.lds(f"ds_write_b128 v248, {vr(160+4*p,4)} offset:{p*256 + 512}")

    k(f"s_cmp_lt_u32 s{S_IDX}, 4"); k("s_cbranch_scc1 L_Haux")
    k.srd(R_U, S_U, 2048*1024); k.srd(R_A, S_W1, 512*3584); k.srd(R_B, S_W3, 512*3584)
    k("v_lshrrev_b32 v16, 4, v1"); k("v_bfe_u32 v17, v1, 1, 3"); k("v_xor_b32 v17, v17, v16")
    k("v_mul_u32_u24 v2, 3584, v16"); k("v_lshl_add_u32 v2, v17, 5, v2")
    k("v_and_b32 v17, 1, v1"); k("v_lshl_add_u32 v2, v17, 4, v2")
    k(f"s_lshl_b32 s70, s{S_FT}, 8"); k(f"s_mul_i32 s71, s{S_RW}, {8*3584}"); k("s_add_u32 s70, s70, s71")
    k("v_xor_b32 v3, 0x80, v2")
    k("v_add_u32 v2, s70, v2"); k("v_add_u32 v3, s70, v3")
    k("v_lshrrev_b32 v4, 2, v1"); k("v_lshlrev_b32 v4, 10, v4")
    k("v_and_b32 v17, 3, v1"); k("v_xor_b32 v17, v17, v16"); k("v_lshl_add_u32 v4, v17, 4, v4")
    k(f"s_lshl_b32 s70, s{S_MT}, 17"); k(f"s_lshl_b32 s71, s{S_RW}, 15"); k("s_add_u32 s70, s70, s71")
    k("v_add_u32 v4, s70, v4")
    k(f"s_lshl_b32 s72, s{S_RW}, 11")
    k(f"s_lshr_b32 s87, s{S_XCD}, 1"); k(f"s_mul_i32 s87, s87, {ROTQ}")
    def dma(sg):
        buf = bufaddr(sbuf(sg))
        k(f"s_add_u32 s88, s87, {sg}"); k("s_and_b32 s88, s88, 15")
        k(f"s_mul_i32 s89, s88, {32*3584}"); k("s_lshl_b32 s88, s88, 6")
        def one(lo, sb, so, v, srd):
            k(f"s_add_u32 m0, s72, {lo}"); k(f"s_add_u32 s73, s{sb}, {so}")
            k.vmem(f"buffer_load_dwordx4 v{v}, {sr(srd,4)}, s73 offen lds", ("w", sg))
        for m in range(2):
            for q in range(2): one(buf + m*8192 + q*1024, 89, q*4*3584, 2+m, R_A+4*m)
        for q in range(2): one(buf + 16384 + q*1024, 88, q*16*1024, 4, R_U)
    dma(0)
    if not NOPF: k("s_barrier")
    common_setup(); k.lds("ds_write_b128 v28, v[176:179]"); k.lds("ds_write_b128 v28, v[176:179] offset:32")
    st()
    for sg in range(1, PRE2): dma(sg)
    st()
    nxt = PRE2
    for s in range(16):
        k.wait_vm(("w", s))
        if k.lg.outstanding() and s in (0, 1, 15): k.wait_all_lg()
        k("s_barrier")
        if s in (0, 8): st()
        cnt = 0
        while nxt < 16 and nxt <= max(4, s + 4) and cnt < DPE:
            dma(nxt); nxt += 1; cnt += 1
        if s == 0: dsum()
        if s == TAGE: tag_issue(k, 244)
        if s == 12: eprep(); epack(); w2_addr(k, 2, 16, 17)
        if s == UFE: u_flag(); caddr()
        if s == UTE: uload()
        if s in (14, 15):
            for j in range(3): w2dma(k, 3*(s-14) + j)
    assert nxt == 16
    k.label("L_Hjoin")
    ewrite(); hs_set(1); ustage(); hs_wait(1)
    if CDEL:
        k.wait_all_vm(); k("v_mov_b32 v31, 1"); k.lds("ds_write_b32 v29, v31 offset:12")
    if CDEL == 1: mr_wait(k, 28, 180)
    if CDEL == 2:
        k(f"s_lshl_b32 s73, s{S_RW}, 2"); k("v_mov_b32 v180, s73"); lds_wait1(k, 180, L_FLAG + 96, 181)
    st()
    AC0, AC1, FR = 32, 48, 64
    steps = [(dl, kh) for dl in range(16) for kh in range(2)]
    def rd(i):
        dl, kh = steps[i]; b = FR + (i % 3) * 16
        o1 = 2*(2016 - 32*dl + 16*kh); o2 = o1 - 2048
        k.lds(f"ds_read_b64 {vr(b,2)}, v18 offset:{o1}", i); k.lds(f"ds_read_b64 {vr(b+2,2)}, v18 offset:{o1+8}", i)
        k.lds(f"ds_read_b128 {vr(b+8,4)}, v19 offset:{2*kh*PL + (16-dl)*16}", i)
        k.lds(f"ds_read_b128 {vr(b+12,4)}, v19 offset:{2*kh*PL + (48-dl)*16}", i)
        k.lds(f"ds_read_b64 {vr(b+4,2)}, v18 offset:{o2}", i); k.lds(f"ds_read_b64 {vr(b+6,2)}, v18 offset:{o2+8}", i)
    NCS = opt('ncs', 32)
    rd(0); rd(1)
    for i in range(NCS):
        b = FR + (i % 3) * 16
        k.wait_lg(i)
        if i == WFS and not CDEL:
            k.wait_all_vm(); k("v_mov_b32 v31, 1"); k.lds("ds_write_b32 v29, v31 offset:12")
        if i + 2 < NCS: rd(i + 2)
        k(f"v_mfma_f32_32x32x16_bf16 {vr(AC0,16)}, {vr(b,4)}, {vr(b+8,4)}, {'0' if i==0 else vr(AC0,16)}")
        k(f"v_mfma_f32_32x32x16_bf16 {vr(AC1,16)}, {vr(b,4)}, {vr(b+12,4)}, {'0' if i==0 else vr(AC1,16)}")
        k(f"v_mfma_f32_32x32x16_bf16 {vr(AC1,16)}, {vr(b+4,4)}, {vr(b+8,4)}, {vr(AC1,16)}")
    if HP2: k(f"s_setprio {HP2}")
    k("v_lshlrev_b32 v26, 4, v16"); k("v_lshl_add_u32 v26, v17, 3, v26")
    k(f"s_lshl_b32 s70, s{S_HALF}, 9"); k("s_add_u32 s70, s70, s71"); k("v_add_u32 v26, s70, v26")
    for q in range(4): k.lds(f"ds_read_b64 {vr(FR+2*q,2)}, v26 offset:{q*PL + 512}", "uu")
    st()
    mr_wait(k, 28, 180)
    k(f"s_cmp_eq_u32 s{S_HALF}, 1"); k("s_cselect_b64 exec, -1, 0")
    for i in range(16): k(f"v_swap_b32 v{AC0+i}, v{AC1+i}")
    k("s_mov_b64 exec, -1")
    for q in range(4): k.lds(f"ds_write_b128 v24, {vr(AC1+4*q,4)} offset:{1024*q}")
    hs_set(2)
    for j in range(8):
        k(f"v_lshlrev_b32 v{80+2*j}, 16, v{FR+j}"); k(f"v_and_b32 v{81+2*j}, 0xffff0000, v{FR+j}")
    for j in range(16): k(f"v_mul_f32 v{80+j}, v{DSK}, v{80+j}")
    for j in range(8): k(f"v_cvt_pk_bf16_f32 v{FR+j}, v{80+2*j}, v{81+2*j}")
    for j in range(8):
        k(f"v_lshlrev_b32 v{80+2*j}, 16, v{FR+j}"); k(f"v_and_b32 v{81+2*j}, 0xffff0000, v{FR+j}")
    k("v_lshlrev_b32 v26, 6, v16"); k("v_lshl_add_u32 v26, v17, 3, v26"); k("v_add_u32 v26, s71, v26")
    k(f"s_lshl_b32 s74, s{S_CHAN}, 12"); k(f"s_lshl_b32 s73, s{S_HALF}, 11"); k("s_add_u32 s74, s74, s73"); k(f"s_add_u32 s74, s74, {LY.WS_AT}")
    k(f"s_lshr_b32 s72, s{S_CHAN}, 6"); k("s_lshl_b32 s72, s72, 7"); k(f"s_lshl_b32 s73, s{S_HALF}, 6"); k("s_add_u32 s72, s72, s73")
    k(f"s_and_b32 s73, s{S_CHAN}, 63"); k("s_add_u32 s72, s72, s73"); k("s_lshl_b32 s72, s72, 7"); k(f"s_add_u32 s72, s72, {LY.WS_FA}")
    hs_wait(2)
    st()
    for q in range(4): k.lds(f"ds_read_b128 {vr(AC1+4*q,4)}, v25 offset:{1024*q}", "x")
    k.wait_all_lg()
    for r in range(16): k(f"v_add_f32 v{AC0+r}, v{AC0+r}, v{AC1+r}")
    for j in range(8): k(f"v_cvt_pk_bf16_f32 v{AC1+j}, v{AC0+2*j}, v{AC0+2*j+1}")
    for j in range(8):
        k(f"v_lshlrev_b32 v{AC0+2*j}, 16, v{AC1+j}"); k(f"v_and_b32 v{AC0+2*j+1}, 0xffff0000, v{AC1+j}")
    for r in range(16): k(f"v_add_f32 v{AC0+r}, v{AC0+r}, v{80+r}")
    for j in range(8): k(f"v_cvt_pk_bf16_f32 v{AC1+j}, v{AC0+2*j}, v{AC0+2*j+1}")
    for q in range(4): k.lds(f"ds_write_b64 v26, {vr(AC1+2*q,2)} offset:{16*q}")
    for j in range(2): k.lds(f"ds_read_b128 {vr(FR+4*j,4)}, v23 offset:{1024*j}")
    k.wait_all_lg()
    for j in range(2): k.vmem(f"buffer_store_dwordx4 {vr(FR+4*j,4)}, v22, {sr(R_WS,4)}, s74 offen offset:{1024*j} sc1")
    st()
    k.wait_all_vm()
    publish(k, 72, 16)
    st()
    st.flush(S_RW, LY.WS_STAMP, S_WS)
    k("s_endpgm")
    k.label("L_Haux"); k.reset_counters(); k.vm = copy.deepcopy(vm0); WL.clear()
    Lt = newlabel("notag")
    k("s_cmp_lg_u32 s2, 0"); k(f"s_cbranch_scc1 {Lt}"); k(f"s_cmp_lg_u32 s{S_RW}, 3"); k(f"s_cbranch_scc1 {Lt}")
    k("s_memrealtime s[74:75]"); k("s_waitcnt lgkmcnt(0)"); k("s_or_b32 s74, s74, 1")
    k("v_mov_b32 v16, s74"); k("v_mov_b32 v17, 0"); k("s_mov_b64 exec, 1")
    k(f"global_store_dword v17, v16, {sr(S_DBG,2)} sc1"); k("s_mov_b64 exec, -1")
    k.label(Lt)
    common_setup()
    for i in range(4): k(f"v_mov_b32 v{8+i}, 1")
    k.lds("ds_write_b128 v28, v[8:11] offset:32")
    k.lds("ds_write_b128 v28, v[8:11]")
    k("s_waitcnt vmcnt(0) lgkmcnt(0)"); k.vm.all_done(); k.lg.all_done()
    k("s_branch L_kgen"); k.label("L_Haux_ret")
    tag_issue(k, 244)
    k("s_waitcnt lgkmcnt(0)"); k("s_barrier")
    k(f"s_lshl_b32 s70, s{S_XCD}, 2"); k(f"s_add_u32 s70, s70, s{S_IDX}"); k("s_lshl_b32 s70, s70, 2"); k(f"s_add_u32 s70, s70, s{S_RW}"); k("s_mul_i32 s70, s70, 112")
    k("v_min_u32 v5, 55, v1"); k("v_add_u32 v5, s70, v5"); k("v_lshlrev_b32 v5, 7, v5")
    k.vmem(f"global_load_dword v252, v5, {sr(S_W2,2)}", "pf"); k(f"v_add_u32 v5, {56*128}, v5")
    k.vmem(f"global_load_dword v252, v5, {sr(S_W2,2)}", "pf")
    dsum(); hs_set(0)
    u_flag(); eprep(); epack(); caddr(); uload(); hs_wait(0)
    k.wait_all_vm()
    k("s_branch L_Hjoin")

def prefetch_g(k):
    k(f"s_cmp_eq_u32 s{S_RW}, 0"); k(f"s_cselect_b32 s92, s{S_W1}, s{S_W3}"); k(f"s_cselect_b32 s93, s{S_W1+1}, s{S_W3+1}")
    k(f"s_cmp_ge_u32 s{S_RW}, 2"); k(f"s_cselect_b32 s92, s{S_U}, s92"); k(f"s_cselect_b32 s93, s{S_U+1}, s93"); k("s_cselect_b64 vcc, -1, 0")
    k(f"s_lshr_b32 s94, s{S_XCD}, 1"); k("s_lshl_b32 s94, s94, 5"); k(f"s_add_u32 s94, s94, s{S_IDX}"); k("s_lshl_b32 s94, s94, 2")
    k("v_lshrrev_b32 v9, 4, v1"); k("v_add_u32 v9, s94, v9"); k("v_mul_u32_u24 v9, 3584, v9")
    k("v_and_b32 v10, 15, v1"); k("v_min_u32 v10, 13, v10"); k("v_lshl_add_u32 v9, v10, 7, v9")
    k(f"s_and_b32 s94, s{S_XCD}, 1"); k("s_mul_i32 s94, s94, 1792"); k("v_add_u32 v9, s94, v9")
    k(f"s_lshl_b32 s94, s{S_XCD}, 5"); k(f"s_add_u32 s94, s94, s{S_IDX}"); k("s_lshl_b32 s94, s94, 13")
    k(f"s_and_b32 s95, s{S_RW}, 1"); k("s_lshl_b32 s95, s95, 12"); k("s_add_u32 s94, s94, s95")
    k("v_and_b32 v10, 31, v1"); k("v_lshlrev_b32 v10, 7, v10"); k("v_add_u32 v10, s94, v10")
    k("v_cndmask_b32 v9, v9, v10, vcc")
    if not NOPF: k.vmem("global_load_dword v252, v9, s[92:93]", "pf")

def g2_setup(k):
    w2_addr(k, 2, 4, 5); k.srd(R_B, S_OUT, 2048*1024)
    k("v_bfe_u32 v4, v1, 2, 2"); k("v_lshrrev_b32 v5, 5, v1"); k("v_lshl_add_u32 v5, v5, 2, v4"); k("v_lshlrev_b32 v6, 7, v5")
    k("v_and_b32 v4, 2, v4"); k("v_bfe_u32 v5, v1, 4, 1"); k("v_xor_b32 v4, v4, v5"); k("v_lshl_add_u32 v6, v4, 5, v6")
    k("v_and_b32 v4, 3, v1"); k("v_lshl_add_u32 v6, v4, 3, v6")
    k(f"s_lshl_b32 s64, s{S_CH}, 6"); k("v_xor_b32 v6, s64, v6")
    k("v_xor_b32 v7, 64, v6"); k("v_add_u32 v6, s66, v6"); k("v_add_u32 v7, s66, v7")
    k("v_lshlrev_b32 v8, 4, v1")

def gen_G2(k, st):
    ACC = 24
    pool = list(range(88, 256, 8))
    wreg = {}; hreg = {}
    nd = [W2SLOTS]; nr = [0]
    def wread():
        i = nr[0]; b = pool.pop(0); wreg[i] = b
        k.wait_vm(("w2", i))
        for dt in range(2):
            for s2 in range(2):
                k.lds(f"ds_read_b64_tr_b16 {vr(b+4*dt+2*s2,2)}, v{6+dt} offset:{slot_off(i % W2SLOTS) + s2*1024}", ("wf", i))
        nr[0] += 1
    def more_dma():
        while nd[0] < 28 and nd[0] - W2SLOTS < nr[0] - 1:
            k.wait_lg(("wf", nd[0] - W2SLOTS)); w2dma(k, nd[0]); nd[0] += 1
    for j in range(6): wread()
    k("v_min_u32 v9, 6, v1"); k("v_lshlrev_b32 v9, 7, v9")
    k(f"s_lshl_b32 s82, s{S_TT}, 5"); k(f"s_mul_i32 s69, s{S_RW}, 7"); k("s_add_u32 s82, s82, s69"); k("s_lshl_b32 s82, s82, 7"); k(f"s_add_u32 s82, s82, {LY.WS_FH}")
    k(f"s_mul_i32 s68, s{S_TT}, 224"); k("s_lshl_b32 s69, s69, 2"); k("s_add_u32 s68, s68, s69"); k("s_lshl_b32 s68, s68, 10")
    k(f"s_mul_i32 s69, s{S_HALF}, {112*1024}"); k(f"s_sub_u32 s70, {112*1024}, s69"); k("s_add_u32 s69, s68, s69"); k("s_add_u32 s68, s68, s70")
    st()
    more_dma()
    for j in range(6, NWR):
        wread(); more_dma()
        if j == FJ: k.vmem(f"buffer_load_dword v10, v9, {sr(R_WS,4)}, s82 offen sc1", "fh")
    st()
    k.wait_vm("fh"); k(f"v_cmp_eq_u32 vcc, s{S_TAG}, v10"); k("s_nop 0"); k("s_mov_b32 s83, vcc_lo")
    def need_group(gi):
        def slow(c):
            L = newlabel("gp")
            c(f"s_mov_b32 s{S_CNT}, 0"); c.label(L)
            c(f"buffer_load_dword v10, v9, {sr(R_WS,4)}, s82 offen sc1"); c("s_waitcnt vmcnt(0)")
            c(f"v_cmp_eq_u32 vcc, s{S_TAG}, v10"); c("s_nop 0"); c("s_mov_b32 s83, vcc_lo"); c(f"s_bitcmp1_b32 s83, {gi}")
            spin_tail(c, L, True, SPIN_MAX)
        k(f"s_bitcmp1_b32 s83, {gi}"); cold(k, "s_cbranch_scc0", slow)
    nh = [0]
    def hload():
        i = nh[0]; b = pool.pop(0); hreg[i] = b
        if i % 4 == 0:
            need_group(i // 4)
            if i == 0: st()
            else: k("s_add_u32 s68, s68, 4096"); k("s_add_u32 s69, s69, 4096")
        for tk in range(2):
            k.vmem(f"buffer_load_dwordx4 {vr(b+4*tk,4)}, v8, {sr(R_WS,4)}, s{69-tk} offen offset:{(i%4)*1024} sc1", ("h", i))
        nh[0] += 1
    while pool: hload()
    k("v_and_b32 v20, 31, v1"); k("v_lshrrev_b32 v11, 5, v1")
    k(f"s_lshl_b32 s72, s{S_NT}, 7"); k(f"s_lshr_b32 s73, s{S_TT}, 4"); k("s_lshl_b32 s73, s73, 6"); k("s_add_u32 s72, s72, s73")
    k(f"s_lshl_b32 s73, s{S_CH}, 5"); k("s_add_u32 s72, s72, s73"); k("s_lshl_b32 s72, s72, 7"); k(f"s_add_u32 s72, s72, {LY.WS_FA - LY.WS_FH}")
    k("v_lshlrev_b32 v12, 7, v20"); k("v_add_u32 v12, s72, v12")
    k(f"s_lshl_b32 s72, s{S_TT}, 9"); k(f"s_add_u32 s72, s72, {LY.WS_FG - LY.WS_FH}")
    k("v_and_b32 v13, 3, v1"); k("v_lshlrev_b32 v13, 7, v13"); k("v_add_u32 v13, s72, v13")
    k("v_cmp_gt_u32 vcc, 32, v1"); k("s_nop 1"); k("v_cndmask_b32 v12, v13, v12, vcc")
    k(f"s_mov_b32 s76, {LY.WS_FH}")
    k(f"s_lshl_b32 s72, s{S_TT}, 6"); k(f"s_lshl_b32 s73, s{S_HALF}, 5"); k("s_add_u32 s72, s72, s73")
    k(f"s_lshl_b32 s74, s{S_NT}, 6"); k(f"s_lshl_b32 s73, s{S_CH}, 5"); k("s_add_u32 s74, s74, s73")
    k("v_add_u32 v21, s72, v20")
    k("v_lshlrev_b32 v15, 2, v21"); k("v_lshlrev_b32 v16, 1, v21"); k("v_lshl_add_u32 v16, v11, 14, v16")
    k("s_lshl_b32 s75, s74, 12"); k(f"s_add_u32 s75, s75, {LY.WS_AT}")
    k("v_add_u32 v4, s66, v8")
    for a in range(1, 4):
        k(f"s_xor_b32 s72, s{S_RW}, {a}"); k("s_mul_i32 s72, s72, 6144"); k(f"s_add_u32 s72, s72, {L_W2 + (a-1)*STG}"); k(f"v_add_u32 v{16+a}, s72, v8")
    k("v_lshlrev_b32 v5, 10, v21"); k("v_lshl_add_u32 v5, v11, 3, v5"); k("s_lshl_b32 s77, s74, 1")
    AV = [None]
    def ag_load():
        flag_check(k, 12, 76, 13, "fa")
        b0 = pool.pop(0); b1 = pool.pop(0); AV[0] = list(range(b0, b0+8)) + list(range(b1, b1+8))
        k(f"s_mov_b32 s73, {LY.WS_G}")
        k.vmem(f"buffer_load_dword v14, v15, {sr(R_WS,4)}, s73 offen sc1", "g")
        for r in range(16): k(f"v_mov_b32 v{AV[0][r]}, 0")
        for r in range(16):
            q, i = r >> 2, r & 3
            k(f"s_add_u32 s73, s75, {(8*q+i)*4096}")
            k.vmem(f"buffer_load_short_d16_hi v{AV[0][r]}, v16, {sr(R_WS,4)}, s73 offen sc1", "a")
    def mf(i, a):
        c = ACC + 16*a
        k(f"v_mfma_f32_32x32x16_bf16 {vr(c,16)}, {vr(wreg[i]+4*(a>>1),4)}, {vr(hreg[i]+4*(a&1),4)}, {'0' if i==0 else vr(c,16)}")
    NK = 28 - RT
    for i in range(NK):
        k.wait_both(("h", i), ("wf", i))
        if i in (1, 9, 18) and G2F: st()
        for a in ((3, 2, 1, 0) if i == 27 else (0, 1, 2, 3)): mf(i, a)
        pool.append(wreg[i]); pool.append(hreg[i])
        if nh[0] < 28: hload()
        if nr[0] < 28: wread(); more_dma()
        elif nh[0] < 28: hload()
        if i == AGI: flag_issue(k, 12, 76, 13, "fa")
        if i == min(26, AGI + 6): ag_load()
    if RT:
        assert nh[0] == 28 and nr[0] == 28
        k.wait_all_lg()
        pw = []
        for a in (3, 2, 1, 0):
            for n, i in enumerate(range(NK, 28)):
                k.wait_vm(("h", i)); mf(i, a)
                if n == 1 and pw: k.nop(10)
                if n >= 1 and pw: k.lds(pw.pop(0))
            for w in pw: k.lds(w)
            pw = [f"ds_write_b128 v4, {vr(ACC+16*a+4*q,4)} offset:{(a-1)*STG + 1024*q}" for q in range(4)] if a else []
            if a == AGA: ag_load()
        for i in range(NK, 28): pool.append(wreg[i]); pool.append(hreg[i])
    st()
    AVr = AV[0]
    regs = [r for b in sorted(pool) for r in range(b, b+8)]
    def take(n):
        for s0 in range(0, len(regs) - n + 1):
            if regs[s0] % 4 == 0 and regs[s0+n-1] == regs[s0] + n - 1:
                out = regs[s0]; del regs[s0:s0+n]; return out
        raise Exception("no regs")
    PR = [take(16) for _ in range(3)]; OP = take(8); OWN = ACC
    if not RT: k.nop(9)
    for a in ((3, 2, 1) if not RT else ()):
        for q in range(4): k.lds(f"ds_write_b128 v4, {vr(ACC+16*a+4*q,4)} offset:{(a-1)*STG + 1024*q}")
    k.wait_all_vm()
    k("v_sub_f32 v15, 1.0, v14"); rbf(k, 15)
    for r in range(16): k(f"v_mul_f32 v{AVr[r]}, v14, v{AVr[r]}")
    for j in range(8): k(f"v_cvt_pk_bf16_f32 v{AVr[2*j]}, v{AVr[2*j]}, v{AVr[2*j+1]}")
    for j in range(8): k(f"v_and_b32 v{AVr[2*j+1]}, 0xffff0000, v{AVr[2*j]}"); k(f"v_lshlrev_b32 v{AVr[2*j]}, 16, v{AVr[2*j]}")
    if OST:
        k("v_bfe_u32 v13, v20, 1, 2"); k("v_lshlrev_b32 v9, 6, v20"); k("v_lshl_add_u32 v9, v13, 4, v9"); k("v_lshl_add_u32 v9, v11, 3, v9"); k("v_add_u32 v9, s66, v9")
        for q in range(1, 4): k(f"v_xor_b32 v{9+q}, {16*q}, v9")
        k("v_lshrrev_b32 v5, 2, v1"); k("v_bfe_u32 v13, v1, 3, 2"); k("v_and_b32 v16, 3, v1"); k("v_xor_b32 v13, v13, v16")
        k(f"s_lshl_b32 s72, s{S_TT}, 6"); k(f"s_lshl_b32 s73, s{S_HALF}, 5"); k("s_add_u32 s72, s72, s73")
        k("v_add_u32 v5, s72, v5"); k("v_lshlrev_b32 v5, 10, v5"); k("v_lshl_add_u32 v5, v13, 4, v5"); k("s_add_u32 s78, s77, 16384")
    k.wait_all_lg(); k("s_barrier")
    st()
    for src in range(3):
        for q in range(4): k.lds(f"ds_read_b128 {vr(PR[src]+4*q,4)}, v{17+src} offset:{1024*q}", src)
    for src in range(3):
        k.wait_lg(src)
        if PKE:
            for r in range(0, 16, 2): k(f"v_pk_add_f32 {vr(OWN+r,2)}, {vr(OWN+r,2)}, {vr(PR[src]+r,2)}")
        else:
            for r in range(16): k(f"v_add_f32 v{OWN+r}, v{OWN+r}, v{PR[src]+r}")
    for j in range(8): k(f"v_cvt_pk_bf16_f32 v{OWN+2*j}, v{OWN+2*j}, v{OWN+2*j+1}")
    for j in range(8): k(f"v_and_b32 v{OWN+2*j+1}, 0xffff0000, v{OWN+2*j}"); k(f"v_lshlrev_b32 v{OWN+2*j}, 16, v{OWN+2*j}")
    if PKE:
        for r in range(0, 16, 2): k(f"v_pk_mul_f32 {vr(OWN+r,2)}, {vr(OWN+r,2)}, v[14:15] op_sel:[0,1] op_sel_hi:[1,1]")
    else:
        for r in range(16): k(f"v_mul_f32 v{OWN+r}, v15, v{OWN+r}")
    for j in range(8): k(f"v_cvt_pk_bf16_f32 v{OWN+2*j}, v{OWN+2*j}, v{OWN+2*j+1}")
    for j in range(8): k(f"v_and_b32 v{OWN+2*j+1}, 0xffff0000, v{OWN+2*j}"); k(f"v_lshlrev_b32 v{OWN+2*j}, 16, v{OWN+2*j}")
    if PKE:
        for r in range(0, 16, 2): k(f"v_pk_add_f32 {vr(OWN+r,2)}, {vr(OWN+r,2)}, {vr(AVr[r],2)}")
    else:
        for r in range(16): k(f"v_add_f32 v{OWN+r}, v{OWN+r}, v{AVr[r]}")
    for j in range(8): k(f"v_cvt_pk_bf16_f32 v{OP+j}, v{OWN+2*j}, v{OWN+2*j+1}")
    if OST == 0:
        for q in range(4):
            k.vmem(f"buffer_store_dwordx2 {vr(OP+2*q,2)}, v5, {sr(R_B,4)}, s77 offen offset:{16*q}{OMOD}")
    else:
        for q in range(4): k.lds(f"ds_write_b64 v{9 + q}, {vr(OP+2*q,2)} offset:4096")
        for j in range(2): k.lds(f"ds_read_b128 {vr(PR[0]+4*j,4)}, v4 offset:{4096 + 1024*j}", "o")
        k.wait_all_lg()
        for j in range(2):
            k.vmem(f"buffer_store_dwordx4 {vr(PR[0]+4*j,4)}, v5, {sr(R_B,4)}, s{77+j} offen{OMOD}")
    st()
    st.flush(S_RW, LY.WS_STAMP, S_WS)
    k("s_endpgm")

def gen_M(k, st):
    k.srd(R_WS, S_WS, LY.WS_SIZE_USED)
    g2_setup(k)
    k(f"s_cmp_lt_u32 s{S_IDX}, 4"); k("s_cbranch_scc1 L_Maux")
    if not NOPF: k("s_barrier"); prefetch_g(k)
    k("v_bfe_u32 v22, v1, 4, 1"); k("v_lshrrev_b32 v23, 5, v1"); k("v_bfe_u32 v24, v1, 2, 2")
    k("v_lshlrev_b32 v25, 13, v22"); k("v_lshl_add_u32 v25, v23, 11, v25"); k("v_lshl_add_u32 v25, v24, 8, v25")
    k("v_lshl_add_u32 v26, v22, 2, v24"); k("v_lshl_add_u32 v25, v26, 5, v25")
    k("v_and_b32 v26, 3, v1"); k("v_lshl_add_u32 v25, v26, 3, v25")
    k(f"s_lshl_b32 s78, s{S_HALF}, 7"); k("v_xor_b32 v25, s78, v25"); k(f"v_add_u32 v25, {RB}, v25")
    for t in range(4):
        k(f"v_xor_b32 v{10+t}, {32*t}, v25"); k(f"v_add_u32 v{14+t}, {3*STG}, v{10+t}")
    k("v_and_b32 v25, 31, v1"); k("v_bfe_u32 v26, v1, 2, 2"); k("v_xor_b32 v26, v26, v23")
    k("v_lshlrev_b32 v25, 6, v25"); k("v_lshl_add_u32 v25, v26, 4, v25")
    k(f"s_lshl_b32 s78, s{S_CH}, 12"); k(f"s_add_u32 s78, s78, {RB + 16384}")
    k("v_xor_b32 v19, 32, v25"); k("v_add_u32 v18, s78, v25"); k("v_add_u32 v19, s78, v19")
    k(f"v_add_u32 v20, {3*STG}, v18"); k(f"v_add_u32 v21, {3*STG}, v19")
    for t in range(4): k(f"v_subrev_u32 v{22+t}, {RB - L_B5}, v{10+t}")
    for e in range(2): k(f"v_subrev_u32 v{26+e}, {RB - L_B5}, v{18+e}")
    k(f"s_lshl_b32 s78, s{S_MT}, 2"); k(f"s_lshl_b32 s79, s{S_CH}, 1"); k("s_add_u32 s78, s78, s79"); k("s_mul_i32 s78, s78, 112")
    k(f"s_lshl_b32 s79, s{S_FT}, 3"); k("s_add_u32 s78, s78, s79"); k(f"s_lshl_b32 s79, s{S_HALF}, 2"); k("s_add_u32 s78, s78, s79"); k("s_lshl_b32 s78, s78, 10")
    k(f"s_add_u32 s79, s78, {112*1024}")
    k(f"s_lshl_b32 s81, s{S_MT}, 1"); k(f"s_add_u32 s81, s81, s{S_CH}"); k("s_lshl_b32 s81, s81, 5")
    k(f"s_lshl_b32 s82, s{S_FT}, 1"); k("s_add_u32 s81, s81, s82"); k(f"s_add_u32 s81, s81, s{S_HALF}"); k("s_lshl_b32 s81, s81, 7")
    k(f"s_add_u32 s81, s81, {LY.WS_FH}")
    k(f"s_lshl_b32 s70, s{S_RW}, 2"); k(f"s_add_u32 s70, s70, {L_FLAG + 64}"); k("v_mov_b32 v28, s70"); k("v_mov_b32 v29, 1"); k(f"v_mov_b32 v30, {L_FLAG + 80}")
    if WARM:
        k("v_mov_b32 v31, 0"); k("v_lshlrev_b32 v9, 2, v1"); k("s_mov_b32 exec_hi, 0")
        k.vmem(f"buffer_store_dword v31, v9, {sr(R_WS,4)}, s81 offen sc1", "wm")
        k.vmem(f"buffer_store_dword v31, v9, {sr(R_WS,4)}, s78 offen sc1", "wm")
        k(f"s_lshr_b32 s72, s{S_CHAN}, 6"); k("s_lshl_b32 s72, s72, 7"); k(f"s_lshl_b32 s73, s{S_HALF}, 6"); k("s_add_u32 s72, s72, s73")
        k(f"s_and_b32 s73, s{S_CHAN}, 63"); k("s_add_u32 s72, s72, s73"); k("s_lshl_b32 s72, s72, 7"); k(f"s_add_u32 s72, s72, {LY.WS_FA}")
        k.vmem(f"buffer_store_dword v31, v9, {sr(R_WS,4)}, s72 offen sc1", "wm")
        k(f"s_lshl_b32 s72, s{S_CHAN}, 12"); k(f"s_lshl_b32 s73, s{S_HALF}, 11"); k("s_add_u32 s72, s72, s73"); k(f"s_add_u32 s72, s72, {LY.WS_AT}")
        k.vmem(f"buffer_store_dword v31, v9, {sr(R_WS,4)}, s72 offen sc1", "wm")
        k("s_mov_b32 exec_hi, -1")
        k(f"s_lshl_b32 s72, s{S_TT}, 16"); k(f"s_lshl_b32 s73, s{S_NT}, 7"); k("s_add_u32 s72, s72, s73")
        k.vmem(f"buffer_load_dword v251, v31, {sr(R_B,4)}, s72 offen", "wm")
    k.wait_vm("p")
    st()
    k.label("L_kgen")
    kgen(k)
    k(f"s_cmp_ge_u32 s{S_WAVE}, 4"); k("s_cbranch_scc1 L_Haux_ret")
    ACC, AF, BF = 64, 32, 48
    def aread(kk, t, dst):
        sg = kk >> 1; e = kk & 1; b = sbuf(sg)
        reg = (10 if b < 3 else 14) + t; off = (b if b < 3 else b - 3) * STG
        if b == 5: reg = 22 + t; off = 0
        for s2 in range(2):
            k.lds(f"ds_read_b64_tr_b16 {vr(dst+2*s2,2)}, v{reg} offset:{off + e*4096 + s2*1024}", ("a", kk, t))
    def bread(kk, dst):
        sg = kk >> 1; e = kk & 1; b = sbuf(sg)
        reg = (18 if b < 3 else 20) + e; off = (b if b < 3 else b - 3) * STG
        if b == 5: reg = 26 + e; off = 0
        for tk in range(2):
            k.lds(f"ds_read_b128 {vr(dst+4*tk,4)}, v{reg} offset:{off + tk*2048}", ("b", kk))
    def mfma(t, tk, a, b, first):
        c = ACC + 16*(2*t+tk)
        k(f"v_mfma_f32_32x32x16_bf16 {vr(c,16)}, {vr(a,4)}, {vr(b,4)}, {'0' if first else vr(c,16)}")
    st()
    if WARM: k.wait_all_vm()
    k.wait_all_lg(); k("s_barrier")
    st()
    TK = 28
    TB = {28: BF + 0, 29: BF + 8, 30: 192, 31: 200}
    TA = [{28+i: 208 + 4*i for i in range(4)}, {28+i: 224 + 4*i for i in range(4)}]
    bread(0, BF)
    for t in range(4): aread(0, t, AF+4*t)
    for kk in range(TK):
        if kk & 1: k("s_barrier")
        if kk == 16 and not G2F: st()
        bread(kk + 1, BF + 8*((kk+1) & 1))
        for t in range(4):
            k.wait_lg(lambda x: x == ("a", kk, t) or x == ("b", kk))
            for tk in range(2): mfma(t, tk, AF+4*t, BF+8*(kk&1)+4*tk, kk == 0)
            if kk + 1 < TK: aread(kk + 1, t, AF+4*t)
            elif t < 2: aread(28 + t, 0, TA[0][28+t])
    k("s_barrier")
    bread(29, TB[29]); aread(30, 0, TA[0][30]); bread(30, TB[30]); aread(31, 0, TA[0][31]); bread(31, TB[31])
    k.lds("ds_read_b32 v30, v30", "tg")
    if MPRIO: k(f"s_setprio {MPRIO}")
    TMP = 32
    def epi(t):
        L = []
        for tk in range(2):
            A = ACC + 16*(2*t+tk); T = TMP + 8*tk
            L += [f"v_mul_f32 v{T+r}, {LOG2E:#x}, v{A+r}" for r in range(8)]
            L += [f"v_exp_f32 v{T+r}, -v{T+r}" for r in range(8)]
            L += [f"v_mul_f32 v{A+r}, v{A+r}, v{A+8+r}" for r in range(8)]
            L += [f"v_add_f32 v{T+r}, 1.0, v{T+r}" for r in range(8)]
            L += [f"v_rcp_f32 v{T+r}, v{T+r}" for r in range(8)]
            L += ["s_nop 0"]
            L += [f"v_mul_f32 v{A+r}, v{A+r}, v{T+r}" for r in range(8)]
            L += [f"v_cvt_pk_bf16_f32 v{A+8+j}, v{A+2*j}, v{A+2*j+1}" for j in range(4)]
            L += [("st", f"buffer_store_dwordx4 {vr(A+8,4)}, v8, {sr(R_WS,4)}, s{78+tk} offen offset:{t*1024} sc1")]
        return L
    def emit(x):
        if isinstance(x, tuple): k.vmem(x[1], "hst")
        else: k(x)
    for t in range(4):
        ep = epi(t - 1) if t else []
        per = -(-len(ep) // 7)
        n = 0
        for i, kk in enumerate(range(28, 32)):
            for tk in range(2):
                k.wait_lg(lambda x: x == ("a", kk, t) or x == ("b", kk))
                mfma(t, tk, TA[t&1][kk], TB[kk]+4*tk, False)
                if tk == 0 and t < 3: aread(kk, t + 1, TA[(t+1)&1][kk])
                if n == 0 and ep: k.nop(10)
                else:
                    for x in ep[:per]: emit(x)
                    ep = ep[per:]
                n += 1
            if t == 3 and i == 0:
                k.wait_all_lg(); k.lds("ds_write_b32 v28, v29")
                st()
        for x in ep: emit(x)
    k.nop(10)
    ep3 = epi(3)
    for i_, x in enumerate(ep3):
        emit(x)
        if CDEL == 2 and i_ == len(ep3) - CDA: k.lds("ds_write_b32 v28, v29 offset:32")
    st()
    k(f"v_mov_b32 v28, {L_FLAG + 64}"); mr_wait(k, 28, 24)
    k(f"v_readfirstlane_b32 s{S_TAG}, v30")
    for j in range(6, 9): w2dma(k, j)
    k(f"s_lshl_b32 s71, s{S_RW}, 4"); k("v_mov_b32 v24, s71")
    k.wait_vm("hst"); publish(k, 81, 22)
    lds_wait1(k, 24, L_FLAG + 12, 25)
    k.label("L_G2")
    gen_G2(k, st)

def gen_Maux(k, st):
    k.srd(R_U, S_U, 2048*1024)
    k(f"s_lshl_b32 s76, s{S_XCD}, 2"); k(f"s_add_u32 s76, s76, s{S_IDX}")
    k("v_lshrrev_b32 v22, 4, v1"); k("v_bfe_u32 v23, v1, 1, 3"); k("v_xor_b32 v23, v23, v22")
    k("v_lshlrev_b32 v10, 10, v22"); k("v_lshl_add_u32 v10, v23, 5, v10"); k("v_and_b32 v23, 1, v1"); k("v_lshl_add_u32 v10, v23, 4, v10")
    k("v_xor_b32 v11, 0x80, v10")
    k(f"s_lshl_b32 s77, s{S_RW}, 8"); k("v_add_u32 v10, s77, v10"); k("v_add_u32 v11, s77, v11")
    k("s_lshl_b32 s77, s76, 16"); k(f"s_lshl_b32 s78, s{S_RW}, 14"); k(f"s_add_u32 s78, s78, {L_AUX}")
    for tq in range(16):
        k(f"s_add_u32 m0, s78, {tq*1024}"); k(f"s_add_u32 s79, s77, {tq*4096}")
        k.vmem(f"buffer_load_dwordx4 v{10 + ((tq>>1)&1)}, {sr(R_U,4)}, s79 offen lds", "dma")
    if not NOPF: prefetch_g(k)
    k("v_lshlrev_b32 v12, 4, v22")
    k("v_bfe_u32 v23, v1, 2, 2"); k("v_lshl_add_u32 v24, v22, 3, v23"); k("v_lshlrev_b32 v13, 8, v24")
    k("v_and_b32 v24, 1, v22"); k("v_lshl_add_u32 v24, v24, 2, v23"); k("v_lshl_add_u32 v13, v24, 5, v13")
    k("v_and_b32 v24, 3, v1"); k("v_lshl_add_u32 v13, v24, 3, v13"); k("v_add_u32 v13, s78, v13")
    k("v_and_b32 v25, 15, v1")
    k("s_lshl_b32 s83, s76, 7"); k(f"s_add_u32 s83, s83, {LY.WS_UT}")
    k(f"s_lshl_b32 s79, s{S_RW}, 11"); k(f"s_add_u32 s79, s79, {L_AUX + 65536}")
    k("v_and_b32 v19, 7, v25"); k("v_xor_b32 v19, v19, v22"); k("v_lshlrev_b32 v16, 7, v25"); k("v_lshl_add_u32 v16, v19, 4, v16"); k("v_add_u32 v16, s79, v16")
    k("v_xor_b32 v20, 64, v16")
    k("v_add_u32 v17, s79, v8")
    k("v_lshrrev_b32 v18, 3, v1"); k("v_and_b32 v19, 7, v1"); k("v_xor_b32 v19, v19, v18")
    k(f"s_lshl_b32 s79, s{S_RW}, 7"); k("v_add_u32 v18, s79, v18"); k("v_lshlrev_b32 v18, 12, v18"); k("v_lshl_add_u32 v18, v19, 4, v18")
    st()
    k.wait_vm("dma")
    tag_issue(k, 26)
    st()
    for cb in range(8):
        k(f"v_xor_b32 v15, {32*cb}, v13")
        for a in range(2):
            base = 160 + (cb*2+a) * 4
            for s in range(2):
                k.lds(f"ds_read_b64_tr_b16 {vr(base+2*s,2)}, v15 offset:{a*8192 + s*1024}", ("t", cb, a))
    def ust(cb):
        for a in range(2):
            base = 160 + (cb*2+a) * 4
            k.wait_lg(("r", cb, a))
            k(f"s_add_u32 s81, s83, {cb*65536 + a*32768}")
            k.vmem(f"buffer_store_dwordx4 {vr(base,4)}, v18, {sr(R_WS,4)}, s81 offen sc1", "st")
    for cb in range(8):
        for a in range(2):
            base = 160 + (cb*2+a) * 4
            k.wait_lg(("t", cb, a))
            k.lds(f"ds_write_b128 v{20 if a else 16}, {vr(base,4)}")
        for a in range(2):
            k.lds(f"ds_read_b128 {vr(160 + (cb*2+a)*4,4)}, v17 offset:{1024*a}", ("r", cb, a))
        if cb: ust(cb - 1)
    ust(7)
    tag_check(k, 26)
    k(f"s_lshl_b32 s79, s{S_RW}, 5"); k("s_add_u32 s79, s79, s76"); k("s_lshl_b32 s79, s79, 7"); k(f"s_add_u32 s79, s79, {LY.WS_FU}")
    k.wait_all_vm()
    publish(k, 79, 26)
    for s in range(16):
        k.vmem(f"global_load_dwordx4 {vr(96+4*s,4)}, v12, {sr(S_GW,2)} offset:{64*s}", "gw")
    st()
    k("s_barrier")
    k(f"s_lshl_b32 s79, s{S_RW}, 12"); k(f"s_add_u32 s79, s79, {L_AUX}"); k("v_lshlrev_b32 v16, 8, v25"); k("v_add_u32 v16, s79, v16")
    k("v_and_b32 v23, 3, v25"); k("v_bfe_u32 v24, v25, 3, 1"); k("v_lshl_add_u32 v23, v24, 2, v23")
    k("v_lshrrev_b32 v24, 1, v22"); k("v_xor_b32 v23, v23, v24"); k("v_lshl_add_u32 v16, v23, 5, v16")
    k("v_and_b32 v24, 1, v22"); k("v_lshl_add_u32 v16, v24, 4, v16")
    for s3 in range(4):
        k(f"v_xor_b32 v17, {64*s3}, v16")
        for reg in range(4):
            k.lds(f"ds_read_b128 {vr(32+4*(4*reg+s3),4)}, v17 offset:{reg*16384}", "gx")
    for i in range(4): k(f"v_mov_b32 v{28+i}, 0x3f803f80")
    k.wait_all_lg(); k.wait_all_vm()
    for s in range(16):
        T = 160
        for j in range(4):
            x = 32+4*s+j; w = 96+4*s+j
            k(f"v_lshlrev_b32 v{T+4*j}, 16, v{x}"); k(f"v_and_b32 v{T+4*j+1}, 0xffff0000, v{x}")
            k(f"v_lshlrev_b32 v{T+4*j+2}, 16, v{w}"); k(f"v_and_b32 v{T+4*j+3}, 0xffff0000, v{w}")
        for j in range(4): k(f"v_pk_mul_f32 {vr(T+4*j,2)}, {vr(T+4*j,2)}, {vr(T+4*j+2,2)}")
        for j in range(4): k(f"v_cvt_pk_bf16_f32 v{32+4*s+j}, v{T+4*j}, v{T+4*j+1}")
        k.nop(2)
        k(f"v_mfma_f32_16x16x32_bf16 v[224:227], v[28:31], {vr(32+4*s,4)}, {'0' if s==0 else 'v[224:227]'}")
    k.nop(10)
    rbf(k, 224)
    k(f"v_mul_f32 v225, {LOG2E:#x}, v224"); k("v_exp_f32 v225, -v225"); k("s_nop 0")
    k("v_add_f32 v225, 1.0, v225"); k("v_rcp_f32 v225, v225"); k("s_nop 0")
    rbf(k, 225)
    k("s_lshl_b32 s79, s76, 8"); k(f"s_lshl_b32 s81, s{S_RW}, 6"); k("s_add_u32 s79, s79, s81"); k(f"s_add_u32 s79, s79, {LY.WS_G}")
    k("v_lshlrev_b32 v226, 2, v25")
    k.vmem(f"buffer_store_dword v225, v226, {sr(R_WS,4)}, s79 offen sc1", "st")
    k("s_lshl_b32 s78, s76, 2"); k(f"s_add_u32 s78, s78, s{S_RW}"); k("s_lshl_b32 s78, s78, 7"); k(f"s_add_u32 s78, s78, {LY.WS_FG}")
    k.wait_all_vm()
    publish(k, 78, 22)
    st()
    k("v_and_b32 v13, 3, v1"); k("v_lshlrev_b32 v13, 7, v13"); k("s_lshl_b32 s78, s76, 9"); k(f"s_add_u32 s78, s78, {LY.WS_FG}")
    poll(k, 13, 78, 12)
    for j in range(9): w2dma(k, j)
    k.wait_all_vm()
    st(); st()
    k("s_branch L_G2")

DOC = '; Single fused launch, 256 workgroups x 8 waves (generated by the author\'s own python generator).\n'
def main():
    COLD.clear(); _lbl[0] = 0
    k = Asm()
    k("s_cmp_ge_u32 s2, 256"); k("s_cbranch_scc1 L_end")
    if STAMPS: k("s_memrealtime s[96:97]")
    k("s_load_dwordx16 s[4:19], s[0:1], 0"); k("s_load_dwordx16 s[20:35], s[0:1], 64"); k("s_load_dwordx2 s[36:37], s[0:1], 128")
    k("v_and_b32 v1, 63, v0"); k("v_lshrrev_b32 v2, 6, v0")
    k("s_getpc_b64 s[90:91]"); k("s_and_b32 s90, s90, 0xffffff00")
    k("s_lshr_b32 s64, s2, 3"); k("s_lshl_b32 s64, s64, 4")
    k("v_and_b32 v4, 1, v0"); k("v_lshl_add_u32 v4, v2, 1, v4"); k("v_add_u32 v4, s64, v4"); k(f"v_min_u32 v4, {CODEL}, v4"); k("v_lshlrev_b32 v4, 7, v4")
    if not NOCPF: k.vmem("global_load_dword v253, v4, s[90:91]", "cpf")
    k(f"v_readfirstlane_b32 s{S_WAVE}, v2")
    k(f"s_and_b32 s{S_XCD}, s2, 7"); k(f"s_lshr_b32 s{S_IDX}, s2, 3")
    k(f"s_and_b32 s{S_RW}, s{S_WAVE}, 3")
    k(f"s_lshr_b32 s{S_CH}, s{S_RW}, 1"); k(f"s_and_b32 s{S_HALF}, s{S_RW}, 1")
    k(f"s_lshl_b32 s{S_CHAN}, s2, 1"); k(f"s_add_u32 s{S_CHAN}, s{S_CHAN}, s{S_CH}")
    k(f"s_max_u32 s65, s{S_IDX}, 4"); k("s_sub_u32 s65, s65, 4")
    k(f"s_mul_i32 s{S_MT}, s65, 37"); k(f"s_lshr_b32 s{S_MT}, s{S_MT}, 8")
    k(f"s_mul_i32 s64, s{S_MT}, 7"); k(f"s_sub_u32 s{S_FT}, s65, s64")
    k(f"s_lshr_b32 s64, s{S_XCD}, 1"); k("s_lshl_b32 s64, s64, 2"); k(f"s_add_u32 s{S_MT}, s{S_MT}, s64")
    k(f"s_and_b32 s64, s{S_XCD}, 1"); k("s_mul_i32 s64, s64, 7"); k(f"s_add_u32 s{S_FT}, s{S_FT}, s64")
    k(f"s_lshl_b32 s{S_TT}, s{S_XCD}, 2"); k(f"s_lshr_b32 s64, s{S_IDX}, 3"); k(f"s_add_u32 s{S_TT}, s{S_TT}, s64")
    k(f"s_and_b32 s{S_NT}, s{S_IDX}, 7")
    k(f"s_mul_i32 s{S_TABB}, s{S_RW}, {TABW}"); k(f"s_add_u32 s{S_TABB}, s{S_TABB}, {L_TAB}")
    k("s_waitcnt lgkmcnt(0)")
    param_loads(k)
    if opt("bp", 1): k("s_barrier")
    vm0 = copy.deepcopy(k.vm)
    k(f"s_cmp_ge_u32 s{S_WAVE}, 4"); k("s_cbranch_scc1 L_H")
    st = Stamper(k, STAMPS, 3, 0)
    if STAMPS: k("v_writelane_b32 v3, s96, 14")
    st(); gen_M(k, st)
    k.label("L_H"); k.reset_counters(); k.vm = copy.deepcopy(vm0)
    st = Stamper(k, STAMPS, 250, 1); st(); gen_H(k, st, vm0)
    k.label("L_Maux"); k.reset_counters(); k.vm = copy.deepcopy(vm0)
    st = Stamper(k, STAMPS, 3, 0); st.n = 1; gen_Maux(k, st)
    k.out.extend(COLD)
    k.label("L_end"); k("s_endpgm")
    name = "gated_mix__ssm_conv_s4__glu_gated_swiglu__prompt_kernel"
    hdr = open("gated_mix__ssm_conv_s4__glu_gated_swiglu__prompt.s.ref").read().split("; Override")[0]
    s = hdr + DOC + f"; @launch grid=(256,1,1) block=(512,1,1) lds={LDS_TOTAL}\n" + '.amdgcn_target "amdgcn-amd-amdhsa--gfx950"\n.text\n' + kernel_header(name) + k.text() + '.section .rodata,"a"\n' + kernel_desc(name, 256, 102, 256)
    open(sys.argv[1], "w").write(s)
def codesize(path):
    import subprocess, re
    subprocess.check_call(["clang", "-x", "assembler", "-target", "amdgcn-amd-amdhsa", "-mcpu=gfx950", "-c", path, "-o", "_sz.o"])
    o = subprocess.check_output(["llvm-objdump", "-h", "_sz.o"]).decode()
    return int(re.search(r"\.text\s+([0-9a-f]+)", o).group(1), 16)
main()
sz = codesize(sys.argv[1]); CODEL = (sz - 4) // 128
assert CODEL < 512
main()
print("code bytes", sz)
```

```python
import sys, struct, copy
from asmlib import *
import layout as LY
LOG2E = 0x3fb8aa3b
def opt(n, d):
    for a in sys.argv:
        if a.startswith(f"--{n}="): return int(a.split("=")[1])
    return d
STAMPS = "--stamps" in sys.argv
MPRIO = opt("mprio", 2); HP2 = opt("hp2", 3); NWR = opt("nwr", 11); AGI = opt("agi", 20); FJ = opt("fj", 9)
ROTQ = opt("rotq", 4); PRE2 = opt("pre2", 5); DPE = opt("dpe", 2); TAGE = opt("tage", 11); UFE = opt("ufe", 13); UTE = opt("ute", 15)
OMOD = {0: "", 1: " sc1", 2: " nt", 3: " sc0 sc1"}[opt("omod", 1)]; PKE = opt("pke", 1); OST = opt("ost", 1); RT = opt("rt6", 6); AGA = opt("aga", 2); WARM = opt("warm", 0); NOCPF = opt("nocpf", 0); NOPF = opt("nopf", 1); PWS = opt("pws", 16); PWA = opt("pwa", 8); CDEL = opt("cdel", 0); CDA = opt("cda", 30); WFS = opt("wfs", 6); G2F = opt("g2f", 0); CODEL = 300
def f2h(x): return "0x%08x" % struct.unpack("<I", struct.pack("<f", float(x)))[0]

S_U, S_ARE, S_AIM, S_BRE, S_BIM, S_CRE, S_CIM, S_LDT = 4, 6, 8, 10, 12, 14, 16, 18
S_DSK, S_W1, S_W3, S_W2, S_GW, S_OUT, S_DBG, S_WS = 20, 24, 26, 28, 30, 32, 34, 36
S_WAVE, S_XCD, S_IDX, S_MT, S_FT, S_TT, S_NT, S_RW = 38, 39, 40, 41, 42, 43, 44, 45
S_TAG = 46; S_CNT = 47
R_U, R_A, R_B, R_WS = 48, 52, 56, 60
S_TABB = 80; S_CH, S_HALF, S_CHAN = 84, 85, 86
STG = 24576; RB = 40960
L_FLAG = 0; L_TAB = 1024; L_B5 = 1024
ROWB = 272; TABW = 32 * ROWB
CPY = 4160; PL = 1536
L_X = RB + 4 * STG; L_UP = RB; W2SLOTS = 9; L_W2 = RB + STG; L_AUX = RB + STG
LDS_TOTAL = RB + 5 * STG
RND2 = [0, 0, 2, 4, 4, 4, 6, 8, 8]
SPIN_MAX = 40000; LSPIN = 0x100000
def sbuf(sg): return [1, 2, 3, 4, 0, 5][sg % 6]
def bufaddr(b): return L_B5 if b == 5 else RB + b * STG
def slot_off(sl): return (sl // 3) * STG + (sl % 3) * 2048

def rbf(k, v):
    k(f"v_cvt_pk_bf16_f32 v{v}, v{v}, v{v}"); k(f"v_and_b32 v{v}, 0xffff0000, v{v}")
_lbl = [0]
def newlabel(p):
    _lbl[0] += 1; return f"L_{p}_{_lbl[0]}"
COLD = []
def cold(k, branch, fn):
    L = newlabel("cold"); B = newlabel("back")
    k(f"{branch} {L}"); k.label(B)
    c = Asm(); c.label(L); fn(c); c(f"s_branch {B}"); COLD.extend(c.out)

def spin_tail(k, L, ready_scc1, limit):
    k(f"s_cselect_b32 s{S_CNT}, {limit}, s{S_CNT}"); k(f"s_add_u32 s{S_CNT}, s{S_CNT}, 1")
    k(f"s_cmp_lt_u32 s{S_CNT}, {limit}"); k(f"s_cbranch_scc1 {L}")
def get_tag(k, vt):
    L = newlabel("tag")
    k(f"v_mov_b32 v{vt+1}, 0"); k(f"s_mov_b32 s{S_CNT}, 0")
    k.label(L)
    k(f"global_load_dword v{vt}, v{vt+1}, {sr(S_DBG,2)} sc1"); k("s_waitcnt vmcnt(0)")
    k(f"v_readfirstlane_b32 s{S_TAG}, v{vt}"); k(f"s_cmp_lg_u32 s{S_TAG}, 0")
    spin_tail(k, L, True, SPIN_MAX)
def poll(k, voff, soff, vt):
    L = newlabel("poll")
    k(f"s_mov_b32 s{S_CNT}, 0")
    k.label(L)
    k(f"buffer_load_dword v{vt}, v{voff}, {sr(R_WS,4)}, s{soff} offen sc1"); k("s_waitcnt vmcnt(0)"); k.vm.all_done()
    k(f"v_cmp_ne_u32 vcc, s{S_TAG}, v{vt}"); k("s_cmp_eq_u64 vcc, 0")
    spin_tail(k, L, True, SPIN_MAX)
def tag_issue(k, vt):
    k(f"v_mov_b32 v{vt+1}, 0"); k.vmem(f"global_load_dword v{vt}, v{vt+1}, {sr(S_DBG,2)} sc1", "tag")
def tag_check(k, vt):
    k.wait_vm("tag"); k(f"v_readfirstlane_b32 s{S_TAG}, v{vt}"); k(f"s_cmp_lg_u32 s{S_TAG}, 0")
    cold(k, "s_cbranch_scc0", lambda c: get_tag(c, vt))
def flag_issue(k, voff, soff, vt, name):
    k.vmem(f"buffer_load_dword v{vt}, v{voff}, {sr(R_WS,4)}, s{soff} offen sc1", name)
def flag_check(k, voff, soff, vt, name):
    k.wait_vm(name); k(f"v_cmp_ne_u32 vcc, s{S_TAG}, v{vt}")
    cold(k, "s_cbranch_vccnz", lambda c: poll(c, voff, soff, vt))
def publish(k, soff, vt):
    k(f"v_mov_b32 v{vt}, s{S_TAG}"); k(f"v_lshlrev_b32 v{vt+1}, 2, v1")
    k("s_mov_b32 exec_hi, 0")
    k.vmem(f"buffer_store_dword v{vt}, v{vt+1}, {sr(R_WS,4)}, s{soff} offen sc1", "flag")
    k("s_mov_b32 exec_hi, -1")
def lds_wait1(k, va, off, vt, val=1):
    L = newlabel("lw")
    k(f"s_mov_b32 s{S_CNT}, 0")
    k.label(L)
    k(f"ds_read_b32 v{vt}, v{va} offset:{off}"); k("s_waitcnt lgkmcnt(0)"); k.lg.all_done()
    k(f"v_readfirstlane_b32 s70, v{vt}"); k(f"s_cmp_ge_u32 s70, {val}")
    spin_tail(k, L, True, LSPIN)
def mr_wait(k, va, vt):
    L = newlabel("mr")
    k(f"s_mov_b32 s{S_CNT}, 0")
    k.label(L)
    k(f"ds_read_b128 {vr(vt,4)}, v{va}"); k("s_waitcnt lgkmcnt(0)"); k.lg.all_done()
    k(f"v_and_b32 v{vt}, v{vt}, v{vt+1}"); k(f"v_and_b32 v{vt+2}, v{vt+2}, v{vt+3}"); k(f"v_and_b32 v{vt}, v{vt}, v{vt+2}"); k("s_nop 0")
    k(f"v_readfirstlane_b32 s70, v{vt}"); k("s_cmp_eq_u32 s70, 1")
    spin_tail(k, L, True, LSPIN)

def merge(a, b):
    ta = max(1, sum(x[0] for x in a)); tb = max(1, sum(x[0] for x in b)); out = []; i = j = 0; wa = wb = 0
    while i < len(a) or j < len(b):
        if j >= len(b) or (i < len(a) and wa / ta <= wb / tb): out.append(a[i]); wa += a[i][0]; i += 1
        else: out.append(b[j]); wb += b[j][0]; j += 1
    return out

PRM = 232; KD = 128
def param_loads(k):
    k(f"s_lshl_b32 s69, s{S_CHAN}, 8"); k(f"s_lshl_b32 s70, s{S_HALF}, 7"); k("s_add_u32 s69, s69, s70")
    k("v_lshlrev_b32 v240, 1, v1"); k("v_add_u32 v240, s69, v240")
    for i in range(8): k(f"v_mov_b32 v{PRM+i}, 0")
    for i, sp in enumerate([S_ARE, S_AIM, S_BRE, S_BIM, S_CRE, S_CIM]):
        k.vmem(f"global_load_short_d16_hi v{PRM+i}, v240, {sr(sp,2)}", "p")
    k(f"s_lshl_b32 s70, s{S_CHAN}, 1"); k("v_mov_b32 v241, s70")
    k.vmem(f"global_load_short_d16_hi v{PRM+6}, v241, {sr(S_LDT,2)}", "p")
    k.vmem(f"global_load_short_d16_hi v{PRM+7}, v241, {sr(S_DSK,2)}", "p")

def kgen(k):
    atoms = []
    def A(w, fn): atoms.append((w, fn))
    Are, Aim, Bre, Bim, Cre, Cim, LDT, DSK = range(PRM, PRM + 8)
    W = {0: 120, 1: 122, 2: 124, 3: 126}
    E = {i: 32 + 2*(i-1) for i in range(1, 9)}; E128 = 48; E512 = 50; V32 = 52; E256 = 54
    PKS = [56, 146]
    TP = [180 + 2*i for i in range(8)]; VQ = [196 + 2*i for i in range(8)]; WQ = [212 + 2*i for i in range(8)]
    VF, AFR, RA = 72, 88, 242
    k("v_and_b32 v243, 15, v1"); k("v_lshrrev_b32 v244, 4, v1")
    k(f"v_mul_u32_u24 v{RA}, {ROWB}, v243"); k(f"v_lshl_add_u32 v{RA}, v244, 4, v{RA}"); k(f"v_add_u32 v{RA}, s{S_TABB}, v{RA}")
    k(f"s_mov_b32 m0, s{S_TABB}")
    def cmulb(lst):
        for d, x, y in lst: assert d != x and d != y
        def f():
            for d, x, y in lst: k(f"v_pk_mul_f32 {vr(d,2)}, {vr(x,2)}, {vr(y,2)} op_sel:[0,0] op_sel_hi:[0,1]")
            for d, x, y in lst: k(f"v_pk_fma_f32 {vr(d,2)}, {vr(x,2)}, {vr(y,2)}, {vr(d,2)} op_sel:[1,1,0] op_sel_hi:[1,0,1] neg_lo:[1,0,0]")
        A(2*len(lst), f)
    k(f"s_mov_b32 s76, {LOG2E:#x}"); k("s_mov_b32 s77, 0x32a57060")
    k(f"v_mul_f32 v243, s76, v{LDT}"); k(f"v_fma_f32 v244, v{LDT}, s76, -v243"); k(f"v_fma_f32 v244, v{LDT}, s77, v244")
    k("v_exp_f32 v243, v243"); k("v_mul_f32 v244, 0x3f317218, v244"); k("v_fma_f32 v243, v243, v244, v243")
    rbf(k, 243)
    for r in (Are, Aim, Bre, Bim): k(f"v_mul_f32 v{r}, v243, v{r}")
    k(f"v_mul_f32 v{Are}, s76, v{Are}"); k(f"v_mul_f32 v{Aim}, 0.15915494, v{Aim}")
    dl = [(E[8], 8), (E128, 128), (E[4], 4), (V32, 32), (E[1], 1), (E512, 512)]
    for i, (d, e) in enumerate(dl): k(f"v_mul_f32 v{TP[i]}, {f2h(e)}, v{Are}"); k(f"v_mul_f32 v{TP[i]+1}, {f2h(e)}, v{Aim}")
    for i, (d, e) in enumerate(dl): k(f"v_exp_f32 v{TP[i]}, v{TP[i]}"); k(f"v_fract_f32 v{TP[i]+1}, v{TP[i]+1}")
    for i, (d, e) in enumerate(dl): k(f"v_cos_f32 v{d}, v{TP[i]+1}"); k(f"v_sin_f32 v{d+1}, v{TP[i]+1}")
    k("s_nop 0")
    for i, (d, e) in enumerate(dl): k(f"v_mul_f32 v{d}, v{TP[i]}, v{d}"); k(f"v_mul_f32 v{d+1}, v{TP[i]}, v{d+1}")
    cur = [0]
    def packb(lst):
        PK = PKS[cur[0] & 1]
        def f():
            for slot, v, neg in lst: k(f"v_cvt_pk_bf16_f32 v{PK+slot}, v{v}, {'-' if neg else ''}v{v+1}")
        A(len(lst), f)
    def wr(row, reg): return (2, lambda: k.lds(f"ds_write_addtid_b32 v{reg} offset:{row*ROWB}"))
    cmulb([(W[0], Cre, Bre), (VQ[2], E[8], E[8]), (E256, E128, E128), (VQ[5], E[8], V32), (E[2], E[1], E[1]), (E[5], E[4], E[1])])
    cmulb([(W[1], W[0], E128), (VQ[3], VQ[2], E[8]), (VQ[6], VQ[2], V32), (W[2], W[0], E256), (E[3], E[2], E[1]), (E[6], E[4], E[2])])
    cmulb([(W[3], W[1], E256), (VQ[7], VQ[3], V32), (VQ[0], V32, V32), (VQ[1], VQ[5], V32), (E[7], E[4], E[3])])
    A(1, lambda: k(f"v_mov_b32 v{PKS[0]}, 0x3f80"))
    packb([(1, E[8], 0), (2, VQ[2], 0), (3, VQ[3], 0), (4, V32, 0), (5, VQ[5], 0), (6, VQ[6], 0), (7, VQ[7], 0)])
    cmulb([(VQ[2], VQ[6], V32), (VQ[3], VQ[7], V32), (VQ[4], VQ[0], V32), (VQ[5], VQ[1], V32)])
    cmulb([(VQ[6], VQ[2], V32), (VQ[7], VQ[3], V32)])
    packb([(8+i, VQ[i], 0) for i in range(8)])
    pend = [wr(j, PKS[0]+j) for j in range(16)] + [(4, lambda: [k.lds(f"ds_read_b128 {vr(VF+4*s,4)}, v{RA} offset:{64*s}") for s in range(4)])]
    def prods(items):
        dp = [(s_, w, True) for slots, w, x in items if x == 0 for s_ in slots]
        pr = [(slots, w, x) for slots, w, x in items if x]
        if dp: packb(dp)
        for i in range(0, len(pr), 8):
            b = pr[i:i+8]
            for h in range(0, len(b), 4): cmulb([(TP[h+j], w, E[x]) for j, (slots, w, x) in enumerate(b[h:h+4])])
            packb([(s_, TP[j], True) for j, (slots, w, x) in enumerate(b) for s_ in slots])
    def tile_compute(tau):
        items = []
        if tau < 2:
            for g in range(4):
                xs = [(4*tau + i) if g < 2 else RND2[4*tau + i] for i in range(4)]
                for x in sorted(set(xs)): items.append(([4*g + i for i in range(4) if xs[i] == x], W[g], x))
        elif tau == 2:
            cmulb([(WQ[g], W[g], E512) for g in range(4)])
            for g in range(4):
                items.append(([4*g], W[g], 8))
                for i, x in enumerate([0, 4, 8]): items.append(([4*g + 1 + i], WQ[g], x))
        else:
            cmulb([(WQ[4+g], WQ[g], E512) for g in range(4)])
            cmulb([(WQ[g], WQ[4+g], E512) for g in range(4)])
            for b in range(8):
                w = WQ[4+b] if b < 4 else WQ[b-4]
                items.append(([2*b], w, 0)); items.append(([2*b+1], w, 8))
        prods(items)
    def tile_mfma(tau):
        def f1():
            for s in range(4): k.lds(f"ds_read_b128 {vr(AFR+4*s,4)}, v{RA} offset:{16*ROWB + 64*s}", ("af", tau, s))
        def f2():
            dd = KD + 4*tau
            for s in range(4):
                k.wait_lg(("af", tau, s))
                k(f"v_mfma_f32_16x16x32_bf16 {vr(dd,4)}, {vr(AFR+4*s,4)}, {vr(VF+4*s,4)}, {'0' if s==0 else vr(dd,4)}")
        return [(6, f1), (8, f2)]
    for tau in range(4):
        cur[0] += 1
        n0 = len(atoms); tile_compute(tau); c_ = atoms[n0:]; del atoms[n0:]
        atoms.extend(merge(c_, pend))
        pend = [wr(16+j, PKS[cur[0] & 1]+j) for j in range(16)] + tile_mfma(tau)
    atoms.extend(pend)
    for w, f in atoms: f()
    k("v_lshlrev_b32 v243, 4, v1"); k(f"v_add_u32 v243, s{S_TABB}, v243")
    k.nop(7)
    for q in range(4): k.lds(f"ds_write_b128 v243, {vr(KD+4*q,4)} offset:{1024*q}")

def w2_addr(k, v, t1, t2):
    k.srd(R_A, S_W2, 1792*1024)
    k(f"v_lshrrev_b32 v{t1}, 3, v1"); k(f"v_lshlrev_b32 v{v}, 10, v{t1}")
    k(f"v_and_b32 v{t1}, 2, v{t1}"); k(f"v_bfe_u32 v{t2}, v1, 1, 2"); k(f"v_xor_b32 v{t1}, v{t1}, v{t2}"); k(f"v_lshl_add_u32 v{v}, v{t1}, 5, v{v}")
    k(f"v_and_b32 v{t1}, 1, v1"); k(f"v_lshl_add_u32 v{v}, v{t1}, 4, v{v}")
    k(f"s_lshl_b32 s64, s{S_NT}, 7"); k(f"s_mul_i32 s65, s{S_RW}, {448*1024}"); k("s_add_u32 s64, s64, s65"); k(f"v_add_u32 v{v}, s64, v{v}")
    k(f"s_mul_i32 s66, s{S_RW}, 6144"); k(f"s_add_u32 s66, s66, {L_W2}")
def w2dma(k, i):
    so = slot_off(i % W2SLOTS)
    for q in range(2):
        k(f"s_add_u32 m0, s66, {so + q*1024}"); k(f"s_mov_b32 s67, {(16*i + 8*q)*1024}")
        k.vmem(f"buffer_load_dwordx4 v2, {sr(R_A,4)}, s67 offen lds", ("w2", i))

def gen_H(k, st, vm0):
    D = KD; DX = 104; P = 148; DSK = PRM + 7; EB = 184
    k.srd(R_WS, S_WS, LY.WS_SIZE_USED)
    def common_setup():
        k(f"s_mul_i32 s68, s{S_CH}, {2*TABW}"); k(f"s_add_u32 s68, s68, {L_TAB}")
        k(f"s_lshl_b32 s70, s{S_RW}, 4"); k(f"s_add_u32 s70, s70, {L_FLAG}"); k("v_mov_b32 v29, s70"); k("v_xor_b32 v30, 16, v29")
        for i in range(4): k(f"v_mov_b32 v{176+i}, 0")
        k.lds("ds_write_b128 v29, v[176:179]")
        k(f"v_mov_b32 v28, {L_FLAG + 64}")
        k("v_lshlrev_b32 v22, 4, v1")
        k(f"s_lshl_b32 s78, s{S_RW}, 12"); k(f"s_add_u32 s78, s78, {L_X}"); k("v_add_u32 v24, s78, v22"); k("v_xor_b32 v25, 0x1000, v24")
        k(f"s_mul_i32 s71, s{S_RW}, {4*PL}"); k(f"s_add_u32 s71, s71, {L_UP}"); k("v_add_u32 v23, s71, v22")
    def hs_set(i):
        k.wait_all_lg(); k("v_mov_b32 v31, 1"); k.lds(f"ds_write_b32 v29, v31 offset:{4*i}")
    def hs_wait(i): lds_wait1(k, 30, 4*i, 31)
    def dsum():
        k("v_add_u32 v16, s68, v22")
        for q in range(4): k.lds(f"ds_read_b128 {vr(D+4*q,4)}, v16 offset:{1024*q}")
        for q in range(4): k.lds(f"ds_read_b128 {vr(DX+4*q,4)}, v16 offset:{TABW + 1024*q}")
        k.wait_all_lg()
        for r in range(16): k(f"v_add_f32 v{D+r}, v{D+r}, v{DX+r}")
    def eprep():
        k("v_and_b32 v16, 15, v1"); k("v_lshrrev_b32 v17, 4, v1")
        k("v_and_b32 v18, 1, v16"); k("v_cmp_eq_u32 vcc, 0, v18"); k("s_nop 1")
        k(f"v_cndmask_b32 v{D+16}, v{D+13}, v{D+12}, vcc"); k(f"v_cndmask_b32 v{D+17}, v{D+15}, v{D+14}, vcc")
        k(f"s_cmp_eq_u32 s{S_HALF}, 0"); k("s_cselect_b64 vcc, -1, 0")
        A0 = [D+i for i in range(9)]; A1 = [D+9]*3 + [D+10]*3 + [D+11]*3
        B0 = [D+12]*4 + [D+16] + [D+13]*4; B1 = [D+14]*4 + [D+17] + [D+15]*4
        for i in range(9): k(f"v_cndmask_b32 v{EB+i}, v{B0[i]}, v{A0[i]}, vcc")
        for i in range(9): k(f"v_cndmask_b32 v{EB+9+i}, v{B1[i]}, v{A1[i]}, vcc")
        k("v_lshlrev_b32 v19, 4, v16"); k(f"v_sub_u32 v19, {4080 - 16}, v19"); k("v_add_u32 v19, s68, v19")
        k(f"s_add_u32 s70, s{S_HALF}, 8"); k("v_lshlrev_b32 v20, s70, v17"); k("v_sub_u32 v20, v19, v20")
        k(f"s_lshl_b32 s70, s{S_HALF}, 11"); k("v_subrev_u32 v20, s70, v20")
        k(f"s_cmp_eq_u32 s{S_HALF}, 0"); k("s_cselect_b32 s70, 4, 1"); k("s_lshl_b32 s70, s70, 8"); k("v_subrev_u32 v21, s70, v20")
        k(f"v_mul_u32_u24 v26, {CPY}, v17"); k("v_lshl_add_u32 v26, v16, 2, v26"); k("v_add_u32 v26, s68, v26")
    def write_block(e, addr, P):
        for j, (lo, hi) in enumerate([(7,6),(5,4),(3,2),(1,0)]): k(f"v_cvt_pk_bf16_f32 v{P+j}, v{e+lo}, v{e+hi}")
        for j, (lo, hi) in enumerate([(8,7),(6,5),(4,3),(2,1)]): k(f"v_cvt_pk_bf16_f32 v{P+4+j}, v{e+lo}, v{e+hi}")
        k(f"v_mov_b32 v{P+8}, v{P+1}"); k(f"v_mov_b32 v{P+9}, v{P+2}"); k(f"v_mov_b32 v{P+10}, v{P+5}"); k(f"v_mov_b32 v{P+11}, v{P+6}")
        return [f"ds_write_b128 v{addr}, {vr(P,4)} offset:16",
                f"ds_write_b32 v{addr}, v{P} offset:{2*CPY + 12}", f"ds_write_b32 v{addr}, v{P+3} offset:{2*CPY + 24}",
                f"ds_write_b64 v{addr}, {vr(P+8,2)} offset:{2*CPY + 16}",
                f"ds_write_b32 v{addr}, v{P+4} offset:{CPY + 12}", f"ds_write_b32 v{addr}, v{P+7} offset:{CPY + 24}",
                f"ds_write_b64 v{addr}, {vr(P+4,2)} offset:{3*CPY + 8}", f"ds_write_b64 v{addr}, {vr(P+6,2)} offset:{3*CPY + 16}",
                f"ds_write_b64 v{addr}, {vr(P+10,2)} offset:{CPY + 16}"]
    WL = []
    def epack():
        WL.extend(write_block(EB, 20, 204)); WL.extend(write_block(EB + 9, 21, 216))
        k(f"v_cvt_pk_bf16_f32 v27, v{D}, v{D}")
    def ewrite():
        k(f"s_cmp_eq_u32 s{S_HALF}, 0"); k("s_cselect_b64 exec, -1, 0")
        k.lds(f"ds_write_b32 v26, v176 offset:{2*2044}")
        k("s_mov_b64 exec, -1")
        for w in WL: k.lds(w)
        k("v_mov_b32 v31, s68"); k("s_cselect_b64 exec, 1, 0")
        k.lds(f"ds_write_b16 v31, v27 offset:{CPY + 2*2046}"); k.lds(f"ds_write_b16 v31, v27 offset:{3*CPY + 2*2044}")
        k("s_mov_b64 exec, -1")
    def u_flag():
        tag_check(k, 244)
        k(f"v_mov_b32 v245, {L_FLAG + 80}"); k(f"v_mov_b32 v244, s{S_TAG}"); k.lds("ds_write_b32 v245, v244")
        k("v_and_b32 v246, 31, v1"); k("v_lshlrev_b32 v246, 7, v246")
        k(f"s_lshr_b32 s79, s{S_CHAN}, 7"); k("s_lshl_b32 s79, s79, 12"); k(f"s_add_u32 s79, s79, {LY.WS_FU}")
        k(f"s_lshl_b32 s90, s{S_CHAN}, 12"); k(f"s_add_u32 s90, s90, {LY.WS_UT}")
        flag_issue(k, 246, 79, 247, "fu")
    def uload():
        flag_check(k, 246, 79, 247, "fu")
        for p in range(4): k.vmem(f"buffer_load_dwordx4 {vr(160+4*p,4)}, v22, {sr(R_WS,4)}, s90 offen offset:{1024*p} sc1", "ut")
    def caddr():
        k("v_and_b32 v16, 31, v1"); k("v_lshrrev_b32 v17, 5, v1")
        k(f"v_mul_u32_u24 v249, {PL}, v17"); k("v_lshl_add_u32 v249, v16, 4, v249"); k("v_add_u32 v249, s71, v249")
        k("v_sub_u32 v18, 3, v16"); k("v_and_b32 v18, 3, v18"); k(f"v_mul_u32_u24 v18, {CPY - 2}, v18")
        k("v_sub_u32 v19, 31, v16"); k("v_lshl_add_u32 v19, v17, 3, v19"); k("v_lshl_add_u32 v18, v19, 1, v18")
        k(f"s_lshl_b32 s70, s{S_HALF}, 10"); k("s_sub_u32 s70, s68, s70"); k("v_add_u32 v18, s70, v18")
        k(f"s_lshl_b32 s70, s{S_HALF}, 8"); k("s_sub_u32 s70, 256, s70"); k("v_add_u32 v19, s70, v249")
        k("v_and_b32 v248, 3, v1"); k(f"v_mul_u32_u24 v248, {PL}, v248"); k("v_lshrrev_b32 v5, 2, v1"); k("v_lshl_add_u32 v248, v5, 4, v248"); k("v_add_u32 v248, s71, v248")
    def ustage():
        k.lds("ds_write_b128 v249, v[176:179]"); k.lds(f"ds_write_b128 v249, v[176:179] offset:{2*PL}")
        k.wait_vm("ut")
        for p in range(4): k.lds(f"ds_write_b128 v248, {vr(160+4*p,4)} offset:{p*256 + 512}")

    k(f"s_cmp_lt_u32 s{S_IDX}, 4"); k("s_cbranch_scc1 L_Haux")
    k.srd(R_U, S_U, 2048*1024); k.srd(R_A, S_W1, 512*3584); k.srd(R_B, S_W3, 512*3584)
    k("v_lshrrev_b32 v16, 4, v1"); k("v_bfe_u32 v17, v1, 1, 3"); k("v_xor_b32 v17, v17, v16")
    k("v_mul_u32_u24 v2, 3584, v16"); k("v_lshl_add_u32 v2, v17, 5, v2")
    k("v_and_b32 v17, 1, v1"); k("v_lshl_add_u32 v2, v17, 4, v2")
    k(f"s_lshl_b32 s70, s{S_FT}, 8"); k(f"s_mul_i32 s71, s{S_RW}, {8*3584}"); k("s_add_u32 s70, s70, s71")
    k("v_xor_b32 v3, 0x80, v2")
    k("v_add_u32 v2, s70, v2"); k("v_add_u32 v3, s70, v3")
    k("v_lshrrev_b32 v4, 2, v1"); k("v_lshlrev_b32 v4, 10, v4")
    k("v_and_b32 v17, 3, v1"); k("v_xor_b32 v17, v17, v16"); k("v_lshl_add_u32 v4, v17, 4, v4")
    k(f"s_lshl_b32 s70, s{S_MT}, 17"); k(f"s_lshl_b32 s71, s{S_RW}, 15"); k("s_add_u32 s70, s70, s71")
    k("v_add_u32 v4, s70, v4")
    k(f"s_lshl_b32 s72, s{S_RW}, 11")
    k(f"s_lshr_b32 s87, s{S_XCD}, 1"); k(f"s_mul_i32 s87, s87, {ROTQ}")
    def dma(sg):
        buf = bufaddr(sbuf(sg))
        k(f"s_add_u32 s88, s87, {sg}"); k("s_and_b32 s88, s88, 15")
        k(f"s_mul_i32 s89, s88, {32*3584}"); k("s_lshl_b32 s88, s88, 6")
        def one(lo, sb, so, v, srd):
            k(f"s_add_u32 m0, s72, {lo}"); k(f"s_add_u32 s73, s{sb}, {so}")
            k.vmem(f"buffer_load_dwordx4 v{v}, {sr(srd,4)}, s73 offen lds", ("w", sg))
        for m in range(2):
            for q in range(2): one(buf + m*8192 + q*1024, 89, q*4*3584, 2+m, R_A+4*m)
        for q in range(2): one(buf + 16384 + q*1024, 88, q*16*1024, 4, R_U)
    dma(0)
    if not NOPF: k("s_barrier")
    common_setup(); k.lds("ds_write_b128 v28, v[176:179]"); k.lds("ds_write_b128 v28, v[176:179] offset:32")
    st()
    for sg in range(1, PRE2): dma(sg)
    st()
    nxt = PRE2
    for s in range(16):
        k.wait_vm(("w", s))
        if k.lg.outstanding() and s in (0, 1, 15): k.wait_all_lg()
        k("s_barrier")
        if s in (0, 8): st()
        cnt = 0
        while nxt < 16 and nxt <= max(4, s + 4) and cnt < DPE:
            dma(nxt); nxt += 1; cnt += 1
        if s == 0: dsum()
        if s == TAGE: tag_issue(k, 244)
        if s == 12: eprep(); epack(); w2_addr(k, 2, 16, 17)
        if s == UFE: u_flag(); caddr()
        if s == UTE: uload()
        if s in (14, 15):
            for j in range(3): w2dma(k, 3*(s-14) + j)
    assert nxt == 16
    k.label("L_Hjoin")
    ewrite(); hs_set(1); ustage()
    PKR = list(range(184, 232, 4)) + [112, 116]
    for e in range(14):
        k(f"s_mov_b32 s67, {(16*21 + 8*e)*1024}")
        k.vmem(f"buffer_load_dwordx4 {vr(PKR[e],4)}, v2, {sr(R_A,4)}, s67 offen", "park")
    hs_wait(1)
    if CDEL:
        k.wait_all_vm(); k("v_mov_b32 v31, 1"); k.lds("ds_write_b32 v29, v31 offset:12")
    if CDEL == 1: mr_wait(k, 28, 180)
    if CDEL == 2:
        k(f"s_lshl_b32 s73, s{S_RW}, 2"); k("v_mov_b32 v180, s73"); lds_wait1(k, 180, L_FLAG + 96, 181)
    st()
    AC0, AC1, FR = 32, 48, 64
    steps = [(dl, kh) for dl in range(16) for kh in range(2)]
    def rd(i):
        dl, kh = steps[i]; b = FR + (i % 3) * 16
        o1 = 2*(2016 - 32*dl + 16*kh); o2 = o1 - 2048
        k.lds(f"ds_read_b64 {vr(b,2)}, v18 offset:{o1}", i); k.lds(f"ds_read_b64 {vr(b+2,2)}, v18 offset:{o1+8}", i)
        k.lds(f"ds_read_b128 {vr(b+8,4)}, v19 offset:{2*kh*PL + (16-dl)*16}", i)
        k.lds(f"ds_read_b128 {vr(b+12,4)}, v19 offset:{2*kh*PL + (48-dl)*16}", i)
        k.lds(f"ds_read_b64 {vr(b+4,2)}, v18 offset:{o2}", i); k.lds(f"ds_read_b64 {vr(b+6,2)}, v18 offset:{o2+8}", i)
    NCS = opt('ncs', 32)
    rd(0); rd(1)
    for i in range(NCS):
        b = FR + (i % 3) * 16
        k.wait_lg(i)
        if i == WFS and not CDEL:
            k.wait_vm(lambda t: isinstance(t, tuple) and t[0] == "w2"); k("v_mov_b32 v31, 1"); k.lds("ds_write_b32 v29, v31 offset:12")
        if i + 2 < NCS: rd(i + 2)
        k(f"v_mfma_f32_32x32x16_bf16 {vr(AC0,16)}, {vr(b,4)}, {vr(b+8,4)}, {'0' if i==0 else vr(AC0,16)}")
        k(f"v_mfma_f32_32x32x16_bf16 {vr(AC1,16)}, {vr(b,4)}, {vr(b+12,4)}, {'0' if i==0 else vr(AC1,16)}")
        k(f"v_mfma_f32_32x32x16_bf16 {vr(AC1,16)}, {vr(b+4,4)}, {vr(b+8,4)}, {vr(AC1,16)}")
    if HP2: k(f"s_setprio {HP2}")
    k("v_lshlrev_b32 v26, 4, v16"); k("v_lshl_add_u32 v26, v17, 3, v26")
    k(f"s_lshl_b32 s70, s{S_HALF}, 9"); k("s_add_u32 s70, s70, s71"); k("v_add_u32 v26, s70, v26")
    for q in range(4): k.lds(f"ds_read_b64 {vr(FR+2*q,2)}, v26 offset:{q*PL + 512}", "uu")
    st()
    mr_wait(k, 28, 180)
    k(f"s_cmp_eq_u32 s{S_HALF}, 1"); k("s_cselect_b64 exec, -1, 0")
    for i in range(16): k(f"v_swap_b32 v{AC0+i}, v{AC1+i}")
    k("s_mov_b64 exec, -1")
    for q in range(4): k.lds(f"ds_write_b128 v24, {vr(AC1+4*q,4)} offset:{1024*q}")
    hs_set(2)
    for j in range(8):
        k(f"v_lshlrev_b32 v{80+2*j}, 16, v{FR+j}"); k(f"v_and_b32 v{81+2*j}, 0xffff0000, v{FR+j}")
    for j in range(16): k(f"v_mul_f32 v{80+j}, v{DSK}, v{80+j}")
    for j in range(8): k(f"v_cvt_pk_bf16_f32 v{FR+j}, v{80+2*j}, v{81+2*j}")
    for j in range(8):
        k(f"v_lshlrev_b32 v{80+2*j}, 16, v{FR+j}"); k(f"v_and_b32 v{81+2*j}, 0xffff0000, v{FR+j}")
    k("v_lshlrev_b32 v26, 6, v16"); k("v_lshl_add_u32 v26, v17, 3, v26"); k("v_add_u32 v26, s71, v26")
    k(f"s_lshl_b32 s74, s{S_CHAN}, 12"); k(f"s_lshl_b32 s73, s{S_HALF}, 11"); k("s_add_u32 s74, s74, s73"); k(f"s_add_u32 s74, s74, {LY.WS_AT}")
    k(f"s_lshr_b32 s72, s{S_CHAN}, 6"); k("s_lshl_b32 s72, s72, 7"); k(f"s_lshl_b32 s73, s{S_HALF}, 6"); k("s_add_u32 s72, s72, s73")
    k(f"s_and_b32 s73, s{S_CHAN}, 63"); k("s_add_u32 s72, s72, s73"); k("s_lshl_b32 s72, s72, 7"); k(f"s_add_u32 s72, s72, {LY.WS_FA}")
    hs_wait(2)
    st()
    for q in range(4): k.lds(f"ds_read_b128 {vr(AC1+4*q,4)}, v25 offset:{1024*q}", "x")
    k.wait_all_lg()
    for r in range(16): k(f"v_add_f32 v{AC0+r}, v{AC0+r}, v{AC1+r}")
    for j in range(8): k(f"v_cvt_pk_bf16_f32 v{AC1+j}, v{AC0+2*j}, v{AC0+2*j+1}")
    for j in range(8):
        k(f"v_lshlrev_b32 v{AC0+2*j}, 16, v{AC1+j}"); k(f"v_and_b32 v{AC0+2*j+1}, 0xffff0000, v{AC1+j}")
    for r in range(16): k(f"v_add_f32 v{AC0+r}, v{AC0+r}, v{80+r}")
    for j in range(8): k(f"v_cvt_pk_bf16_f32 v{AC1+j}, v{AC0+2*j}, v{AC0+2*j+1}")
    for q in range(4): k.lds(f"ds_write_b64 v26, {vr(AC1+2*q,2)} offset:{16*q}")
    for j in range(2): k.lds(f"ds_read_b128 {vr(FR+4*j,4)}, v23 offset:{1024*j}")
    k.wait_all_lg()
    for j in range(2): k.vmem(f"buffer_store_dwordx4 {vr(FR+4*j,4)}, v22, {sr(R_WS,4)}, s74 offen offset:{1024*j} sc1")
    st()
    k(f"v_add_u32 v26, s{S_TABB}, v22")
    def pw(lo, hi):
        for e in range(lo, hi):
            if e < 8: k.lds(f"ds_write_b128 v26, {vr(PKR[e],4)} offset:{1024*e}")
            else: k.lds(f"ds_write_b128 v23, {vr(PKR[e],4)} offset:{1024*(e-8)}")
    k.wait_vm("park"); pw(0, PWA)
    k.wait_all_vm()
    publish(k, 72, 16)
    pw(PWA, 14)
    k.wait_all_lg(); k("v_mov_b32 v31, 2"); k.lds("ds_write_b32 v29, v31 offset:12")
    st()
    st.flush(S_RW, LY.WS_STAMP, S_WS)
    k("s_endpgm")
    k.label("L_Haux"); k.reset_counters(); k.vm = copy.deepcopy(vm0); WL.clear()
    Lt = newlabel("notag")
    k("s_cmp_lg_u32 s2, 0"); k(f"s_cbranch_scc1 {Lt}"); k(f"s_cmp_lg_u32 s{S_RW}, 3"); k(f"s_cbranch_scc1 {Lt}")
    k("s_memrealtime s[74:75]"); k("s_waitcnt lgkmcnt(0)"); k("s_or_b32 s74, s74, 1")
    k("v_mov_b32 v16, s74"); k("v_mov_b32 v17, 0"); k("s_mov_b64 exec, 1")
    k(f"global_store_dword v17, v16, {sr(S_DBG,2)} sc1"); k("s_mov_b64 exec, -1")
    k.label(Lt)
    common_setup()
    for i in range(4): k(f"v_mov_b32 v{8+i}, 1")
    k.lds("ds_write_b128 v28, v[8:11] offset:32")
    k.lds("ds_write_b128 v28, v[8:11]")
    k("s_waitcnt vmcnt(0) lgkmcnt(0)"); k.vm.all_done(); k.lg.all_done()
    k("s_branch L_kgen"); k.label("L_Haux_ret")
    tag_issue(k, 244)
    k("s_waitcnt lgkmcnt(0)"); k("s_barrier")
    k(f"s_lshl_b32 s70, s{S_XCD}, 2"); k(f"s_add_u32 s70, s70, s{S_IDX}"); k("s_lshl_b32 s70, s70, 2"); k(f"s_add_u32 s70, s70, s{S_RW}"); k("s_mul_i32 s70, s70, 112")
    k("v_min_u32 v5, 55, v1"); k("v_add_u32 v5, s70, v5"); k("v_lshlrev_b32 v5, 7, v5")
    k.vmem(f"global_load_dword v252, v5, {sr(S_W2,2)}", "pf"); k(f"v_add_u32 v5, {56*128}, v5")
    k.vmem(f"global_load_dword v252, v5, {sr(S_W2,2)}", "pf")
    dsum(); hs_set(0)
    u_flag(); eprep(); epack(); w2_addr(k, 2, 16, 17); caddr(); uload(); hs_wait(0)
    k.wait_all_vm()
    k("s_branch L_Hjoin")

def prefetch_g(k):
    k(f"s_cmp_eq_u32 s{S_RW}, 0"); k(f"s_cselect_b32 s92, s{S_W1}, s{S_W3}"); k(f"s_cselect_b32 s93, s{S_W1+1}, s{S_W3+1}")
    k(f"s_cmp_ge_u32 s{S_RW}, 2"); k(f"s_cselect_b32 s92, s{S_U}, s92"); k(f"s_cselect_b32 s93, s{S_U+1}, s93"); k("s_cselect_b64 vcc, -1, 0")
    k(f"s_lshr_b32 s94, s{S_XCD}, 1"); k("s_lshl_b32 s94, s94, 5"); k(f"s_add_u32 s94, s94, s{S_IDX}"); k("s_lshl_b32 s94, s94, 2")
    k("v_lshrrev_b32 v9, 4, v1"); k("v_add_u32 v9, s94, v9"); k("v_mul_u32_u24 v9, 3584, v9")
    k("v_and_b32 v10, 15, v1"); k("v_min_u32 v10, 13, v10"); k("v_lshl_add_u32 v9, v10, 7, v9")
    k(f"s_and_b32 s94, s{S_XCD}, 1"); k("s_mul_i32 s94, s94, 1792"); k("v_add_u32 v9, s94, v9")
    k(f"s_lshl_b32 s94, s{S_XCD}, 5"); k(f"s_add_u32 s94, s94, s{S_IDX}"); k("s_lshl_b32 s94, s94, 13")
    k(f"s_and_b32 s95, s{S_RW}, 1"); k("s_lshl_b32 s95, s95, 12"); k("s_add_u32 s94, s94, s95")
    k("v_and_b32 v10, 31, v1"); k("v_lshlrev_b32 v10, 7, v10"); k("v_add_u32 v10, s94, v10")
    k("v_cndmask_b32 v9, v9, v10, vcc")
    if not NOPF: k.vmem("global_load_dword v252, v9, s[92:93]", "pf")

def g2_setup(k):
    w2_addr(k, 2, 4, 5); k.srd(R_B, S_OUT, 2048*1024)
    k("v_bfe_u32 v4, v1, 2, 2"); k("v_lshrrev_b32 v5, 5, v1"); k("v_lshl_add_u32 v5, v5, 2, v4"); k("v_lshlrev_b32 v6, 7, v5")
    k("v_and_b32 v4, 2, v4"); k("v_bfe_u32 v5, v1, 4, 1"); k("v_xor_b32 v4, v4, v5"); k("v_lshl_add_u32 v6, v4, 5, v6")
    k("v_and_b32 v4, 3, v1"); k("v_lshl_add_u32 v6, v4, 3, v6")
    k(f"s_lshl_b32 s64, s{S_CH}, 6"); k("v_xor_b32 v6, s64, v6")
    k("v_xor_b32 v7, 64, v6"); k("v_add_u32 v6, s66, v6"); k("v_add_u32 v7, s66, v7")
    k("v_lshlrev_b32 v8, 4, v1")

def gen_G2(k, st):
    ACC = 24
    pool = list(range(88, 256, 8))
    wreg = {}; hreg = {}
    nd = [W2SLOTS]; nr = [0]
    NOWN = 21
    def wread():
        i = nr[0]; b = pool.pop(0); wreg[i] = b
        if i < NOWN: areg = 6; off = slot_off(i % W2SLOTS); k.wait_vm(("w2", i))
        else:
            if i == NOWN:
                k(f"s_lshl_b32 s71, s{S_RW}, 4"); k("v_mov_b32 v22, s71"); lds_wait1(k, 22, L_FLAG + 12, 23, 2)
                k(f"s_sub_u32 s70, s{S_TABB}, s66"); k("v_add_u32 v22, s70, v6"); k("v_add_u32 v23, s70, v7")
            if i == 25: k(f"v_subrev_u32 v22, {L_W2 - L_UP}, v6"); k(f"v_subrev_u32 v23, {L_W2 - L_UP}, v7")
            areg = 22; off = ((i - 21) if i < 25 else (i - 25)) * 2048
        for dt in range(2):
            for s2 in range(2):
                k.lds(f"ds_read_b64_tr_b16 {vr(b+4*dt+2*s2,2)}, v{areg+dt} offset:{off + s2*1024}", ("wf", i))
        nr[0] += 1
    def more_dma():
        while nd[0] < NOWN and nd[0] - W2SLOTS < nr[0] - 1:
            k.wait_lg(("wf", nd[0] - W2SLOTS)); w2dma(k, nd[0]); nd[0] += 1
    for j in range(6): wread()
    k("v_min_u32 v9, 6, v1"); k("v_lshlrev_b32 v9, 7, v9")
    k(f"s_lshl_b32 s82, s{S_TT}, 5"); k(f"s_mul_i32 s69, s{S_RW}, 7"); k("s_add_u32 s82, s82, s69"); k("s_lshl_b32 s82, s82, 7"); k(f"s_add_u32 s82, s82, {LY.WS_FH}")
    k(f"s_mul_i32 s68, s{S_TT}, 224"); k("s_lshl_b32 s69, s69, 2"); k("s_add_u32 s68, s68, s69"); k("s_lshl_b32 s68, s68, 10")
    k(f"s_mul_i32 s69, s{S_HALF}, {112*1024}"); k(f"s_sub_u32 s70, {112*1024}, s69"); k("s_add_u32 s69, s68, s69"); k("s_add_u32 s68, s68, s70")
    st()
    more_dma()
    for j in range(6, NWR):
        wread(); more_dma()
        if j == FJ: k.vmem(f"buffer_load_dword v10, v9, {sr(R_WS,4)}, s82 offen sc1", "fh")
    st()
    k.wait_vm("fh"); k(f"v_cmp_eq_u32 vcc, s{S_TAG}, v10"); k("s_nop 0"); k("s_mov_b32 s83, vcc_lo")
    def need_group(gi):
        def slow(c):
            L = newlabel("gp")
            c(f"s_mov_b32 s{S_CNT}, 0"); c.label(L)
            c(f"buffer_load_dword v10, v9, {sr(R_WS,4)}, s82 offen sc1"); c("s_waitcnt vmcnt(0)")
            c(f"v_cmp_eq_u32 vcc, s{S_TAG}, v10"); c("s_nop 0"); c("s_mov_b32 s83, vcc_lo"); c(f"s_bitcmp1_b32 s83, {gi}")
            spin_tail(c, L, True, SPIN_MAX)
        k(f"s_bitcmp1_b32 s83, {gi}"); cold(k, "s_cbranch_scc0", slow)
    nh = [0]
    def hload():
        i = nh[0]; b = pool.pop(0); hreg[i] = b
        if i % 4 == 0:
            need_group(i // 4)
            if i == 0: st()
            else: k("s_add_u32 s68, s68, 4096"); k("s_add_u32 s69, s69, 4096")
        for tk in range(2):
            k.vmem(f"buffer_load_dwordx4 {vr(b+4*tk,4)}, v8, {sr(R_WS,4)}, s{69-tk} offen offset:{(i%4)*1024} sc1", ("h", i))
        nh[0] += 1
    while pool: hload()
    k("v_and_b32 v20, 31, v1"); k("v_lshrrev_b32 v11, 5, v1")
    k(f"s_lshl_b32 s72, s{S_NT}, 7"); k(f"s_lshr_b32 s73, s{S_TT}, 4"); k("s_lshl_b32 s73, s73, 6"); k("s_add_u32 s72, s72, s73")
    k(f"s_lshl_b32 s73, s{S_CH}, 5"); k("s_add_u32 s72, s72, s73"); k("s_lshl_b32 s72, s72, 7"); k(f"s_add_u32 s72, s72, {LY.WS_FA - LY.WS_FH}")
    k("v_lshlrev_b32 v12, 7, v20"); k("v_add_u32 v12, s72, v12")
    k(f"s_lshl_b32 s72, s{S_TT}, 9"); k(f"s_add_u32 s72, s72, {LY.WS_FG - LY.WS_FH}")
    k("v_and_b32 v13, 3, v1"); k("v_lshlrev_b32 v13, 7, v13"); k("v_add_u32 v13, s72, v13")
    k("v_cmp_gt_u32 vcc, 32, v1"); k("s_nop 1"); k("v_cndmask_b32 v12, v13, v12, vcc")
    k(f"s_mov_b32 s76, {LY.WS_FH}")
    k(f"s_lshl_b32 s72, s{S_TT}, 6"); k(f"s_lshl_b32 s73, s{S_HALF}, 5"); k("s_add_u32 s72, s72, s73")
    k(f"s_lshl_b32 s74, s{S_NT}, 6"); k(f"s_lshl_b32 s73, s{S_CH}, 5"); k("s_add_u32 s74, s74, s73")
    k("v_add_u32 v21, s72, v20")
    k("v_lshlrev_b32 v15, 2, v21"); k("v_lshlrev_b32 v16, 1, v21"); k("v_lshl_add_u32 v16, v11, 14, v16")
    k("s_lshl_b32 s75, s74, 12"); k(f"s_add_u32 s75, s75, {LY.WS_AT}")
    k("v_add_u32 v4, s66, v8")
    for a in range(1, 4):
        k(f"s_xor_b32 s72, s{S_RW}, {a}"); k("s_mul_i32 s72, s72, 6144"); k(f"s_add_u32 s72, s72, {L_W2 + (a-1)*STG}"); k(f"v_add_u32 v{16+a}, s72, v8")
    k("v_lshlrev_b32 v5, 10, v21"); k("v_lshl_add_u32 v5, v11, 3, v5"); k("s_lshl_b32 s77, s74, 1")
    AV = [None]
    def ag_load():
        flag_check(k, 12, 76, 13, "fa")
        b0 = pool.pop(0); b1 = pool.pop(0); AV[0] = list(range(b0, b0+8)) + list(range(b1, b1+8))
        k(f"s_mov_b32 s73, {LY.WS_G}")
        k.vmem(f"buffer_load_dword v14, v15, {sr(R_WS,4)}, s73 offen sc1", "g")
        for r in range(16): k(f"v_mov_b32 v{AV[0][r]}, 0")
        for r in range(16):
            q, i = r >> 2, r & 3
            k(f"s_add_u32 s73, s75, {(8*q+i)*4096}")
            k.vmem(f"buffer_load_short_d16_hi v{AV[0][r]}, v16, {sr(R_WS,4)}, s73 offen sc1", "a")
    def mf(i, a):
        c = ACC + 16*a
        k(f"v_mfma_f32_32x32x16_bf16 {vr(c,16)}, {vr(wreg[i]+4*(a>>1),4)}, {vr(hreg[i]+4*(a&1),4)}, {'0' if i==0 else vr(c,16)}")
    NK = 28 - RT
    for i in range(NK):
        k.wait_both(("h", i), ("wf", i))
        if i in (1, 9, 18) and G2F: st()
        for a in ((3, 2, 1, 0) if i == 27 else (0, 1, 2, 3)): mf(i, a)
        pool.append(wreg[i]); pool.append(hreg[i])
        if nh[0] < 28: hload()
        if nr[0] < NOWN: wread(); more_dma()
        elif nh[0] < 28: hload()
        if i >= PWS:
            for _ in range(2):
                if nr[0] < 28 and len(pool) > 0: wread()
        if i == AGI: flag_issue(k, 12, 76, 13, "fa")
        if i == min(26, AGI + 6): ag_load()
    if RT:
        assert nh[0] == 28 and nr[0] == 28
        k.wait_all_lg()
        pw = []
        for a in (3, 2, 1, 0):
            for n, i in enumerate(range(NK, 28)):
                k.wait_vm(("h", i)); mf(i, a)
                if n == 1 and pw: k.nop(10)
                if n >= 1 and pw: k.lds(pw.pop(0))
            for w in pw: k.lds(w)
            pw = [f"ds_write_b128 v4, {vr(ACC+16*a+4*q,4)} offset:{(a-1)*STG + 1024*q}" for q in range(4)] if a else []
            if a == AGA: ag_load()
        for i in range(NK, 28): pool.append(wreg[i]); pool.append(hreg[i])
    st()
    AVr = AV[0]
    regs = [r for b in sorted(pool) for r in range(b, b+8)]
    def take(n):
        for s0 in range(0, len(regs) - n + 1):
            if regs[s0] % 4 == 0 and regs[s0+n-1] == regs[s0] + n - 1:
                out = regs[s0]; del regs[s0:s0+n]; return out
        raise Exception("no regs")
    PR = [take(16) for _ in range(3)]; OP = take(8); OWN = ACC
    if not RT: k.nop(9)
    for a in ((3, 2, 1) if not RT else ()):
        for q in range(4): k.lds(f"ds_write_b128 v4, {vr(ACC+16*a+4*q,4)} offset:{(a-1)*STG + 1024*q}")
    k.wait_all_vm()
    k("v_sub_f32 v15, 1.0, v14"); rbf(k, 15)
    for r in range(16): k(f"v_mul_f32 v{AVr[r]}, v14, v{AVr[r]}")
    for j in range(8): k(f"v_cvt_pk_bf16_f32 v{AVr[2*j]}, v{AVr[2*j]}, v{AVr[2*j+1]}")
    for j in range(8): k(f"v_and_b32 v{AVr[2*j+1]}, 0xffff0000, v{AVr[2*j]}"); k(f"v_lshlrev_b32 v{AVr[2*j]}, 16, v{AVr[2*j]}")
    if OST:
        k("v_bfe_u32 v13, v20, 1, 2"); k("v_lshlrev_b32 v9, 6, v20"); k("v_lshl_add_u32 v9, v13, 4, v9"); k("v_lshl_add_u32 v9, v11, 3, v9"); k("v_add_u32 v9, s66, v9")
        for q in range(1, 4): k(f"v_xor_b32 v{9+q}, {16*q}, v9")
        k("v_lshrrev_b32 v5, 2, v1"); k("v_bfe_u32 v13, v1, 3, 2"); k("v_and_b32 v16, 3, v1"); k("v_xor_b32 v13, v13, v16")
        k(f"s_lshl_b32 s72, s{S_TT}, 6"); k(f"s_lshl_b32 s73, s{S_HALF}, 5"); k("s_add_u32 s72, s72, s73")
        k("v_add_u32 v5, s72, v5"); k("v_lshlrev_b32 v5, 10, v5"); k("v_lshl_add_u32 v5, v13, 4, v5"); k("s_add_u32 s78, s77, 16384")
    k.wait_all_lg(); k("s_barrier")
    st()
    for src in range(3):
        for q in range(4): k.lds(f"ds_read_b128 {vr(PR[src]+4*q,4)}, v{17+src} offset:{1024*q}", src)
    for src in range(3):
        k.wait_lg(src)
        if PKE:
            for r in range(0, 16, 2): k(f"v_pk_add_f32 {vr(OWN+r,2)}, {vr(OWN+r,2)}, {vr(PR[src]+r,2)}")
        else:
            for r in range(16): k(f"v_add_f32 v{OWN+r}, v{OWN+r}, v{PR[src]+r}")
    for j in range(8): k(f"v_cvt_pk_bf16_f32 v{OWN+2*j}, v{OWN+2*j}, v{OWN+2*j+1}")
    for j in range(8): k(f"v_and_b32 v{OWN+2*j+1}, 0xffff0000, v{OWN+2*j}"); k(f"v_lshlrev_b32 v{OWN+2*j}, 16, v{OWN+2*j}")
    if PKE:
        for r in range(0, 16, 2): k(f"v_pk_mul_f32 {vr(OWN+r,2)}, {vr(OWN+r,2)}, v[14:15] op_sel:[0,1] op_sel_hi:[1,1]")
    else:
        for r in range(16): k(f"v_mul_f32 v{OWN+r}, v15, v{OWN+r}")
    for j in range(8): k(f"v_cvt_pk_bf16_f32 v{OWN+2*j}, v{OWN+2*j}, v{OWN+2*j+1}")
    for j in range(8): k(f"v_and_b32 v{OWN+2*j+1}, 0xffff0000, v{OWN+2*j}"); k(f"v_lshlrev_b32 v{OWN+2*j}, 16, v{OWN+2*j}")
    if PKE:
        for r in range(0, 16, 2): k(f"v_pk_add_f32 {vr(OWN+r,2)}, {vr(OWN+r,2)}, {vr(AVr[r],2)}")
    else:
        for r in range(16): k(f"v_add_f32 v{OWN+r}, v{OWN+r}, v{AVr[r]}")
    for j in range(8): k(f"v_cvt_pk_bf16_f32 v{OP+j}, v{OWN+2*j}, v{OWN+2*j+1}")
    if OST == 0:
        for q in range(4):
            k.vmem(f"buffer_store_dwordx2 {vr(OP+2*q,2)}, v5, {sr(R_B,4)}, s77 offen offset:{16*q}{OMOD}")
    else:
        for q in range(4): k.lds(f"ds_write_b64 v{9 + q}, {vr(OP+2*q,2)} offset:4096")
        for j in range(2): k.lds(f"ds_read_b128 {vr(PR[0]+4*j,4)}, v4 offset:{4096 + 1024*j}", "o")
        k.wait_all_lg()
        for j in range(2):
            k.vmem(f"buffer_store_dwordx4 {vr(PR[0]+4*j,4)}, v5, {sr(R_B,4)}, s{77+j} offen{OMOD}")
    st()
    st.flush(S_RW, LY.WS_STAMP, S_WS)
    k("s_endpgm")

def gen_M(k, st):
    k.srd(R_WS, S_WS, LY.WS_SIZE_USED)
    g2_setup(k)
    k(f"s_cmp_lt_u32 s{S_IDX}, 4"); k("s_cbranch_scc1 L_Maux")
    if not NOPF: k("s_barrier"); prefetch_g(k)
    k("v_bfe_u32 v22, v1, 4, 1"); k("v_lshrrev_b32 v23, 5, v1"); k("v_bfe_u32 v24, v1, 2, 2")
    k("v_lshlrev_b32 v25, 13, v22"); k("v_lshl_add_u32 v25, v23, 11, v25"); k("v_lshl_add_u32 v25, v24, 8, v25")
    k("v_lshl_add_u32 v26, v22, 2, v24"); k("v_lshl_add_u32 v25, v26, 5, v25")
    k("v_and_b32 v26, 3, v1"); k("v_lshl_add_u32 v25, v26, 3, v25")
    k(f"s_lshl_b32 s78, s{S_HALF}, 7"); k("v_xor_b32 v25, s78, v25"); k(f"v_add_u32 v25, {RB}, v25")
    for t in range(4):
        k(f"v_xor_b32 v{10+t}, {32*t}, v25"); k(f"v_add_u32 v{14+t}, {3*STG}, v{10+t}")
    k("v_and_b32 v25, 31, v1"); k("v_bfe_u32 v26, v1, 2, 2"); k("v_xor_b32 v26, v26, v23")
    k("v_lshlrev_b32 v25, 6, v25"); k("v_lshl_add_u32 v25, v26, 4, v25")
    k(f"s_lshl_b32 s78, s{S_CH}, 12"); k(f"s_add_u32 s78, s78, {RB + 16384}")
    k("v_xor_b32 v19, 32, v25"); k("v_add_u32 v18, s78, v25"); k("v_add_u32 v19, s78, v19")
    k(f"v_add_u32 v20, {3*STG}, v18"); k(f"v_add_u32 v21, {3*STG}, v19")
    for t in range(4): k(f"v_subrev_u32 v{22+t}, {RB - L_B5}, v{10+t}")
    for e in range(2): k(f"v_subrev_u32 v{26+e}, {RB - L_B5}, v{18+e}")
    k(f"s_lshl_b32 s78, s{S_MT}, 2"); k(f"s_lshl_b32 s79, s{S_CH}, 1"); k("s_add_u32 s78, s78, s79"); k("s_mul_i32 s78, s78, 112")
    k(f"s_lshl_b32 s79, s{S_FT}, 3"); k("s_add_u32 s78, s78, s79"); k(f"s_lshl_b32 s79, s{S_HALF}, 2"); k("s_add_u32 s78, s78, s79"); k("s_lshl_b32 s78, s78, 10")
    k(f"s_add_u32 s79, s78, {112*1024}")
    k(f"s_lshl_b32 s81, s{S_MT}, 1"); k(f"s_add_u32 s81, s81, s{S_CH}"); k("s_lshl_b32 s81, s81, 5")
    k(f"s_lshl_b32 s82, s{S_FT}, 1"); k("s_add_u32 s81, s81, s82"); k(f"s_add_u32 s81, s81, s{S_HALF}"); k("s_lshl_b32 s81, s81, 7")
    k(f"s_add_u32 s81, s81, {LY.WS_FH}")
    k(f"s_lshl_b32 s70, s{S_RW}, 2"); k(f"s_add_u32 s70, s70, {L_FLAG + 64}"); k("v_mov_b32 v28, s70"); k("v_mov_b32 v29, 1"); k(f"v_mov_b32 v30, {L_FLAG + 80}")
    if WARM:
        k("v_mov_b32 v31, 0"); k("v_lshlrev_b32 v9, 2, v1"); k("s_mov_b32 exec_hi, 0")
        k.vmem(f"buffer_store_dword v31, v9, {sr(R_WS,4)}, s81 offen sc1", "wm")
        k.vmem(f"buffer_store_dword v31, v9, {sr(R_WS,4)}, s78 offen sc1", "wm")
        k(f"s_lshr_b32 s72, s{S_CHAN}, 6"); k("s_lshl_b32 s72, s72, 7"); k(f"s_lshl_b32 s73, s{S_HALF}, 6"); k("s_add_u32 s72, s72, s73")
        k(f"s_and_b32 s73, s{S_CHAN}, 63"); k("s_add_u32 s72, s72, s73"); k("s_lshl_b32 s72, s72, 7"); k(f"s_add_u32 s72, s72, {LY.WS_FA}")
        k.vmem(f"buffer_store_dword v31, v9, {sr(R_WS,4)}, s72 offen sc1", "wm")
        k(f"s_lshl_b32 s72, s{S_CHAN}, 12"); k(f"s_lshl_b32 s73, s{S_HALF}, 11"); k("s_add_u32 s72, s72, s73"); k(f"s_add_u32 s72, s72, {LY.WS_AT}")
        k.vmem(f"buffer_store_dword v31, v9, {sr(R_WS,4)}, s72 offen sc1", "wm")
        k("s_mov_b32 exec_hi, -1")
        k(f"s_lshl_b32 s72, s{S_TT}, 16"); k(f"s_lshl_b32 s73, s{S_NT}, 7"); k("s_add_u32 s72, s72, s73")
        k.vmem(f"buffer_load_dword v251, v31, {sr(R_B,4)}, s72 offen", "wm")
    k.wait_vm("p")
    st()
    k.label("L_kgen")
    kgen(k)
    k(f"s_cmp_ge_u32 s{S_WAVE}, 4"); k("s_cbranch_scc1 L_Haux_ret")
    ACC, AF, BF = 64, 32, 48
    def aread(kk, t, dst):
        sg = kk >> 1; e = kk & 1; b = sbuf(sg)
        reg = (10 if b < 3 else 14) + t; off = (b if b < 3 else b - 3) * STG
        if b == 5: reg = 22 + t; off = 0
        for s2 in range(2):
            k.lds(f"ds_read_b64_tr_b16 {vr(dst+2*s2,2)}, v{reg} offset:{off + e*4096 + s2*1024}", ("a", kk, t))
    def bread(kk, dst):
        sg = kk >> 1; e = kk & 1; b = sbuf(sg)
        reg = (18 if b < 3 else 20) + e; off = (b if b < 3 else b - 3) * STG
        if b == 5: reg = 26 + e; off = 0
        for tk in range(2):
            k.lds(f"ds_read_b128 {vr(dst+4*tk,4)}, v{reg} offset:{off + tk*2048}", ("b", kk))
    def mfma(t, tk, a, b, first):
        c = ACC + 16*(2*t+tk)
        k(f"v_mfma_f32_32x32x16_bf16 {vr(c,16)}, {vr(a,4)}, {vr(b,4)}, {'0' if first else vr(c,16)}")
    st()
    if WARM: k.wait_all_vm()
    k.wait_all_lg(); k("s_barrier")
    st()
    TK = 28
    TB = {28: BF + 0, 29: BF + 8, 30: 192, 31: 200}
    TA = [{28+i: 208 + 4*i for i in range(4)}, {28+i: 224 + 4*i for i in range(4)}]
    bread(0, BF)
    for t in range(4): aread(0, t, AF+4*t)
    for kk in range(TK):
        if kk & 1: k("s_barrier")
        if kk == 16 and not G2F: st()
        bread(kk + 1, BF + 8*((kk+1) & 1))
        for t in range(4):
            k.wait_lg(lambda x: x == ("a", kk, t) or x == ("b", kk))
            for tk in range(2): mfma(t, tk, AF+4*t, BF+8*(kk&1)+4*tk, kk == 0)
            if kk + 1 < TK: aread(kk + 1, t, AF+4*t)
            elif t < 2: aread(28 + t, 0, TA[0][28+t])
    k("s_barrier")
    bread(29, TB[29]); aread(30, 0, TA[0][30]); bread(30, TB[30]); aread(31, 0, TA[0][31]); bread(31, TB[31])
    k.lds("ds_read_b32 v30, v30", "tg")
    if MPRIO: k(f"s_setprio {MPRIO}")
    TMP = 32
    def epi(t):
        L = []
        for tk in range(2):
            A = ACC + 16*(2*t+tk); T = TMP + 8*tk
            L += [f"v_mul_f32 v{T+r}, {LOG2E:#x}, v{A+r}" for r in range(8)]
            L += [f"v_exp_f32 v{T+r}, -v{T+r}" for r in range(8)]
            L += [f"v_mul_f32 v{A+r}, v{A+r}, v{A+8+r}" for r in range(8)]
            L += [f"v_add_f32 v{T+r}, 1.0, v{T+r}" for r in range(8)]
            L += [f"v_rcp_f32 v{T+r}, v{T+r}" for r in range(8)]
            L += ["s_nop 0"]
            L += [f"v_mul_f32 v{A+r}, v{A+r}, v{T+r}" for r in range(8)]
            L += [f"v_cvt_pk_bf16_f32 v{A+8+j}, v{A+2*j}, v{A+2*j+1}" for j in range(4)]
            L += [("st", f"buffer_store_dwordx4 {vr(A+8,4)}, v8, {sr(R_WS,4)}, s{78+tk} offen offset:{t*1024} sc1")]
        return L
    def emit(x):
        if isinstance(x, tuple): k.vmem(x[1], "hst")
        else: k(x)
    for t in range(4):
        ep = epi(t - 1) if t else []
        per = -(-len(ep) // 7)
        n = 0
        for i, kk in enumerate(range(28, 32)):
            for tk in range(2):
                k.wait_lg(lambda x: x == ("a", kk, t) or x == ("b", kk))
                mfma(t, tk, TA[t&1][kk], TB[kk]+4*tk, False)
                if tk == 0 and t < 3: aread(kk, t + 1, TA[(t+1)&1][kk])
                if n == 0 and ep: k.nop(10)
                else:
                    for x in ep[:per]: emit(x)
                    ep = ep[per:]
                n += 1
            if t == 3 and i == 0:
                k.wait_all_lg(); k.lds("ds_write_b32 v28, v29")
                st()
        for x in ep: emit(x)
    k.nop(10)
    ep3 = epi(3)
    for i_, x in enumerate(ep3):
        emit(x)
        if CDEL == 2 and i_ == len(ep3) - CDA: k.lds("ds_write_b32 v28, v29 offset:32")
    st()
    k(f"v_mov_b32 v28, {L_FLAG + 64}"); mr_wait(k, 28, 24)
    k(f"v_readfirstlane_b32 s{S_TAG}, v30")
    for j in range(6, 9): w2dma(k, j)
    k(f"s_lshl_b32 s71, s{S_RW}, 4"); k("v_mov_b32 v24, s71")
    k.wait_vm("hst"); publish(k, 81, 22)
    lds_wait1(k, 24, L_FLAG + 12, 25)
    k.label("L_G2")
    gen_G2(k, st)

def gen_Maux(k, st):
    k.srd(R_U, S_U, 2048*1024)
    k(f"s_lshl_b32 s76, s{S_XCD}, 2"); k(f"s_add_u32 s76, s76, s{S_IDX}")
    k("v_lshrrev_b32 v22, 4, v1"); k("v_bfe_u32 v23, v1, 1, 3"); k("v_xor_b32 v23, v23, v22")
    k("v_lshlrev_b32 v10, 10, v22"); k("v_lshl_add_u32 v10, v23, 5, v10"); k("v_and_b32 v23, 1, v1"); k("v_lshl_add_u32 v10, v23, 4, v10")
    k("v_xor_b32 v11, 0x80, v10")
    k(f"s_lshl_b32 s77, s{S_RW}, 8"); k("v_add_u32 v10, s77, v10"); k("v_add_u32 v11, s77, v11")
    k("s_lshl_b32 s77, s76, 16"); k(f"s_lshl_b32 s78, s{S_RW}, 14"); k(f"s_add_u32 s78, s78, {L_AUX}")
    for tq in range(16):
        k(f"s_add_u32 m0, s78, {tq*1024}"); k(f"s_add_u32 s79, s77, {tq*4096}")
        k.vmem(f"buffer_load_dwordx4 v{10 + ((tq>>1)&1)}, {sr(R_U,4)}, s79 offen lds", "dma")
    if not NOPF: prefetch_g(k)
    k("v_lshlrev_b32 v12, 4, v22")
    k("v_bfe_u32 v23, v1, 2, 2"); k("v_lshl_add_u32 v24, v22, 3, v23"); k("v_lshlrev_b32 v13, 8, v24")
    k("v_and_b32 v24, 1, v22"); k("v_lshl_add_u32 v24, v24, 2, v23"); k("v_lshl_add_u32 v13, v24, 5, v13")
    k("v_and_b32 v24, 3, v1"); k("v_lshl_add_u32 v13, v24, 3, v13"); k("v_add_u32 v13, s78, v13")
    k("v_and_b32 v25, 15, v1")
    k("s_lshl_b32 s83, s76, 7"); k(f"s_add_u32 s83, s83, {LY.WS_UT}")
    k(f"s_lshl_b32 s79, s{S_RW}, 11"); k(f"s_add_u32 s79, s79, {L_AUX + 65536}")
    k("v_and_b32 v19, 7, v25"); k("v_xor_b32 v19, v19, v22"); k("v_lshlrev_b32 v16, 7, v25"); k("v_lshl_add_u32 v16, v19, 4, v16"); k("v_add_u32 v16, s79, v16")
    k("v_xor_b32 v20, 64, v16")
    k("v_add_u32 v17, s79, v8")
    k("v_lshrrev_b32 v18, 3, v1"); k("v_and_b32 v19, 7, v1"); k("v_xor_b32 v19, v19, v18")
    k(f"s_lshl_b32 s79, s{S_RW}, 7"); k("v_add_u32 v18, s79, v18"); k("v_lshlrev_b32 v18, 12, v18"); k("v_lshl_add_u32 v18, v19, 4, v18")
    st()
    k.wait_vm("dma")
    tag_issue(k, 26)
    st()
    for cb in range(8):
        k(f"v_xor_b32 v15, {32*cb}, v13")
        for a in range(2):
            base = 160 + (cb*2+a) * 4
            for s in range(2):
                k.lds(f"ds_read_b64_tr_b16 {vr(base+2*s,2)}, v15 offset:{a*8192 + s*1024}", ("t", cb, a))
    def ust(cb):
        for a in range(2):
            base = 160 + (cb*2+a) * 4
            k.wait_lg(("r", cb, a))
            k(f"s_add_u32 s81, s83, {cb*65536 + a*32768}")
            k.vmem(f"buffer_store_dwordx4 {vr(base,4)}, v18, {sr(R_WS,4)}, s81 offen sc1", "st")
    for cb in range(8):
        for a in range(2):
            base = 160 + (cb*2+a) * 4
            k.wait_lg(("t", cb, a))
            k.lds(f"ds_write_b128 v{20 if a else 16}, {vr(base,4)}")
        for a in range(2):
            k.lds(f"ds_read_b128 {vr(160 + (cb*2+a)*4,4)}, v17 offset:{1024*a}", ("r", cb, a))
        if cb: ust(cb - 1)
    ust(7)
    tag_check(k, 26)
    k(f"s_lshl_b32 s79, s{S_RW}, 5"); k("s_add_u32 s79, s79, s76"); k("s_lshl_b32 s79, s79, 7"); k(f"s_add_u32 s79, s79, {LY.WS_FU}")
    k.wait_all_vm()
    publish(k, 79, 26)
    for s in range(16):
        k.vmem(f"global_load_dwordx4 {vr(96+4*s,4)}, v12, {sr(S_GW,2)} offset:{64*s}", "gw")
    st()
    k("s_barrier")
    k(f"s_lshl_b32 s79, s{S_RW}, 12"); k(f"s_add_u32 s79, s79, {L_AUX}"); k("v_lshlrev_b32 v16, 8, v25"); k("v_add_u32 v16, s79, v16")
    k("v_and_b32 v23, 3, v25"); k("v_bfe_u32 v24, v25, 3, 1"); k("v_lshl_add_u32 v23, v24, 2, v23")
    k("v_lshrrev_b32 v24, 1, v22"); k("v_xor_b32 v23, v23, v24"); k("v_lshl_add_u32 v16, v23, 5, v16")
    k("v_and_b32 v24, 1, v22"); k("v_lshl_add_u32 v16, v24, 4, v16")
    for s3 in range(4):
        k(f"v_xor_b32 v17, {64*s3}, v16")
        for reg in range(4):
            k.lds(f"ds_read_b128 {vr(32+4*(4*reg+s3),4)}, v17 offset:{reg*16384}", "gx")
    for i in range(4): k(f"v_mov_b32 v{28+i}, 0x3f803f80")
    k.wait_all_lg(); k.wait_all_vm()
    for s in range(16):
        T = 160
        for j in range(4):
            x = 32+4*s+j; w = 96+4*s+j
            k(f"v_lshlrev_b32 v{T+4*j}, 16, v{x}"); k(f"v_and_b32 v{T+4*j+1}, 0xffff0000, v{x}")
            k(f"v_lshlrev_b32 v{T+4*j+2}, 16, v{w}"); k(f"v_and_b32 v{T+4*j+3}, 0xffff0000, v{w}")
        for j in range(4): k(f"v_pk_mul_f32 {vr(T+4*j,2)}, {vr(T+4*j,2)}, {vr(T+4*j+2,2)}")
        for j in range(4): k(f"v_cvt_pk_bf16_f32 v{32+4*s+j}, v{T+4*j}, v{T+4*j+1}")
        k.nop(2)
        k(f"v_mfma_f32_16x16x32_bf16 v[224:227], v[28:31], {vr(32+4*s,4)}, {'0' if s==0 else 'v[224:227]'}")
    k.nop(10)
    rbf(k, 224)
    k(f"v_mul_f32 v225, {LOG2E:#x}, v224"); k("v_exp_f32 v225, -v225"); k("s_nop 0")
    k("v_add_f32 v225, 1.0, v225"); k("v_rcp_f32 v225, v225"); k("s_nop 0")
    rbf(k, 225)
    k("s_lshl_b32 s79, s76, 8"); k(f"s_lshl_b32 s81, s{S_RW}, 6"); k("s_add_u32 s79, s79, s81"); k(f"s_add_u32 s79, s79, {LY.WS_G}")
    k("v_lshlrev_b32 v226, 2, v25")
    k.vmem(f"buffer_store_dword v225, v226, {sr(R_WS,4)}, s79 offen sc1", "st")
    k("s_lshl_b32 s78, s76, 2"); k(f"s_add_u32 s78, s78, s{S_RW}"); k("s_lshl_b32 s78, s78, 7"); k(f"s_add_u32 s78, s78, {LY.WS_FG}")
    k.wait_all_vm()
    publish(k, 78, 22)
    st()
    k("v_and_b32 v13, 3, v1"); k("v_lshlrev_b32 v13, 7, v13"); k("s_lshl_b32 s78, s76, 9"); k(f"s_add_u32 s78, s78, {LY.WS_FG}")
    poll(k, 13, 78, 12)
    for j in range(9): w2dma(k, j)
    k.wait_all_vm()
    st(); st()
    k("s_branch L_G2")

DOC = '; Single fused launch, 256 workgroups x 8 waves (generated by the author\'s own python generator).\n'
def main():
    COLD.clear(); _lbl[0] = 0
    k = Asm()
    k("s_cmp_ge_u32 s2, 256"); k("s_cbranch_scc1 L_end")
    if STAMPS: k("s_memrealtime s[96:97]")
    k("s_load_dwordx16 s[4:19], s[0:1], 0"); k("s_load_dwordx16 s[20:35], s[0:1], 64"); k("s_load_dwordx2 s[36:37], s[0:1], 128")
    k("v_and_b32 v1, 63, v0"); k("v_lshrrev_b32 v2, 6, v0")
    k("s_getpc_b64 s[90:91]"); k("s_and_b32 s90, s90, 0xffffff00")
    k("s_lshr_b32 s64, s2, 3"); k("s_lshl_b32 s64, s64, 4")
    k("v_and_b32 v4, 1, v0"); k("v_lshl_add_u32 v4, v2, 1, v4"); k("v_add_u32 v4, s64, v4"); k(f"v_min_u32 v4, {CODEL}, v4"); k("v_lshlrev_b32 v4, 7, v4")
    if not NOCPF: k.vmem("global_load_dword v253, v4, s[90:91]", "cpf")
    k(f"v_readfirstlane_b32 s{S_WAVE}, v2")
    k(f"s_and_b32 s{S_XCD}, s2, 7"); k(f"s_lshr_b32 s{S_IDX}, s2, 3")
    k(f"s_and_b32 s{S_RW}, s{S_WAVE}, 3")
    k(f"s_lshr_b32 s{S_CH}, s{S_RW}, 1"); k(f"s_and_b32 s{S_HALF}, s{S_RW}, 1")
    k(f"s_lshl_b32 s{S_CHAN}, s2, 1"); k(f"s_add_u32 s{S_CHAN}, s{S_CHAN}, s{S_CH}")
    k(f"s_max_u32 s65, s{S_IDX}, 4"); k("s_sub_u32 s65, s65, 4")
    k(f"s_mul_i32 s{S_MT}, s65, 37"); k(f"s_lshr_b32 s{S_MT}, s{S_MT}, 8")
    k(f"s_mul_i32 s64, s{S_MT}, 7"); k(f"s_sub_u32 s{S_FT}, s65, s64")
    k(f"s_lshr_b32 s64, s{S_XCD}, 1"); k("s_lshl_b32 s64, s64, 2"); k(f"s_add_u32 s{S_MT}, s{S_MT}, s64")
    k(f"s_and_b32 s64, s{S_XCD}, 1"); k("s_mul_i32 s64, s64, 7"); k(f"s_add_u32 s{S_FT}, s{S_FT}, s64")
    k(f"s_lshl_b32 s{S_TT}, s{S_XCD}, 2"); k(f"s_lshr_b32 s64, s{S_IDX}, 3"); k(f"s_add_u32 s{S_TT}, s{S_TT}, s64")
    k(f"s_and_b32 s{S_NT}, s{S_IDX}, 7")
    k(f"s_mul_i32 s{S_TABB}, s{S_RW}, {TABW}"); k(f"s_add_u32 s{S_TABB}, s{S_TABB}, {L_TAB}")
    k("s_waitcnt lgkmcnt(0)")
    param_loads(k)
    if opt("bp", 1): k("s_barrier")
    vm0 = copy.deepcopy(k.vm)
    k(f"s_cmp_ge_u32 s{S_WAVE}, 4"); k("s_cbranch_scc1 L_H")
    st = Stamper(k, STAMPS, 3, 0)
    if STAMPS: k("v_writelane_b32 v3, s96, 14")
    st(); gen_M(k, st)
    k.label("L_H"); k.reset_counters(); k.vm = copy.deepcopy(vm0)
    st = Stamper(k, STAMPS, 250, 1); st(); gen_H(k, st, vm0)
    k.label("L_Maux"); k.reset_counters(); k.vm = copy.deepcopy(vm0)
    st = Stamper(k, STAMPS, 3, 0); st.n = 1; gen_Maux(k, st)
    k.out.extend(COLD)
    k.label("L_end"); k("s_endpgm")
    name = "gated_mix__ssm_conv_s4__glu_gated_swiglu__prompt_kernel"
    hdr = open("gated_mix__ssm_conv_s4__glu_gated_swiglu__prompt.s.ref").read().split("; Override")[0]
    s = hdr + DOC + f"; @launch grid=(256,1,1) block=(512,1,1) lds={LDS_TOTAL}\n" + '.amdgcn_target "amdgcn-amd-amdhsa--gfx950"\n.text\n' + kernel_header(name) + k.text() + '.section .rodata,"a"\n' + kernel_desc(name, 256, 102, 256)
    open(sys.argv[1], "w").write(s)
def codesize(path):
    import subprocess, re
    subprocess.check_call(["clang", "-x", "assembler", "-target", "amdgcn-amd-amdhsa", "-mcpu=gfx950", "-c", path, "-o", "_sz.o"])
    o = subprocess.check_output(["llvm-objdump", "-h", "_sz.o"]).decode()
    return int(re.search(r"\.text\s+([0-9a-f]+)", o).group(1), 16)
main()
sz = codesize(sys.argv[1]); CODEL = (sz - 4) // 128
assert CODEL < 512
main()
print("code bytes", sz)
```
